```python
import torch

def _softmax(x, axis=-1):
    return torch.softmax(x, dim=axis)
def _gelu(x):
    return torch.nn.functional.gelu(x, approximate="tanh")
def _silu(x):
    return torch.nn.functional.silu(x)
def _sigmoid(x):
    return torch.sigmoid(x)
def _layernorm(x, axis=-1, eps=1e-5):
    m = x.mean(dim=axis, keepdim=True)
    v = x.var(dim=axis, keepdim=True, unbiased=False)
    return (x - m) / torch.sqrt(v + eps)
def _scatter_add(tgt, idx, src, axis=0):
    return tgt.clone().index_add_(axis, idx, src)
def _segment_sum(src, seg, n):
    out = torch.zeros((n,) + src.shape[1:], dtype=src.dtype)
    return out.index_add_(0, seg, src)
def _pad(x, pw):
    flat = tuple(v for pair in reversed(pw) for v in pair)
    return torch.nn.functional.pad(x, flat)

kernel_name = 'sequential_preLN__spectral_fnet__swiglu_ffn__prompt'

def setup_inputs():

    _w = (lambda a: (lambda t: t.to(torch.bfloat16) if t.is_floating_point() else t)(torch.as_tensor(a)))
    def _A_setup():
        B, S, D = 1, 2048, 1024
        ns = torch.arange(S)[:, None] * torch.arange(S)[None, :]
        nd = torch.arange(D)[:, None] * torch.arange(D)[None, :]
        Ws_re = torch.cos(-2.0 * torch.pi * ns / S).to(float)
        Ws_im = torch.sin(-2.0 * torch.pi * ns / S).to(float)
        Wd_re = torch.cos(-2.0 * torch.pi * nd / D).to(float)
        Wd_im = torch.sin(-2.0 * torch.pi * nd / D).to(float)
        return {
            "x": _w((lambda *s: torch.randn(*s, dtype=torch.bfloat16) * 0.05)(B, S, D)),
            "dft_seq_re": _w(Ws_re),
            "dft_seq_im": _w(Ws_im),
            "dft_hid_re": _w(Wd_re),
            "dft_hid_im": _w(Wd_im),
        }
    _A_in = _A_setup()

    def _B_setup():
        B, S, D, F = 1, 2048, 1024, 3584
        return {
            "x": _w((lambda *s: torch.randn(*s, dtype=torch.bfloat16) * 0.05)(B, S, D)),
            "w_gate": _w((lambda *s: torch.randn(*s, dtype=torch.bfloat16) * 0.2)(D, F)),
            "w_up": _w((lambda *s: torch.randn(*s, dtype=torch.bfloat16) * 0.2)(D, F)),
            "w_down": _w((lambda *s: torch.randn(*s, dtype=torch.bfloat16) * 0.2)(F, D)),
        }
    _B_in = _B_setup()

    return {
        "A_x": _A_in["x"],
        "A_dft_seq_re": _A_in["dft_seq_re"],
        "A_dft_seq_im": _A_in["dft_seq_im"],
        "A_dft_hid_re": _A_in["dft_hid_re"],
        "A_dft_hid_im": _A_in["dft_hid_im"],
        "B_x": _B_in["x"],
        "B_w_gate": _B_in["w_gate"],
        "B_w_up": _B_in["w_up"],
        "B_w_down": _B_in["w_down"],
    }

def reference(A_x, A_dft_seq_re, A_dft_seq_im, A_dft_hid_re, A_dft_hid_im, B_x, B_w_gate, B_w_up, B_w_down):
    def _A_ref(x, dft_seq_re, dft_seq_im, dft_hid_re, dft_hid_im):
        a = torch.einsum("bsd,ed->bse", x, dft_hid_re)
        b = torch.einsum("bsd,ed->bse", x, dft_hid_im)
        y = torch.einsum("ts,bse->bte", dft_seq_re, a) - torch.einsum("ts,bse->bte", dft_seq_im, b)
        return y

    def _B_ref(x, w_gate, w_up, w_down):
        g = _silu(x @ w_gate)
        u = x @ w_up
        return (g * u) @ w_down

    x = A_x
    h = x + _A_ref(_layernorm(x, axis=-1), A_dft_seq_re, A_dft_seq_im, A_dft_hid_re, A_dft_hid_im)
    h2 = h + _B_ref(_layernorm(h, axis=-1), B_w_gate, B_w_up, B_w_down)
    return h2
```

```python
class Asm:
    def __init__(self):
        self.lines = []
        self.launches = []
        self.descs = []
        self._lbl = 0
    def __call__(self, s):
        for l in s.strip("\n").split("\n"):
            self.lines.append("    " + l.strip())
    def label(self, l):
        self.lines.append(l + ":")
    def newlabel(self, p="L"):
        self._lbl += 1
        return "%s_%d" % (p, self._lbl)
    def comment(self, s):
        self.lines.append("    ; " + s)
    def begin_kernel(self, name):
        self.lines += [".globl %s" % name, ".p2align 8", ".type %s,@function" % name, name + ":"]
    def end_kernel(self, name, vgpr, agpr=0, sgpr=102):
        self.lines.append("    s_endpgm")
        acc = (vgpr + 3) // 4 * 4
        nfv = acc + agpr if agpr else vgpr
        self.descs.append("\n".join([
            ".p2align 6",
            ".amdhsa_kernel %s" % name,
            "  .amdhsa_next_free_vgpr %d" % nfv,
            "  .amdhsa_next_free_sgpr %d" % sgpr,
            "  .amdhsa_accum_offset %d" % acc,
            "  .amdhsa_group_segment_fixed_size 0",
            "  .amdhsa_kernarg_size 96",
            "  .amdhsa_user_sgpr_count 2",
            "  .amdhsa_user_sgpr_kernarg_segment_ptr 1",
            "  .amdhsa_system_sgpr_workgroup_id_x 1",
            ".end_amdhsa_kernel"]))
    def launch(self, name, grid, block, lds):
        self.launches.append("; @launch kernel=%s grid=(%d,1,1) block=(%d,1,1) lds=%d" % (name, grid, block, lds))
    def text(self, header=""):
        out = []
        if header:
            out += ["; " + l for l in header.strip("\n").split("\n")]
        out += self.launches
        out += ['.amdgcn_target "amdgcn-amd-amdhsa--gfx950"', ".text"]
        out += self.lines
        out += ['.section .rodata,"a"']
        out += self.descs
        return "\n".join(out) + "\n"

def srd(a, d, base, nbytes):
    a("s_mov_b32 s%d, s%d" % (d, base))
    a("s_and_b32 s%d, s%d, 0xffff" % (d + 1, base + 1))
    a("s_mov_b32 s%d, 0x%x" % (d + 2, nbytes))
    a("s_mov_b32 s%d, 0x00020000" % (d + 3))
```

```python
from asmlib import *
from sched import *
import struct

MB = 1 << 20
WS_V = 0
WS_VM = 8 * MB
WS_XM = 9 * MB
WS_WSF = 10 * MB
WS_HC = 16 * MB
WS_MT = 20 * MB
WS_SS = 21 * MB
WS_ACT = 32 * MB
WS_STAMP = 200 * MB
LOG2E = 1.4426950408889634

def f2u(x):
    return struct.unpack("<I", struct.pack("<f", x))[0]

def srd_off(a, d, base, off, nbytes):
    if off:
        a("s_add_u32 s%d, s%d, 0x%x" % (d, base, off))
        a("s_addc_u32 s%d, s%d, 0" % (d + 1, base + 1))
        a("s_and_b32 s%d, s%d, 0xffff" % (d + 1, d + 1))
    else:
        a("s_mov_b32 s%d, s%d" % (d, base))
        a("s_and_b32 s%d, s%d, 0xffff" % (d + 1, base + 1))
    a("s_mov_b32 s%d, 0x%x" % (d + 2, nbytes))
    a("s_mov_b32 s%d, 0x00020000" % (d + 3))

SB = 72
def stamp_begin(a, sb=SB):
    a("s_memtime s[%d:%d]" % (sb, sb + 1))
    a("s_memrealtime s[%d:%d]" % (sb + 2, sb + 3))
def stamp_mid(a, k=0, sb=SB):
    a("s_memtime s[%d:%d]" % (sb + 8 + 2 * k, sb + 9 + 2 * k))
def stamp_end(a, sws, slot, swave, sb=SB):
    a("s_waitcnt vmcnt(0) lgkmcnt(0)")
    a("s_memtime s[%d:%d]" % (sb + 4, sb + 5))
    a("s_memrealtime s[%d:%d]" % (sb + 6, sb + 7))
    a("s_waitcnt lgkmcnt(0)")
    srd_off(a, sb + 16, sws, WS_STAMP + slot * MB, MB)
    a("s_lshl_b32 s%d, s2, 4" % (sb + 20))
    a("s_add_u32 s%d, s%d, s%d" % (sb + 20, sb + 20, swave))
    a("s_lshl_b32 s%d, s%d, 6" % (sb + 20, sb + 20))
    a("s_mov_b64 exec, -1")
    for k in range(16):
        a("v_mov_b32 v%d, s%d" % (2 + k, sb + k))
    a("v_mov_b32 v1, 0")
    a("v_cmp_eq_u32 vcc, 0, v0")
    a("s_and_saveexec_b64 s[%d:%d], vcc" % (sb + 22, sb + 23))
    for k in range(0, 16, 2):
        a("buffer_store_dwordx2 v[%d:%d], v1, s[%d:%d], s%d offen offset:%d" % (2 + k, 3 + k, sb + 16, sb + 19, sb + 20, 4 * k))

def read_stamps(c, nw, slot=0, nwg=256, nmid=4):
    import numpy as np
    st = c.read(c.ws, np.uint32, nwg * 16 * 16, WS_STAMP + slot * MB).reshape(nwg, 16, 16)[:, :nw, :].astype(np.uint64)
    q = lambda k: (st[..., k] + (st[..., k + 1] << np.uint64(32))).astype(np.int64)
    t0, r0, t1, r1 = q(0), q(2), q(4), q(6)
    mids = [int(np.median(q(8 + 2 * k) - t0)) for k in range(nmid)]
    txt = "span %.2f us (start spread %.2f); cycles med total %d mids %s; rt med %.2f us clk %.2f GHz" % (
        (r1.max() - r0.min()) / 100.0, (r0.max() - r0.min()) / 100.0, np.median(t1 - t0), mids, np.median(r1 - r0) / 100.0,
        np.median(t1 - t0) / (np.median(r1 - r0) * 10.0))
    return txt, int(r0.min()), int(r1.max())

def reduce_g4(s, b, t):
    s("v_mov_b32 v%d, v%d" % (t, b))
    s("s_nop 1")
    s("v_permlane32_swap_b32 v%d, v%d" % (b, t))
    s("v_add_f32 v%d, v%d, v%d" % (b, b, t))
    s("v_mov_b32 v%d, v%d" % (t, b))
    s("s_nop 1")
    s("v_permlane16_swap_b32 v%d, v%d" % (b, t))
    s("v_add_f32 v%d, v%d, v%d" % (b, b, t))
```

```python
from common import *

class Gemm:
    NW = 4
    def __init__(s, name, NRB, NF, SUB, NST, STB, R, AR, PD, ndma, VACC, stamp=None, skip=()):
        s.name, s.NRB, s.NF, s.SUB, s.NST, s.STB, s.R, s.AR, s.PD, s.ndma, s.VACC = name, NRB, NF, SUB, NST, STB, R, AR, PD, ndma, VACC
        s.stamp, s.skip = stamp, skip
        s.FPS = NF * SUB
        s.NB = PD + 1
        assert (s.FPS * AR) % s.NB == 0
        s.D = R - 2
        s.unrolled = False
        s.NACC = NF * NRB * 4
        s.vA = [2 + i for i in range(NRB)]
        s.vD = [6 + i for i in range(ndma)]
        s.vBl, s.vB = 13, 14
        s.aBbase = AR * SUB * NRB * 4
        s.aX = s.aBbase + s.NB * 4
        s.sA, s.sW, s.sO, s.sS = 8, 12, 16, 20
        s.sWave, s.sDoff, s.sAoff, s.sSlotD, s.sSlotR, s.sIt, s.sT, s.sLim = 24, 25, 26, 28, 29, 30, 31, 32
    def acc(s, j, i): return s.VACC + (j * s.NRB + i) * 4
    def aA(s, q, i): return ((q % (s.AR * s.SUB)) * s.NRB + i) * 4
    def aB(s, G): return s.aBbase + (G % s.NB) * 4
    def dma_text(s, n): raise NotImplementedError
    def dma_step(s): raise NotImplementedError
    def rd_off(s, sub, j, h): raise NotImplementedError
    def extra_unit(s, st_, q): pass
    def post_sync(s, p): pass
    def dma_ops(s, st):
        ops = []
        if s.unrolled and st >= s.NST: return ops
        for n in range(s.ndma):
            pre, t = s.dma_text(n)
            ops.append([pre, t, ("D", st, n), []])
        ops[-1][3] = ["s_add_u32 s%d, s%d, %d" % (s.sDoff, s.sDoff, s.dma_step()),
                      "s_add_u32 s%d, s%d, %d" % (s.sSlotD, s.sSlotD, s.STB),
                      "s_cmp_eq_u32 s%d, s%d" % (s.sSlotD, s.sLim),
                      "s_cselect_b32 s%d, %d, 0" % (s.sT, s.R * s.STB),
                      "s_sub_u32 s%d, s%d, s%d" % (s.sSlotD, s.sSlotD, s.sT)]
        return ops
    def a_ops(s, q):
        ops = []
        if s.unrolled and q >= s.NST * s.SUB: return ops
        for i in range(s.NRB):
            r = s.aA(q, i)
            t = "buffer_load_dwordx4 a[%d:%d], v%d, s[%d:%d], s%d offen" % (r, r + 3, s.vA[i], s.sA, s.sA + 3, s.sAoff)
            ops.append([[], t, ("A", q, i), []])
        ops[-1][3] = ["s_add_u32 s%d, s%d, 1024" % (s.sAoff, s.sAoff),
                      "s_cmp_ge_u32 s%d, %d" % (s.sAoff, s.NST * s.SUB * 1024),
                      "s_cselect_b32 s%d, 0x40000000, s%d" % (s.sAoff, s.sAoff)]
        return ops
    def put(s, st_, op):
        pre, t, tag, post = op
        for p in pre: st_.i(p)
        if pre: st_.i("s_nop 0")
        st_.vm(t, tag)
        for p in post: st_.i(p)
    def rd(s, st_, G, h):
        st, F = divmod(G, s.FPS)
        if s.unrolled and st >= s.NST: return
        sub, j = divmod(F, s.NF)
        r = s.aB(G) + 2 * h
        st_.ds("ds_read_b64_tr_b16 a[%d:%d], v%d offset:%d" % (r, r + 1, s.vB, s.rd_off(sub, j, h)), ("B", G, h))
    def sync(s, st_, st, key):
        if s.unrolled and st >= s.NST: return
        st_.wv(key, [("D", st, n) for n in range(s.ndma)])
        st_.i("s_barrier")
        st_.i("v_add_u32 v%d, s%d, v%d" % (s.vB, s.sSlotR, s.vBl))
        st_.i("s_add_u32 s%d, s%d, %d" % (s.sSlotR, s.sSlotR, s.STB))
        st_.i("s_cmp_eq_u32 s%d, %d" % (s.sSlotR, s.R * s.STB))
        st_.i("s_cselect_b32 s%d, 0, s%d" % (s.sSlotR, s.sSlotR))
    def prologue(s, early, late):
        p = Stream()
        p.i("s_mov_b32 s%d, 0" % s.sAoff)
        p.i("s_mov_b32 s%d, 0" % s.sSlotR)
        p.i("s_mov_b32 s%d, 0" % s.sIt)
        early(p)
        nq = s.AR * s.SUB - (0 if s.unrolled else 1)
        for st in range(max(s.D, s.AR)):
            if st < s.D:
                for op in s.dma_ops(st): s.put(p, op)
            for q in range(st * s.SUB, min((st + 1) * s.SUB, nq)):
                for op in s.a_ops(q): s.put(p, op)
            if st == 0:
                for r in range(s.NACC): p.i("v_mov_b32 v%d, 0" % (s.VACC + r))
        late(p)
        s.sync(p, 0, "p0")
        s.post_sync(p)
        for G in range(s.PD):
            s.rd(p, G, 0); s.rd(p, G, 1)
        return p
    def stage(s, st_, st, u):
        d = s.dma_ops(st + s.D)
        per = (len(d) + s.SUB - 1) // s.SUB
        for sub in range(s.SUB):
            q = st * s.SUB + sub
            fl = ([] if s.unrolled else s.a_ops(q + s.AR * s.SUB - 1)) + d[sub * per:(sub + 1) * per]
            nslots = s.NF
            for j in range(s.NF):
                F = sub * s.NF + j
                G = st * s.FPS + F
                if j == 0:
                    st_.wv(("A", u, sub), [("A", q, i) for i in range(s.NRB)])
                    s.extra_unit(st_, q)
                st_.wl(("B", u, F), [("B", G, 0), ("B", G, 1)])
                for i in range(s.NRB):
                    c = s.acc(j, i)
                    st_.i("v_mfma_f32_16x16x32_bf16 v[%d:%d], a[%d:%d], a[%d:%d], v[%d:%d]" % (
                        c, c + 3, s.aB(G), s.aB(G) + 3, s.aA(q, i), s.aA(q, i) + 3, c, c + 3))
                    if i == 0:
                        if F == s.FPS - s.PD:
                            s.sync(st_, st + 1, ("D", u))
                        s.rd(st_, G + s.PD, 0)
                    elif i == 1:
                        s.rd(st_, G + s.PD, 1)
                    if i == s.NRB - 1:
                        left = s.NF - j
                        n = -(-len(fl) // left) if (len(fl) >= left) else (1 if (fl and (j * len(fl)) % 1 == 0 and len(fl) * 2 > left - 1 or (fl and j % 2 == 1)) else 0)
                        for _ in range(n):
                            if fl: s.put(st_, fl.pop(0))
            assert not fl
    def emit_main(s, a, early, late):
        pro = s.prologue(early, late)
        nit = s.NST // s.AR
        assert nit * s.AR == s.NST
        def body(it):
            b = Stream()
            for u in range(s.AR): s.stage(b, it * s.AR + u, u)
            return b
        bodies = [body(it) for it in range(nit)]
        for b in bodies[1:]: assert same_text(bodies[0], b)
        res = resolve([pro] + bodies)
        emit(a, pro, res)
        if s.stamp is not None: stamp_mid(a, 0)
        a.label("%s_loop" % s.name)
        emit(a, bodies[0], res, s.skip)
        if nit > 1:
            a("s_add_u32 s%d, s%d, 1" % (s.sIt, s.sIt))
            a("s_cmp_lt_u32 s%d, %d" % (s.sIt, nit))
            a("s_cbranch_scc1 %s_loop" % s.name)
        if s.stamp is not None: stamp_mid(a, 1)
    def header(s, a):
        a.begin_kernel(s.name)
        a("s_cmp_ge_u32 s2, 256")
        a("s_cbranch_scc1 %s_end" % s.name)
        if s.stamp is not None: stamp_begin(a)

def ss_load(p, g, vdst, vaddr):
    for i in range(g.NRB):
        p.vm("buffer_load_dwordx4 v[%d:%d], v%d, s[%d:%d], 0 offen offset:%d" % (vdst + 4 * i, vdst + 4 * i + 3, vaddr, g.sS, g.sS + 3, i * 1024), ("ss", i))
def ss_reduce(p, g, vsrc):
    p.wv("ssw", [("ss", i) for i in range(g.NRB)])
    for i in range(g.NRB):
        b = vsrc + 4 * i
        p.i("v_add_f32 v%d, v%d, v%d" % (b, b, b + 1))
        p.i("v_add_f32 v%d, v%d, v%d" % (b + 2, b + 2, b + 3))
        p.i("v_add_f32 v%d, v%d, v%d" % (b, b, b + 2))
        reduce_g4(p.i, b, b + 1)
        p.i("v_mov_b32 v%d, 0x%x" % (b + 1, f2u(1e-5)))
        p.i("v_fmac_f32 v%d, 0x%x, v%d" % (b + 1, f2u(1.0 / 1024), b))

class G3(Gemm):
    def __init__(s, AR=2, PD=3, R=5, **kw):
        super().__init__("g3_kernel", NRB=4, NF=14, SUB=2, NST=16, STB=28672, R=R, AR=AR, PD=PD, ndma=7, VACC=32, **kw)
    def dma_text(s, n):
        pre = ["s_add_u32 m0, s%d, %d" % (s.sSlotD, (n // 4) * 4096)] if n % 4 == 0 else []
        return pre, "buffer_load_dwordx4 v%d, s[%d:%d], s%d offen offset:%d lds" % (s.vD[n], s.sW, s.sW + 3, s.sDoff, (n % 4) * 1024)
    def dma_step(s): return 64 * 7168
    def rd_off(s, sub, j, h):
        mat, jj = divmod(j, 7)
        return (sub * 2 + mat) * 7168 + h * 16 * 224 + jj * 32
    def gen(s, a):
        NRB, sT, sWave = s.NRB, s.sT, s.sWave
        vT = 20; vC1 = [15 + i for i in range(NRB)]; vSS = 19
        sNt, sMt = 33, 34
        s.header(a)
        a("s_load_dwordx4 s[36:39], s[0:1], 48")
        a("s_load_dwordx2 s[40:41], s[0:1], 88")
        a("v_lshrrev_b32 v1, 6, v0")
        a("v_and_b32 v0, 63, v0")
        a("v_readfirstlane_b32 s%d, v1" % sWave)
        a("s_and_b32 s%d, s2, 7" % sT)
        a("s_lshl_b32 s%d, s%d, 2" % (sNt, sT))
        a("s_lshr_b32 s%d, s2, 3" % sT)
        a("s_and_b32 s%d, s%d, 3" % (sMt, sT))
        a("s_add_u32 s%d, s%d, s%d" % (sNt, sNt, sMt))
        a("s_lshr_b32 s%d, s%d, 2" % (sMt, sT))
        a("s_lshl_b32 s%d, s%d, 4" % (sT, sMt))
        a("s_mul_i32 s42, s%d, %d" % (sWave, NRB))
        a("s_add_u32 s42, s42, s%d" % sT)
        a("s_lshl_b32 s43, s42, 15")
        a("v_lshlrev_b32 v1, 4, v0")
        for i in range(NRB):
            a("s_add_u32 s%d, s43, %d" % (sT, i * 32768))
            a("v_add_u32 v%d, s%d, v1" % (s.vA[i], sT))
        a("s_lshl_b32 s%d, s42, 10" % sT)
        a("v_add_u32 v%d, s%d, v1" % (vSS, sT))
        for i in range(7):
            a("v_add_u32 v%d, %d, v0" % (vT, 64 * i))
            a("v_mul_u32_u24 v%d, 4682, v%d" % (vT + 1, vT))
            a("v_lshrrev_b32 v%d, 16, v%d" % (vT + 1, vT + 1))
            a("v_mul_u32_u24 v%d, %d, v%d" % (vT + 1, 7168 - 14 * 16, vT + 1))
            a("v_lshl_add_u32 v%d, v%d, 4, v%d" % (s.vD[i], vT, vT + 1))
            if i % 4:
                a("v_subrev_u32 v%d, %d, v%d" % (s.vD[i], (i % 4) * 1024, s.vD[i]))
        a("v_lshrrev_b32 v%d, 2, v0" % vT)
        a("v_mul_u32_u24 v%d, 224, v%d" % (vT, vT))
        a("v_and_b32 v%d, 3, v0" % (vT + 1))
        a("v_lshl_add_u32 v%d, v%d, 3, v%d" % (s.vBl, vT + 1, vT))
        a("s_and_b32 s%d, s%d, 1" % (sT, sWave))
        a("s_mul_i32 s%d, s%d, %d" % (s.sDoff, sT, 32 * 7168))
        a("s_mul_i32 s%d, s%d, 224" % (s.sLim, sNt))
        a("s_add_u32 s%d, s%d, s%d" % (s.sDoff, s.sDoff, s.sLim))
        a("s_lshl_b32 s%d, s%d, 1" % (sT, sT))
        a("s_bfe_u32 s%d, s%d, 0x10001" % (s.sLim, sWave))
        a("s_add_u32 s%d, s%d, s%d" % (s.sLim, s.sLim, sT))
        a("s_mul_i32 s%d, s%d, 7168" % (s.sSlotD, s.sLim))
        a("s_add_u32 s%d, s%d, %d" % (s.sLim, s.sSlotD, s.R * s.STB))
        a("s_waitcnt lgkmcnt(0)")
        a("s_bitcmp1_b32 s%d, 1" % sWave)
        a("s_cselect_b32 s%d, s38, s36" % s.sW)
        a("s_cselect_b32 s%d, s39, s37" % (s.sW + 1))
        a("s_and_b32 s%d, s%d, 0xffff" % (s.sW + 1, s.sW + 1))
        a("s_mov_b32 s%d, %d" % (s.sW + 2, 1024 * 7168))
        a("s_mov_b32 s%d, 0x00020000" % (s.sW + 3))
        srd_off(a, s.sA, 40, WS_HC, 4 * MB)
        srd_off(a, s.sS, 40, WS_SS, 2048 * 64)
        srd_off(a, s.sO, 40, WS_ACT, 2048 * 3584 * 2)
        if s.stamp is not None: stamp_mid(a, 3)
        aSS = s.aX
        def early(p):
            for i in range(NRB):
                p.vm("buffer_load_dwordx4 a[%d:%d], v%d, s[%d:%d], 0 offen offset:%d" % (aSS + 4 * i, aSS + 4 * i + 3, vSS, s.sS, s.sS + 3, i * 1024), ("ss", i))
        def late(p):
            p.wv("ssw", [("ss", i) for i in range(NRB)])
            for i in range(NRB):
                b = vT
                for r in range(4): p.i("v_accvgpr_read_b32 v%d, a%d" % (b + r, aSS + 4 * i + r))
                p.i("v_add_f32 v%d, v%d, v%d" % (b, b, b + 1))
                p.i("v_add_f32 v%d, v%d, v%d" % (b + 2, b + 2, b + 3))
                p.i("v_add_f32 v%d, v%d, v%d" % (b, b, b + 2))
                reduce_g4(p.i, b, b + 1)
                p.i("v_mov_b32 v%d, 0x%x" % (b + 1, f2u(1e-5)))
                p.i("v_fmac_f32 v%d, 0x%x, v%d" % (b + 1, f2u(1.0 / 1024), b))
                p.i("v_rsq_f32 v%d, v%d" % (b + 1, b + 1))
                p.i("s_nop 0")
                p.i("v_mul_f32 v%d, 0x%x, v%d" % (vC1[i], f2u(-LOG2E), b + 1))
        s.emit_main(a, early, late)
        a("s_mul_i32 s43, s42, %d" % (112 * 1024))
        a("v_lshlrev_b32 v1, 4, v0")
        a("v_add_u32 v1, s43, v1")
        a("s_mul_i32 s44, s%d, 7" % sNt)
        a("s_nop 7")
        for j in range(7):
            a("s_add_u32 s46, s44, %d" % j)
            a("s_lshr_b32 s45, s46, 1")
            a("s_lshl_b32 s45, s45, 10")
            a("s_and_b32 s46, s46, 1")
            a("s_lshl_b32 s46, s46, 3")
            a("s_add_u32 s45, s45, s46")
            for i in range(NRB):
                g, u = s.acc(j, i), s.acc(j + 7, i)
                t = vT + 4 * ((j * NRB + i) % 2)
                o = vT + 8 + 2 * ((j * NRB + i) % 2)
                c = vC1[i]
                for r in range(4): a("v_mul_f32 v%d, v%d, v%d" % (t + r, g + r, c))
                for r in range(4): a("v_exp_f32 v%d, v%d" % (t + r, t + r))
                for r in range(4): a("v_mul_f32 v%d, v%d, v%d" % (g + r, g + r, u + r))
                for r in range(4): a("v_add_f32 v%d, 1.0, v%d" % (t + r, t + r))
                for r in range(4): a("v_rcp_f32 v%d, v%d" % (t + r, t + r))
                a("s_nop 0")
                for r in range(4): a("v_mul_f32 v%d, v%d, v%d" % (g + r, g + r, t + r))
                a("v_cvt_pk_bf16_f32 v%d, v%d, v%d" % (o, g, g + 1))
                a("v_cvt_pk_bf16_f32 v%d, v%d, v%d" % (o + 1, g + 2, g + 3))
                if i: a("s_add_u32 s45, s45, %d" % (112 * 1024))
                a("buffer_store_dwordx2 v[%d:%d], v1, s[%d:%d], s45 offen" % (o, o + 1, s.sO, s.sO + 3))
        if s.stamp is not None:
            stamp_mid(a, 2); stamp_end(a, 40, s.stamp, sWave)
        a.label("%s_end" % s.name)
        a.end_kernel(s.name, s.VACC + s.NACC, aSS + 4 * NRB, 96)
        a.launch(s.name, 256, 256, s.R * s.STB)

class G4(Gemm):
    def __init__(s, AR=4, PD=3, R=6, name="g4_kernel", NST=28, **kw):
        super().__init__(name, NRB=2, NF=4, SUB=4, NST=NST, STB=16896, R=R, AR=AR, PD=PD, ndma=4, VACC=64, **kw)
    def dma_text(s, n):
        pre = ["s_mov_b32 m0, s%d" % s.sSlotD] if n == 0 else []
        return pre, "buffer_load_dwordx4 v%d, s[%d:%d], s%d offen offset:%d lds" % (s.vD[n], s.sW, s.sW + 3, s.sDoff, n * 1056)
    def dma_step(s): return 128 * 2048
    def rd_off(s, sub, j, h):
        return (sub // 2) * 8448 + (sub % 2) * 512 + h * 256 + j * 32
    def lane_addrs(s, a, vT):
        a("v_bfe_u32 v%d, v0, 2, 3" % vT)
        a("v_mul_u32_u24 v%d, 1056, v%d" % (vT, vT))
        a("v_lshrrev_b32 v%d, 5, v0" % (vT + 1))
        a("v_lshl_add_u32 v%d, v%d, 7, v%d" % (vT, vT + 1, vT))
        a("v_and_b32 v%d, 3, v0" % (vT + 1))
        a("v_lshl_add_u32 v%d, v%d, 3, v%d" % (s.vBl, vT + 1, vT))
        a("s_mul_i32 s%d, s%d, 4224" % (s.sSlotD, s.sWave))
        a("s_add_u32 s%d, s%d, %d" % (s.sLim, s.sSlotD, s.R * s.STB))
    def gen(s, a):
        NRB, sT, sWave = s.NRB, s.sT, s.sWave
        vT = 20; vSS = 19; vR2 = [15, 16]; vM = [17, 18]; vH = 32
        sNt, sMt, sH, sM = 33, 34, 48, 52
        s.header(a)
        a("s_load_dwordx4 s[36:39], s[0:1], 64")
        a("s_load_dwordx2 s[40:41], s[0:1], 88")
        a("v_lshrrev_b32 v1, 6, v0")
        a("v_and_b32 v0, 63, v0")
        a("v_readfirstlane_b32 s%d, v1" % sWave)
        a("s_bfe_u32 s%d, s2, 0x20001" % sT)
        a("s_lshl_b32 s%d, s%d, 2" % (sMt, sT))
        a("s_lshr_b32 s%d, s2, 6" % sT)
        a("s_add_u32 s%d, s%d, s%d" % (sMt, sMt, sT))
        a("s_and_b32 s%d, s2, 1" % sT)
        a("s_lshl_b32 s%d, s%d, 3" % (sNt, sT))
        a("s_bfe_u32 s%d, s2, 0x30003" % sT)
        a("s_add_u32 s%d, s%d, s%d" % (sNt, sNt, sT))
        a("s_lshl_b32 s42, s%d, 3" % sMt)
        a("s_lshl_b32 s%d, s%d, 1" % (sT, sWave))
        a("s_add_u32 s42, s42, s%d" % sT)
        a("s_mul_i32 s43, s42, %d" % (112 * 1024))
        a("v_lshlrev_b32 v1, 4, v0")
        for i in range(NRB):
            a("s_add_u32 s%d, s43, %d" % (sT, i * 112 * 1024))
            a("v_add_u32 v%d, s%d, v1" % (s.vA[i], sT))
        a("s_lshl_b32 s%d, s42, 10" % sT)
        a("v_add_u32 v%d, s%d, v1" % (vSS, sT))
        a("v_lshrrev_b32 v%d, 3, v0" % vT)
        a("v_lshlrev_b32 v%d, 14, v%d" % (vT, vT))
        a("v_and_b32 v%d, 7, v0" % (vT + 1))
        a("v_lshl_add_u32 v%d, v%d, 4, v%d" % (s.vD[0], vT + 1, vT))
        for n in range(1, 4):
            a("v_add_u32 v%d, %d, v%d" % (s.vD[n], n * (2048 - 1056), s.vD[0]))
        s.lane_addrs(a, vT)
        a("s_lshr_b32 s%d, s%d, 1" % (sT, sWave))
        a("s_lshl_b32 s%d, s%d, 17" % (s.sDoff, sT))
        a("s_and_b32 s%d, s%d, 1" % (sT, sWave))
        a("s_lshl_b32 s%d, s%d, 13" % (sT, sT))
        a("s_add_u32 s%d, s%d, s%d" % (s.sDoff, s.sDoff, sT))
        a("s_lshl_b32 s%d, s%d, 7" % (sT, sNt))
        a("s_add_u32 s%d, s%d, s%d" % (s.sDoff, s.sDoff, sT))
        a("s_lshl_b32 s%d, s42, 15" % sT)
        a("s_lshl_b32 s44, s%d, 11" % sNt)
        a("s_add_u32 s44, s44, s%d" % sT)
        a("v_add_u32 v%d, s44, v1" % (vT + 2))
        a("v_add_u32 v%d, 0x8000, v%d" % (vT + 4, vT + 2))
        a("v_and_b32 v%d, 15, v0" % (vT + 3))
        a("v_lshlrev_b32 v%d, 2, v%d" % (vT + 3, vT + 3))
        a("s_lshl_b32 s%d, s42, 6" % sT)
        a("v_add_u32 v%d, s%d, v%d" % (vT + 3, sT, vT + 3))
        a("s_waitcnt lgkmcnt(0)")
        srd_off(a, s.sW, 36, 0, 3584 * 2048)
        srd_off(a, s.sA, 40, WS_ACT, 2048 * 3584 * 2)
        srd_off(a, s.sS, 40, WS_SS, 2048 * 64)
        srd_off(a, s.sO, 38, 0, 2048 * 2048)
        srd_off(a, sH, 40, WS_HC, 4 * MB)
        srd_off(a, sM, 40, WS_MT, 8192)
        if s.stamp is not None: stamp_mid(a, 3)
        def early(p): pass
        def late(p):
            ss_load(p, s, 48, vSS)
            for i in range(NRB):
                for q in range(2):
                    r = vH + (i * 2 + q) * 4
                    p.vm("buffer_load_dwordx4 v[%d:%d], v%d, s[%d:%d], 0 offen offset:%d" % (r, r + 3, vT + 2 + 2 * i, sH, sH + 3, q * 1024), ("h", i, q))
                p.vm("buffer_load_dword v%d, v%d, s[%d:%d], 0 offen offset:%d" % (vM[i], vT + 3, sM, sM + 3, i * 64), ("m", i))
        s.emit_main(a, early, late)
        e = Stream()
        for i in range(NRB):
            b = 48 + 4 * i
            e.i("v_add_f32 v%d, v%d, v%d" % (b, b, b + 1))
            e.i("v_add_f32 v%d, v%d, v%d" % (b + 2, b + 2, b + 3))
            e.i("v_add_f32 v%d, v%d, v%d" % (b, b, b + 2))
            reduce_g4(e.i, b, b + 1)
            e.i("v_mov_b32 v%d, 0x%x" % (b + 1, f2u(1e-5)))
            e.i("v_fmac_f32 v%d, 0x%x, v%d" % (b + 1, f2u(1.0 / 1024), b))
            e.i("v_rcp_f32 v%d, v%d" % (vR2[i], b + 1))
        e.i("v_and_b32 v%d, 15, v0" % vT)
        e.i("s_lshl_b32 s%d, s42, 4" % sT)
        e.i("v_add_u32 v%d, s%d, v%d" % (vT, sT, vT))
        e.i("v_lshrrev_b32 v%d, 8, v%d" % (vT + 1, vT))
        e.i("v_and_b32 v%d, 255, v%d" % (vT, vT))
        e.i("v_lshl_add_u32 v%d, v%d, 3, v%d" % (vT, vT, vT + 1))
        e.i("v_lshlrev_b32 v%d, 11, v%d" % (vT, vT))
        e.i("v_lshrrev_b32 v%d, 4, v0" % (vT + 1))
        e.i("v_lshl_add_u32 v%d, v%d, 3, v%d" % (vT, vT + 1, vT))
        e.i("s_lshl_b32 s44, s%d, 7" % sNt)
        for i in range(NRB):
            for j in range(4):
                c = s.acc(j, i)
                h = vH + (i * 2 + j // 2) * 4 + (j % 2) * 2
                t = vT + 2 + 4 * (j % 2)
                e.i("v_lshlrev_b32 v%d, 16, v%d" % (t, h))
                e.i("v_and_b32 v%d, 0xffff0000, v%d" % (t + 1, h))
                e.i("v_lshlrev_b32 v%d, 16, v%d" % (t + 2, h + 1))
                e.i("v_and_b32 v%d, 0xffff0000, v%d" % (t + 3, h + 1))
                for r in range(4):
                    e.i("v_add_f32 v%d, v%d, v%d" % (t + r, t + r, vM[i]))
                for r in range(4):
                    e.i("v_fmac_f32 v%d, v%d, v%d" % (t + r, c + r, vR2[i]))
                e.i("v_cvt_pk_bf16_f32 v%d, v%d, v%d" % (c, t, t + 1))
                e.i("v_cvt_pk_bf16_f32 v%d, v%d, v%d" % (c + 1, t + 2, t + 3))
                e.i("buffer_store_dwordx2 v[%d:%d], v%d, s[%d:%d], s44 offen offset:%d" % (c, c + 1, vT, s.sO, s.sO + 3, j * 32))
            e.i("s_add_u32 s44, s44, %d" % (16 * 8 * 2048))
        emit(a, e, {})
        if s.stamp is not None:
            stamp_mid(a, 2); stamp_end(a, 40, s.stamp, sWave)
        a.label("%s_end" % s.name)
        a.end_kernel(s.name, s.VACC + s.NACC, s.aX, 96)
        a.launch(s.name, 256, 256, s.R * s.STB)

class K2(G4):
    def __init__(s, PD=3, **kw):
        super().__init__(AR=4, PD=PD, R=4, name="k2_kernel", NST=4, **kw)
        s.D = 4
        s.unrolled = True
        s.aM = s.aX
        s.vAccM = 56
        s.vMl = 31
    def dma_text(s, n):
        pre = ["s_add_u32 m0, s%d, %d" % (s.sSlotD, 32 * n)]
        return pre, "buffer_load_dwordx4 v1, s[%d:%d], s%d offen offset:%d lds" % (s.sW, s.sW + 3, s.sDoff, n * 1024)
    def dma_step(s): return 16384
    def post_sync(s, p):
        p.wv("vmw", [("vm",)])
        for q in range(16):
            p.ds("ds_read_b128 a[%d:%d], v%d offset:%d" % (s.aM + 4 * q, s.aM + 4 * q + 3, s.vMl, q * 64), ("M", q))
    def extra_unit(s, st_, q):
        st_.wl(("M", q), [("M", q)])
        for i in range(s.NRB):
            c = s.vAccM + 4 * i
            src = "0" if q == 0 else "v[%d:%d]" % (c, c + 3)
            st_.i("v_mfma_f32_16x16x32_bf16 v[%d:%d], a[%d:%d], a[%d:%d], %s" % (
                c, c + 3, s.aM + 4 * q, s.aM + 4 * q + 3, s.aA(q, i), s.aA(q, i) + 3, src))
    def gen(s, a):
        NRB, sT, sWave = s.NRB, s.sT, s.sWave
        vT = 20; vXM = [17, 18]; vX = 32; vXa = 15
        sNt, sT1, sX, sM, sXM, sVM = 33, 34, 48, 52, 56, 60
        s.header(a)
        a("s_load_dwordx2 s[36:37], s[0:1], 0")
        a("s_load_dwordx2 s[40:41], s[0:1], 88")
        a("v_lshrrev_b32 v1, 6, v0")
        a("v_and_b32 v0, 63, v0")
        a("v_readfirstlane_b32 s%d, v1" % sWave)
        a("s_and_b32 s%d, s2, 7" % sT1)
        a("s_bfe_u32 s%d, s2, 0x40003" % sNt)
        a("s_lshr_b32 s%d, s2, 7" % sT)
        a("s_lshl_b32 s42, s%d, 4" % sT1)
        a("s_lshl_b32 s%d, s%d, 3" % (sT, sT))
        a("s_add_u32 s42, s42, s%d" % sT)
        a("s_lshl_b32 s%d, s%d, 1" % (sT, sWave))
        a("s_add_u32 s42, s42, s%d" % sT)
        a("s_lshl_b32 s43, s42, 14")
        a("v_lshlrev_b32 v1, 4, v0")
        for i in range(NRB):
            a("s_add_u32 s%d, s43, %d" % (sT, i * 16384))
            a("v_add_u32 v%d, s%d, v1" % (s.vA[i], sT))
        s.lane_addrs(a, vT)
        a("s_lshl_b32 s%d, s%d, 4" % (sT, sT1))
        a("s_add_u32 s%d, s%d, s%d" % (sT, sT, sNt))
        a("s_lshl_b32 s%d, s%d, 16" % (s.sDoff, sT))
        a("s_lshl_b32 s%d, s%d, 12" % (sT, sWave))
        a("s_add_u32 s%d, s%d, s%d" % (s.sDoff, s.sDoff, sT))
        a("s_lshl_b32 s45, s%d, 10" % sWave)
        a("s_add_u32 s45, s45, %d" % (s.R * s.STB))
        a("v_lshrrev_b32 v%d, 4, v0" % vT)
        a("v_lshlrev_b32 v%d, 4, v%d" % (vT, vT))
        a("v_add_u32 v%d, s45, v%d" % (s.vMl, vT))
        a("s_lshl_b32 s46, s%d, 10" % sT1)
        a("v_and_b32 v%d, 15, v0" % vT)
        a("s_lshl_b32 s%d, s42, 4" % sT)
        a("v_add_u32 v%d, s%d, v%d" % (vT, sT, vT))
        a("v_lshlrev_b32 v%d, 2, v%d" % (vT + 3, vT))
        a("v_lshrrev_b32 v%d, 8, v%d" % (vT + 1, vT))
        a("v_and_b32 v%d, 255, v%d" % (vT, vT))
        a("v_lshl_add_u32 v%d, v%d, 3, v%d" % (vT, vT, vT + 1))
        a("v_lshlrev_b32 v%d, 11, v%d" % (vT, vT))
        a("v_lshrrev_b32 v%d, 4, v0" % (vT + 1))
        a("v_lshl_add_u32 v%d, v%d, 3, v%d" % (vT, vT + 1, vT))
        a("s_lshl_b32 s44, s%d, 7" % sNt)
        a("v_add_u32 v%d, s44, v%d" % (vXa, vT))
        a("v_add_u32 v%d, %d, v%d" % (vXa + 1, 16 * 8 * 2048, vXa))
        a("s_waitcnt lgkmcnt(0)")
        srd_off(a, s.sW, 40, WS_V, 8 * MB)
        srd_off(a, s.sA, 40, WS_WSF, 2 * MB)
        srd_off(a, sVM, 40, WS_VM, 8192)
        srd_off(a, s.sS, 40, WS_SS, 2048 * 64)
        srd_off(a, s.sO, 40, WS_HC, 4 * MB)
        srd_off(a, sX, 36, 0, 2048 * 2048)
        srd_off(a, sM, 40, WS_MT, 8192)
        srd_off(a, sXM, 40, WS_XM, 8192)
        if s.stamp is not None: stamp_mid(a, 3)
        def early(p):
            p.i("s_mov_b32 m0, s45")
            p.i("s_nop 0")
            p.vm("buffer_load_dwordx4 v1, s[%d:%d], s46 offen lds" % (sVM, sVM + 3), ("vm",))
        def late(p):
            for i in range(NRB):
                for j in range(4):
                    r = vX + (i * 4 + j) * 2
                    p.vm("buffer_load_dwordx2 v[%d:%d], v%d, s[%d:%d], 0 offen offset:%d" % (r, r + 1, vXa + i, sX, sX + 3, j * 32), ("x", i, j))
                p.vm("buffer_load_dword v%d, v%d, s[%d:%d], 0 offen offset:%d" % (vXM[i], vT + 3, sXM, sXM + 3, i * 64), ("xm", i))
        s.emit_main(a, early, late)
        a("s_waitcnt vmcnt(0)")
        a("s_lshl_b32 s44, s42, 15")
        a("s_lshl_b32 s%d, s%d, 11" % (sT, sNt))
        a("s_add_u32 s44, s44, s%d" % sT)
        a("s_lshl_b32 s45, s42, 10")
        a("s_lshr_b32 s%d, s%d, 2" % (sT, sNt))
        a("s_lshl_b32 s%d, s%d, 8" % (sT, sT))
        a("s_add_u32 s45, s45, s%d" % sT)
        a("s_and_b32 s%d, s%d, 3" % (sT, sNt))
        a("s_lshl_b32 s%d, s%d, 2" % (sT, sT))
        a("s_add_u32 s45, s45, s%d" % sT)
        a("v_and_b32 v%d, 15, v0" % (vT + 2))
        a("v_lshlrev_b32 v%d, 4, v%d" % (vT + 2, vT + 2))
        a("s_nop 4")
        for i in range(NRB):
            m = vXM[i]
            a("v_add_f32 v%d, v%d, v%d" % (m, m, s.vAccM + 4 * i))
            ssr = 48 + 2 * i
            for j in range(4):
                c = s.acc(j, i)
                x = vX + (i * 4 + j) * 2
                t = vT + 4
                a("v_lshlrev_b32 v%d, 16, v%d" % (t, x))
                a("v_and_b32 v%d, 0xffff0000, v%d" % (t + 1, x))
                a("v_lshlrev_b32 v%d, 16, v%d" % (t + 2, x + 1))
                a("v_and_b32 v%d, 0xffff0000, v%d" % (t + 3, x + 1))
                for r in range(4): a("v_sub_f32 v%d, v%d, v%d" % (t + r, t + r, m))
                for r in range(4): a("v_add_f32 v%d, v%d, v%d" % (t + r, t + r, c + r))
                for r in range(4):
                    if j == 0 and r == 0: a("v_mul_f32 v%d, v%d, v%d" % (ssr, t, t))
                    else: a("v_fmac_f32 v%d, v%d, v%d" % (ssr, t + r, t + r))
                a("v_cvt_pk_bf16_f32 v%d, v%d, v%d" % (x, t, t + 1))
                a("v_cvt_pk_bf16_f32 v%d, v%d, v%d" % (x + 1, t + 2, t + 3))
                if j % 2 == 1:
                    a("buffer_store_dwordx4 v[%d:%d], v1, s[%d:%d], s44 offen offset:%d" % (x - 2, x + 1, s.sO, s.sO + 3, (j // 2) * 1024))
            a("s_add_u32 s44, s44, 0x8000")
            reduce_g4(a, ssr, ssr + 1)
            a("buffer_store_dword v%d, v%d, s[%d:%d], s45 offen offset:%d" % (ssr, vT + 2, s.sS, s.sS + 3, i * 1024))
        a("s_cmp_lg_u32 s%d, 0" % sNt)
        a("s_cbranch_scc1 %s_nomt" % s.name)
        for i in range(NRB):
            a("buffer_store_dword v%d, v%d, s[%d:%d], 0 offen offset:%d" % (vXM[i], vT + 3, sM, sM + 3, i * 64))
        a.label("%s_nomt" % s.name)
        if s.stamp is not None:
            stamp_mid(a, 2); stamp_end(a, 40, s.stamp, sWave)
        a.label("%s_end" % s.name)
        a.end_kernel(s.name, s.VACC + s.NACC, s.aM + 64, 96)
        a.launch(s.name, 256, 256, s.R * s.STB + 4096)
```

```python
from common import *
import math

def allreduce64(a, v, t):
    for sh in (8, 4, 2, 1):
        a("s_nop 1")
        a("v_add_f32_dpp v%d, v%d, v%d row_ror:%d row_mask:0xf bank_mask:0xf" % (v, v, v, sh))
    reduce_g4(a, v, t)

def gen_k1(a, stamp=None, prefetch=True):
    name = "k1_kernel"
    ZROW = 4608
    LX = 16 * ZROW
    LX0 = LX + 8 * 2048
    LDS = LX0 + 64
    sWave, sT = 24, 31
    sX, sV, sVM, sXM, sWs, sWF = 8, 12, 16, 20, 44, 48
    vRaw, vF, vWr, vWi, vWn, vTr, vTi, vXop, vD, vU = 4, 16, 32, 40, 48, 56, 72, 88, 96, 128
    vT = 144
    a.begin_kernel(name)
    a("s_cmp_ge_u32 s2, 256")
    a("s_cbranch_scc1 %s_end" % name)
    if stamp is not None: stamp_begin(a)
    a("s_load_dwordx2 s[36:37], s[0:1], 0")
    a("s_load_dwordx4 s[52:55], s[0:1], 8")
    a("s_load_dwordx2 s[40:41], s[0:1], 88")
    a("v_lshrrev_b32 v1, 6, v0")
    a("v_mov_b32 v3, v0")
    a("v_and_b32 v0, 63, v0")
    a("v_readfirstlane_b32 s%d, v1" % sWave)
    a("v_lshlrev_b32 v1, 4, v0")
    a("s_lshl_b32 s25, s%d, 8" % sWave)
    a("s_add_u32 s25, s25, s2")
    a("s_lshl_b32 s26, s25, 11")
    a("s_lshl_b32 s27, s2, 3")
    a("s_add_u32 s27, s27, s%d" % sWave)
    a("s_lshr_b32 s28, s27, 4")
    a("s_lshl_b32 s28, s28, 4")
    a("v_and_b32 v2, 15, v0")
    a("v_add_u32 v%d, s28, v2" % vT)
    a("v_lshrrev_b32 v%d, 8, v%d" % (vT + 1, vT))
    a("v_and_b32 v%d, 255, v%d" % (vT, vT))
    a("v_lshl_add_u32 v%d, v%d, 3, v%d" % (vT, vT, vT + 1))
    a("v_lshlrev_b32 v%d, 12, v%d" % (vT, vT))
    a("v_lshrrev_b32 v%d, 4, v0" % (vT + 1))
    a("v_lshl_add_u32 v%d, v%d, 3, v%d" % (vT, vT + 1, vT))
    a("s_and_b32 s28, s27, 7")
    a("s_lshl_b32 s28, s28, 6")
    a("s_waitcnt lgkmcnt(0)")
    srd_off(a, sX, 36, 0, 2048 * 2048)
    a("buffer_load_dwordx4 v[%d:%d], v1, s[%d:%d], s26 offen" % (vRaw, vRaw + 3, sX, sX + 3))
    a("buffer_load_dwordx4 v[%d:%d], v1, s[%d:%d], s26 offen offset:1024" % (vRaw + 4, vRaw + 7, sX, sX + 3))
    a("s_bitcmp1_b32 s27, 3")
    a("s_cselect_b32 s%d, s54, s52" % sWs)
    a("s_cselect_b32 s%d, s55, s53" % (sWs + 1))
    a("s_and_b32 s%d, s%d, 0xffff" % (sWs + 1, sWs + 1))
    a("s_mov_b32 s%d, %d" % (sWs + 2, 2048 * 4096))
    a("s_mov_b32 s%d, 0x00020000" % (sWs + 3))
    a("buffer_load_dwordx2 v[12:13], v%d, s[%d:%d], s28 offen" % (vT, sWs, sWs + 3))
    a("buffer_load_dwordx2 v[14:15], v%d, s[%d:%d], s28 offen offset:32" % (vT, sWs, sWs + 3))
    srd_off(a, sV, 40, WS_V, 8 * MB)
    srd_off(a, sVM, 40, WS_VM, 8192)
    srd_off(a, sXM, 40, WS_XM, 8192)
    srd_off(a, sWF, 40, WS_WSF, 2 * MB)
    a("v_cvt_f32_u32 v%d, v2" % (vT + 2))
    a("v_lshlrev_b32 v%d, 2, v%d" % (vT + 1, vT + 1))
    a("v_cvt_f32_u32 v%d, v%d" % (vT + 3, vT + 1))
    for blk in range(2):
        a("v_add_f32 v%d, 0x%x, v%d" % (vT + 4, f2u(16.0 * blk), vT + 2))
        a("v_mul_f32 v%d, 0x%x, v%d" % (vT + 5, f2u(1.0 / 1024), vT + 4))
        a("v_mul_f32 v%d, 0x%x, v%d" % (vT + 4, f2u(1.0 / 32), vT + 4))
        for half in range(2):
            for rp in range(2):
                for q in range(2):
                    r = 2 * rp + q
                    a("v_add_f32 v%d, 0x%x, v%d" % (vT + 6, f2u(16.0 * half + r), vT + 3))
                    a("v_mul_f32 v%d, v%d, v%d" % (vT + 7, vT + 6, vT + 4))
                    a("v_mul_f32 v%d, v%d, v%d" % (vT + 6, vT + 6, vT + 5))
                    a("v_fract_f32 v%d, v%d" % (vT + 7, vT + 7))
                    a("v_cos_f32 v%d, v%d" % (vT + 8 + q, vT + 7))
                    a("v_sin_f32 v%d, v%d" % (vT + 10 + q, vT + 7))
                    a("v_cos_f32 v%d, v%d" % (vTr + (half * 2 + blk) * 4 + r, vT + 6))
                    a("v_sin_f32 v%d, v%d" % (vTi + (half * 2 + blk) * 4 + r, vT + 6))
                d = blk * 4 + half * 2 + rp
                a("v_cvt_pk_f16_f32 v%d, v%d, v%d" % (vWr + d, vT + 8, vT + 9))
                a("v_cvt_pk_f16_f32 v%d, v%d, v%d" % (vWn + d, vT + 10, vT + 11))
                a("v_xor_b32 v%d, 0x80008000, v%d" % (vWi + d, vWn + d))
    a("s_lshl_b32 s29, s%d, 11" % sWave)
    a("s_add_u32 s29, s29, %d" % LX)
    a("v_add_u32 v%d, s29, v1" % (vT + 12))
    a("v_lshrrev_b32 v%d, 2, v0" % (vT + 13))
    a("v_lshlrev_b32 v%d, 6, v%d" % (vT + 13, vT + 13))
    a("v_and_b32 v%d, 3, v0" % (vT + 14))
    a("v_lshl_add_u32 v%d, v%d, 3, v%d" % (vT + 13, vT + 14, vT + 13))
    a("v_add_u32 v%d, s29, v%d" % (vT + 13, vT + 13))
    a("v_mul_u32_u24 v%d, 144, v2" % (vT + 14))
    a("v_lshl_add_u32 v%d, v%d, 2, v%d" % (vT + 14, vT + 1, vT + 14))
    a("s_mul_i32 s30, s%d, %d" % (sWave, 2 * ZROW))
    a("v_add_u32 v%d, s30, v%d" % (vT + 14, vT + 14))
    if stamp is not None: stamp_mid(a, 3)
    a("s_waitcnt vmcnt(2)")
    for k in range(8):
        a("v_lshlrev_b32 v%d, 16, v%d" % (vF + 2 * k, vRaw + k))
        a("v_and_b32 v%d, 0xffff0000, v%d" % (vF + 2 * k + 1, vRaw + k))
    s0 = vT
    a("v_add_f32 v%d, v%d, v%d" % (s0, vF, vF + 1))
    a("v_add_f32 v%d, v%d, v%d" % (s0 + 1, vF + 2, vF + 3))
    for k in range(4, 16, 2):
        a("v_add_f32 v%d, v%d, v%d" % (s0, s0, vF + k))
        a("v_add_f32 v%d, v%d, v%d" % (s0 + 1, s0 + 1, vF + k + 1))
    a("v_add_f32 v%d, v%d, v%d" % (s0, s0, s0 + 1))
    allreduce64(a, s0, s0 + 1)
    a("v_mul_f32 v%d, 0x%x, v%d" % (s0, f2u(1.0 / 1024), s0))
    for k in range(16):
        a("v_sub_f32 v%d, v%d, v%d" % (vF + k, vF + k, s0))
    a("v_mul_f32 v%d, v%d, v%d" % (s0 + 2, vF, vF))
    a("v_mul_f32 v%d, v%d, v%d" % (s0 + 3, vF + 1, vF + 1))
    for k in range(2, 16, 2):
        a("v_fmac_f32 v%d, v%d, v%d" % (s0 + 2, vF + k, vF + k))
        a("v_fmac_f32 v%d, v%d, v%d" % (s0 + 3, vF + k + 1, vF + k + 1))
    a("v_add_f32 v%d, v%d, v%d" % (s0 + 2, s0 + 2, s0 + 3))
    allreduce64(a, s0 + 2, s0 + 3)
    a("v_mov_b32 v%d, 0x%x" % (s0 + 3, f2u(1e-5)))
    a("v_fmac_f32 v%d, 0x%x, v%d" % (s0 + 3, f2u(1.0 / 1024), s0 + 2))
    a("v_rsq_f32 v%d, v%d" % (s0 + 3, s0 + 3))
    a("s_and_b32 s%d, s25, 7" % sT)
    a("s_lshl_b32 s%d, s%d, 8" % (sT, sT))
    a("s_lshr_b32 s30, s25, 3")
    a("s_add_u32 s30, s30, s%d" % sT)
    a("s_lshl_b32 s30, s30, 2")
    a("v_mov_b32 v%d, 0" % (s0 + 4))
    a("buffer_store_dword v%d, v%d, s[%d:%d], s30 offen" % (s0, s0 + 4, sXM, sXM + 3))
    for k in range(16):
        a("v_mul_f32 v%d, v%d, v%d" % (vF + k, vF + k, s0 + 3))
    for k in range(8):
        a("v_cvt_pk_f16_f32 v%d, v%d, v%d" % (vRaw + k, vF + 2 * k, vF + 2 * k + 1))
    a("ds_write_b128 v%d, v[%d:%d]" % (vT + 12, vRaw, vRaw + 3))
    a("ds_write_b128 v%d, v[%d:%d] offset:1024" % (vT + 12, vRaw + 4, vRaw + 7))
    a("v_readfirstlane_b32 s30, v%d" % vF)
    a("s_lshl_b32 s%d, s%d, 2" % (sT, sWave))
    a("s_add_u32 s%d, s%d, %d" % (sT, sT, LX0))
    a("v_mov_b32 v%d, s%d" % (s0 + 5, sT))
    a("v_mov_b32 v%d, s30" % (s0 + 6))
    a("ds_write_b32 v%d, v%d" % (s0 + 5, s0 + 6))
    a("s_waitcnt vmcnt(1)")
    a("s_lshl_b32 s27, s27, 10")
    a("buffer_store_dwordx4 v[12:15], v1, s[%d:%d], s27 offen" % (sWF, sWF + 3))
    a("s_waitcnt lgkmcnt(0)")
    for ib in range(2):
        for h in range(2):
            a("ds_read_b64_tr_b16 v[%d:%d], v%d offset:%d" % (vXop + ib * 4 + 2 * h, vXop + ib * 4 + 2 * h + 1, vT + 13, h * 1024 + ib * 32))
    if stamp is not None: stamp_mid(a, 0)
    a("s_waitcnt lgkmcnt(0)")
    D1 = lambda ib, jb, p: vD + ((ib * 2 + jb) * 2 + p) * 4
    for ib in range(2):
        for jb in range(2):
            for p in range(2):
                w = (vWr if p == 0 else vWi) + jb * 4
                a("v_mfma_f32_16x16x32_f16 v[%d:%d], v[%d:%d], v[%d:%d], 0" % (D1(ib, jb, p), D1(ib, jb, p) + 3, vXop + ib * 4, vXop + ib * 4 + 3, w, w + 3))
    a("s_nop 7")
    for ib in range(2):
        for jb in range(2):
            for r in range(4):
                ur, ui = D1(ib, jb, 0) + r, D1(ib, jb, 1) + r
                c, s_ = vTr + (ib * 2 + jb) * 4 + r, vTi + (ib * 2 + jb) * 4 + r
                a("v_mul_f32 v%d, v%d, v%d" % (vT + r, ur, c))
                a("v_mul_f32 v%d, v%d, v%d" % (vT + 4 + r, ui, c))
                a("v_fmac_f32 v%d, v%d, v%d" % (vT + r, ui, s_))
                a("v_fma_f32 v%d, -v%d, v%d, v%d" % (vT + 4 + r, ur, s_, vT + 4 + r))
            for p in range(2):
                u = vU + (jb * 2 + p) * 4 + ib * 2
                a("v_cvt_pk_f16_f32 v%d, v%d, v%d" % (u, vT + 4 * p, vT + 4 * p + 1))
                a("v_cvt_pk_f16_f32 v%d, v%d, v%d" % (u + 1, vT + 4 * p + 2, vT + 4 * p + 3))
    a("s_nop 1")
    D2 = lambda jb, fb, p: vD + ((jb * 2 + fb) * 2 + p) * 4
    U_ = lambda jb, p: vU + (jb * 2 + p) * 4
    for jb in range(2):
        for fb in range(2):
            d = D2(jb, fb, 0)
            a("v_mfma_f32_16x16x32_f16 v[%d:%d], v[%d:%d], v[%d:%d], 0" % (d, d + 3, U_(jb, 0), U_(jb, 0) + 3, vWr + fb * 4, vWr + fb * 4 + 3))
            a("v_mfma_f32_16x16x32_f16 v[%d:%d], v[%d:%d], v[%d:%d], v[%d:%d]" % (d, d + 3, U_(jb, 1), U_(jb, 1) + 3, vWn + fb * 4, vWn + fb * 4 + 3, d, d + 3))
            d = D2(jb, fb, 1)
            a("v_mfma_f32_16x16x32_f16 v[%d:%d], v[%d:%d], v[%d:%d], 0" % (d, d + 3, U_(jb, 0), U_(jb, 0) + 3, vWi + fb * 4, vWi + fb * 4 + 3))
            a("v_mfma_f32_16x16x32_f16 v[%d:%d], v[%d:%d], v[%d:%d], v[%d:%d]" % (d, d + 3, U_(jb, 1), U_(jb, 1) + 3, vWr + fb * 4, vWr + fb * 4 + 3, d, d + 3))
    a("s_nop 7")
    for jb in range(2):
        for fb in range(2):
            for p in range(2):
                d = D2(jb, fb, p)
                a("ds_write_b128 v%d, v[%d:%d] offset:%d" % (vT + 14, d, d + 3, fb * 16 * 144 + jb * 64 + p * ZROW))
    a("v_and_b32 v3, 255, v3")
    a("v_lshrrev_b32 v%d, 3, v3" % vT)
    a("v_add_u32 v%d, v3, v%d" % (vT, vT))
    a("v_lshlrev_b32 v%d, 4, v%d" % (vT, vT))
    a("v_add_u32 v%d, %d, v%d" % (vT + 1, 8 * ZROW, vT))
    a("v_lshrrev_b32 v%d, 4, v3" % (vT + 2))
    a("v_lshlrev_b32 v%d, 16, v%d" % (vT + 2, vT + 2))
    a("v_and_b32 v%d, 15, v3" % (vT + 3))
    a("v_lshl_add_u32 v%d, v%d, 3, v%d" % (vT + 2, vT + 3, vT + 2))
    a("s_and_b32 s26, s2, 0xc0")
    a("s_and_b32 s%d, s2, 7" % sT)
    a("s_lshl_b32 s%d, s%d, 3" % (sT, sT))
    a("s_add_u32 s26, s26, s%d" % sT)
    a("s_bfe_u32 s%d, s2, 0x30003" % sT)
    a("s_add_u32 s26, s26, s%d" % sT)
    a("s_lshl_b32 s26, s26, 7")
    a("s_waitcnt lgkmcnt(0)")
    a("s_barrier")
    if stamp is not None: stamp_mid(a, 1)
    Z = lambda k, p: 16 + (k * 2 + p) * 4
    for k in (0, 4, 1, 5, 2, 6, 3, 7):
        for p in range(2):
            base, off = (vT, (2 * k + p) * ZROW) if k < 4 else (vT + 1, (2 * (k - 4) + p) * ZROW)
            a("ds_read_b128 v[%d:%d], v%d offset:%d" % (Z(k, p), Z(k, p) + 3, base, off))
    a("s_cmp_ge_u32 s%d, 4" % sWave)
    a("s_cbranch_scc1 %s_odd" % name)
    B = lambda k, p: Z(k, p)
    O = 80
    def dft4_store(t1_of_m):
        P = lambda k, p: Z(4 + k, p)
        for r in range(4):
            for p in range(2):
                a("v_add_f32 v%d, v%d, v%d" % (P(0, p) + r, B(0, p) + r, B(2, p) + r))
                a("v_sub_f32 v%d, v%d, v%d" % (P(1, p) + r, B(0, p) + r, B(2, p) + r))
                a("v_add_f32 v%d, v%d, v%d" % (P(2, p) + r, B(1, p) + r, B(3, p) + r))
                a("v_sub_f32 v%d, v%d, v%d" % (P(3, p) + r, B(1, p) + r, B(3, p) + r))
        X = lambda m, p: O + (m * 2 + p) * 4
        for m in range(4):
            for r in range(4):
                if m == 0:
                    a("v_add_f32 v%d, v%d, v%d" % (X(0, 0) + r, P(0, 0) + r, P(2, 0) + r))
                    a("v_sub_f32 v%d, -v%d, v%d" % (X(0, 1) + r, P(0, 1) + r, P(2, 1) + r))
                elif m == 2:
                    a("v_sub_f32 v%d, v%d, v%d" % (X(2, 0) + r, P(0, 0) + r, P(2, 0) + r))
                    a("v_sub_f32 v%d, v%d, v%d" % (X(2, 1) + r, P(2, 1) + r, P(0, 1) + r))
                elif m == 1:
                    a("v_add_f32 v%d, v%d, v%d" % (X(1, 0) + r, P(1, 0) + r, P(3, 1) + r))
                    a("v_sub_f32 v%d, v%d, v%d" % (X(1, 1) + r, P(3, 0) + r, P(1, 1) + r))
                else:
                    a("v_sub_f32 v%d, v%d, v%d" % (X(3, 0) + r, P(1, 0) + r, P(3, 1) + r))
                    a("v_sub_f32 v%d, -v%d, v%d" % (X(3, 1) + r, P(1, 1) + r, P(3, 0) + r))
            for p in range(2):
                o = 112 + (m * 2 + p) * 2
                a("v_cvt_pk_bf16_f32 v%d, v%d, v%d" % (o, X(m, p), X(m, p) + 1))
                a("v_cvt_pk_bf16_f32 v%d, v%d, v%d" % (o + 1, X(m, p) + 2, X(m, p) + 3))
                a("s_add_u32 s30, s26, 0x%x" % (t1_of_m(m) * MB + p * 256 * 128))
                a("buffer_store_dwordx2 v[%d:%d], v%d, s[%d:%d], s30 offen" % (o, o + 1, vT + 2, sV, sV + 3))
    for k in range(4):
        a("s_waitcnt lgkmcnt(%d)" % (12 - 4 * k))
        for p in range(2):
            for r in range(4):
                a("v_add_f32 v%d, v%d, v%d" % (B(k, p) + r, Z(k, p) + r, Z(k + 4, p) + r))
    dft4_store(lambda m: 2 * m)
    a("s_cmp_lg_u32 s%d, 0" % sWave)
    a("s_cbranch_scc1 %s_done" % name)
    a("v_mov_b32 v16, %d" % LX0)
    a("ds_read_b128 v[20:23], v16")
    a("ds_read_b128 v[24:27], v16 offset:16")
    a("v_and_b32 v17, 7, v0")
    a("v_cvt_f32_u32 v18, v17")
    a("v_mul_f32 v18, 0.125, v18" .replace("0.125", "0x%x" % f2u(0.125)))
    a("v_bfe_u32 v19, v0, 3, 1")
    a("v_cvt_f32_u32 v28, v19")
    a("v_mul_f32 v28, 0x%x, v28" % f2u(-0.25))
    a("v_mov_b32 v29, 0")
    a("s_waitcnt lgkmcnt(0)")
    for k in range(8):
        a("v_fma_f32 v30, v18, %s, v28" % (["0", "1.0", "2.0"][k] if k < 3 else ("4.0" if k == 4 else "v31")) if k in (0, 1, 2, 4) else
          "v_mov_b32 v31, 0x%x\nv_fma_f32 v30, v18, v31, v28" % f2u(float(k)))
        a("v_fract_f32 v30, v30")
        a("v_cos_f32 v30, v30")
        a("s_nop 0")
        a("v_fmac_f32 v29, v30, v%d" % (20 + k))
    a("v_cvt_pk_bf16_f32 v29, v29, v29")
    a("s_lshr_b32 s26, s2, 5")
    a("s_lshl_b32 s26, s26, 6")
    a("s_bfe_u32 s%d, s2, 0x20002" % sT)
    a("s_lshl_b32 s%d, s%d, 4" % (sT, sT))
    a("s_add_u32 s26, s26, s%d" % sT)
    a("s_bfe_u32 s%d, s2, 0x10004" % sT)
    a("s_lshl_b32 s%d, s%d, 3" % (sT, sT))
    a("s_add_u32 s26, s26, s%d" % sT)
    a("s_and_b32 s%d, s2, 3" % sT)
    a("s_lshl_b32 s%d, s%d, 1" % (sT, sT))
    a("s_add_u32 s26, s26, s%d" % sT)
    a("v_lshlrev_b32 v17, 10, v17")
    a("v_lshl_add_u32 v17, v19, 9, v17")
    a("buffer_store_short v29, v17, s[%d:%d], s26 offen" % (sVM, sVM + 3))
    a("s_branch %s_done" % name)
    a.label("%s_odd" % name)
    isq = f2u(math.sqrt(0.5))
    a("s_mov_b32 s29, 0x%x" % isq)
    for k in range(4):
        a("s_waitcnt lgkmcnt(%d)" % (12 - 4 * k))
        for r in range(4):
            dr, di = Z(k + 4, 0) + r, Z(k + 4, 1) + r
            if k == 0:
                a("v_sub_f32 v%d, v%d, v%d" % (B(0, 0) + r, Z(0, 0) + r, dr))
                a("v_sub_f32 v%d, v%d, v%d" % (B(0, 1) + r, Z(0, 1) + r, di))
            elif k == 2:
                a("v_sub_f32 v%d, v%d, v%d" % (dr, Z(2, 0) + r, dr))
                a("v_sub_f32 v%d, v%d, v%d" % (B(2, 0) + r, Z(2, 1) + r, di))
                a("v_sub_f32 v%d, 0, v%d" % (B(2, 1) + r, dr))
            else:
                a("v_sub_f32 v%d, v%d, v%d" % (dr, Z(k, 0) + r, dr))
                a("v_sub_f32 v%d, v%d, v%d" % (di, Z(k, 1) + r, di))
                a("v_mul_f32 v%d, s29, v%d" % (dr, dr))
                a("v_mul_f32 v%d, s29, v%d" % (di, di))
                if k == 1:
                    a("v_add_f32 v%d, v%d, v%d" % (B(1, 0) + r, dr, di))
                    a("v_sub_f32 v%d, v%d, v%d" % (B(1, 1) + r, di, dr))
                else:
                    a("v_sub_f32 v%d, v%d, v%d" % (B(3, 0) + r, di, dr))
                    a("v_sub_f32 v%d, -v%d, v%d" % (B(3, 1) + r, dr, di))
    dft4_store(lambda m: 2 * m + 1)
    a.label("%s_done" % name)
    if stamp is not None:
        stamp_mid(a, 2); stamp_end(a, 40, stamp, sWave)
    a.label("%s_end" % name)
    a.end_kernel(name, 160, 0, 96)
    a.launch(name, 256, 512, LDS)
```

```python
class Stream:
    def __init__(self):
        self.items = []
    def i(self, t):
        for l in t.strip("\n").split("\n"):
            self.items.append(('i', l.strip()))
    def vm(self, t, tag=None): self.items.append(('vm', t, tag))
    def ds(self, t, tag=None): self.items.append(('ds', t, tag))
    def wv(self, key, tags): self.items.append(('wv', key, list(tags)))
    def wl(self, key, tags): self.items.append(('wl', key, list(tags)))
    def label(self, l): self.items.append(('label', l))

def resolve(dyn_streams):
    res = {}
    vm, ds = [], []
    vpos, dpos = {}, {}
    vdone, ddone = 0, 0
    for s in dyn_streams:
        for it in s.items:
            k = it[0]
            if k == 'vm':
                vm.append(it[2]);
                if it[2] is not None: vpos[it[2]] = len(vm) - 1
            elif k == 'ds':
                ds.append(it[2])
                if it[2] is not None: dpos[it[2]] = len(ds) - 1
            elif k == 'wv':
                need = [vpos[t] for t in it[2] if t in vpos]
                miss = [t for t in it[2] if t not in vpos]
                assert not miss, ("missing vm tags", it[1], miss)
                n = len(vm) - 1 - max(need) if need else 63
                res[it[1]] = min(res.get(it[1], 63), n)
            elif k == 'wl':
                need = [dpos[t] for t in it[2] if t in dpos]
                miss = [t for t in it[2] if t not in dpos]
                assert not miss, ("missing ds tags", it[1], miss)
                n = len(ds) - 1 - max(need) if need else 15
                res[it[1]] = min(res.get(it[1], 15), n)
    return res

def emit(a, s, res, skip=()):
    for it in s.items:
        k = it[0]
        if k == 'i':
            if 'bar' in skip and it[1] == 's_barrier': continue
            if 'mfma' in skip and it[1].startswith('v_mfma'): continue
            a(it[1])
        elif k in ('vm', 'ds'):
            if it[2] is not None and it[2][0] in skip: continue
            a(it[1])
        elif k == 'label': a.label(it[1])
        elif k == 'wv': a("s_waitcnt vmcnt(%d)" % min(res[it[1]], 63))
        elif k == 'wl': a("s_waitcnt lgkmcnt(%d)" % min(res[it[1]], 15))

def same_text(s1, s2):
    f = lambda s: [(it[0], it[1]) for it in s.items]
    return f(s1) == f(s2)
```

```python
import sys
from common import *
from gemm import *
from k1 import gen_k1
HEADER = """pre-LN FNet mixing + pre-LN SwiGLU FFN, gfx950. 4 launches:
k1: LayerNorm(x) + 1024-pt DFT along hidden (2-stage 32x32 MFMA factorisation) + radix-8 step of the sequence DFT
k2: remaining 256-pt part of the sequence DFT as GEMM with the input DFT matrices, residual, row-centering, row sum-of-squares
g3: gate/up GEMM + SiLU*up (LayerNorm scale folded in)
g4: down GEMM + residual"""
def build(stamp=False, c3={}, c4={}, c2={}, c1={}):
    a = Asm()
    gen_k1(a, stamp=0 if stamp else None, **c1)
    K2(stamp=1 if stamp else None, **c2).gen(a)
    G3(stamp=2 if stamp else None, **c3).gen(a)
    G4(stamp=3 if stamp else None, **c4).gen(a)
    return a.text(HEADER)
if __name__ == "__main__":
    out = sys.argv[1] if len(sys.argv) > 1 else "sequential_preLN__spectral_fnet__swiglu_ffn__prompt.s"
    open(out, "w").write(build())
```

```python
from asmlib import *
from sched import *
import struct

MB = 1 << 20
WS_V = 0
WS_VM = 8 * MB
WS_XM = 9 * MB
WS_WSF = 10 * MB
WS_HC = 16 * MB
WS_MT = 20 * MB
WS_SS = 21 * MB
WS_ACT = 32 * MB
WS_STAMP = 200 * MB
LOG2E = 1.4426950408889634

def f2u(x):
    return struct.unpack("<I", struct.pack("<f", x))[0]

def srd_off(a, d, base, off, nbytes):
    if off:
        a("s_add_u32 s%d, s%d, 0x%x" % (d, base, off))
        a("s_addc_u32 s%d, s%d, 0" % (d + 1, base + 1))
        a("s_and_b32 s%d, s%d, 0xffff" % (d + 1, d + 1))
    else:
        a("s_mov_b32 s%d, s%d" % (d, base))
        a("s_and_b32 s%d, s%d, 0xffff" % (d + 1, base + 1))
    a("s_mov_b32 s%d, 0x%x" % (d + 2, nbytes))
    a("s_mov_b32 s%d, 0x00020000" % (d + 3))

SB = 72
NMID = 11
def stamp_begin(a, sb=SB):
    a("s_memtime s[%d:%d]" % (sb, sb + 1))
    a("s_memrealtime s[%d:%d]" % (sb + 2, sb + 3))
    for k in range(NMID): a("s_mov_b64 s[%d:%d], 0" % (sb + 8 + 2 * k, sb + 9 + 2 * k))
def stamp_mid(a, k=0, sb=SB):
    a("s_memtime s[%d:%d]" % (sb + 8 + 2 * k, sb + 9 + 2 * k))
def stamp_end(a, sws, slot, swave, sb=SB):
    a("s_waitcnt vmcnt(0) lgkmcnt(0)")
    a("s_memtime s[%d:%d]" % (sb + 4, sb + 5))
    a("s_memrealtime s[%d:%d]" % (sb + 6, sb + 7))
    a("s_waitcnt lgkmcnt(0)")
    srd_off(a, 8, sws, WS_STAMP + slot * MB, MB)
    a("s_lshl_b32 s12, s2, 4")
    a("s_add_u32 s12, s12, s%d" % swave)
    a("s_lshl_b32 s12, s12, 7")
    a("s_mov_b64 exec, -1")
    for k in range(30):
        a("v_mov_b32 v%d, s%d" % (2 + k, sb + k))
    a("v_mov_b32 v1, 0")
    a("v_cmp_eq_u32 vcc, 0, v0")
    a("s_and_saveexec_b64 s[14:15], vcc")
    for k in range(0, 30, 2):
        a("buffer_store_dwordx2 v[%d:%d], v1, s[8:11], s12 offen offset:%d" % (2 + k, 3 + k, 4 * k))

import os
DETAIL = bool(os.environ.get('DETAIL'))
def read_stamps(c, nw, slot=0, nwg=256):
    import numpy as np
    st = c.read(c.ws, np.uint32, nwg * 16 * 32, WS_STAMP + slot * MB).reshape(nwg, 16, 32)[:, :nw, :].astype(np.uint64)
    q = lambda k: (st[..., k] + (st[..., k + 1] << np.uint64(32))).astype(np.int64)
    t0, r0, t1, r1 = q(0), q(2), q(4), q(6)
    mids = [int(np.median(q(8 + 2 * k) - t0)) if q(8 + 2 * k).max() > 0 else 0 for k in range(NMID)]
    txt = "span %.2f us (spread %.2f); cyc total %d mids %s; rt %.2f us clk %.2f" % (
        (r1.max() - r0.min()) / 100.0, (r0.max() - r0.min()) / 100.0, np.median(t1 - t0), mids, np.median(r1 - r0) / 100.0,
        np.median(t1 - t0) / (np.median(r1 - r0) * 10.0))
    if DETAIL:
        for x in range(8):
            txt += "\n          xcd%d: cyc med %d max %d  rt med %.2f max %.2f end(max) %.2f" % (x, np.median((t1 - t0)[x::8]), (t1 - t0)[x::8].max(), np.median((r1 - r0)[x::8]) / 100., (r1 - r0)[x::8].max() / 100., (r1[x::8].max() - r0.min()) / 100.)
    return txt, int(r0.min()), int(r1.max())

def reduce_g4(s, b, t):
    s("v_mov_b32 v%d, v%d" % (t, b))
    s("s_nop 1")
    s("v_permlane32_swap_b32 v%d, v%d" % (b, t))
    s("v_add_f32 v%d, v%d, v%d" % (b, b, t))
    s("v_mov_b32 v%d, v%d" % (t, b))
    s("s_nop 1")
    s("v_permlane16_swap_b32 v%d, v%d" % (b, t))
    s("v_add_f32 v%d, v%d, v%d" % (b, b, t))

def self_code_touch(a, name, endlabel, vaddr, vdst, s0, nwaves_log2):
    a("s_getpc_b64 s[%d:%d]" % (s0, s0 + 1))
    a.label("%s_pc" % name)
    a("v_lshrrev_b32 v%d, 6, v0" % vdst)
    a("s_lshr_b32 s%d, s2, 3" % (s0 + 2))
    a("s_lshl_b32 s%d, s%d, %d" % (s0 + 2, s0 + 2, nwaves_log2))
    a("v_add_u32 v%d, s%d, v%d" % (vdst, s0 + 2, vdst))
    a("v_and_b32 v%d, 15, v%d" % (vdst, vdst))
    a("v_lshlrev_b32 v%d, 12, v%d" % (vdst, vdst))
    a("v_and_b32 v%d, 63, v0" % vaddr)
    a("v_lshl_add_u32 v%d, v%d, 6, v%d" % (vaddr, vaddr, vdst))
    a("v_min_u32 v%d, ((%s - %s_pc) / 4) * 4 - 4, v%d" % (vaddr, endlabel, name, vaddr))
    a("global_load_dword v%d, v%d, s[%d:%d]" % (vdst, vaddr, s0, s0 + 1))
```

```python
from common import *

class Gemm2:
    def __init__(s, name, NRB, NF, SUB, NST, STB, R, AR, PD, ndma, VACC, stamp=None, skip=(), npro=0, rate=1, st_flags="", LA=None, selfpf=True):
        s.name, s.NRB, s.NF, s.SUB, s.NST, s.STB, s.R, s.AR, s.PD, s.ndma, s.VACC = name, NRB, NF, SUB, NST, STB, R, AR, PD, ndma, VACC
        s.stamp, s.skip, s.npro, s.rate, s.st_flags = stamp, skip, npro, rate, st_flags
        s.LA = LA
        s.selfpf = selfpf
        s.vJunk = 31
        s.dt = 'bf16'
        s.vCode, s.sCode, s.retouch = 28, 4, ()
        s.xbar_after = ()
        s.NB = PD + 1
        s.NACC = NF * NRB * 4
        s.vA = [2 + i for i in range(NRB)]
        s.vD = [6 + i for i in range(ndma)]
        s.spb = 65536 // STB
        s.nbase = -(-R // s.spb)
        s.vB = [13 + k for k in range(s.nbase)]
        assert s.nbase <= 3
        s.aBbase = AR * SUB * NRB * 4
        s.aX = s.aBbase + s.NB * 4
        s.sA, s.sW, s.sO, s.sS = 8, 12, 16, 20
        s.sWave, s.sDoff, s.sAoff, s.sLdsW, s.sT = 24, 25, 26, 28, 31
        s.vpm = 2
    def acc(s, j, i): return s.VACC + (j * s.NRB + i) * 4
    def aA(s, q, i): return ((q % (s.AR * s.SUB)) * s.NRB + i) * 4
    def unit_order(s): return [(st, sub, j) for st in range(s.NST) for sub in range(s.SUB) for j in range(s.NF)]
    def extra_unit(s, p, q): pass
    def post_sync0(s, p): pass
    def is_late(s, st, n): return False
    def late_steps(s, units): return {}
    def valu_ready(s, units): return {}
    def extra_vm(s): return []
    def dma_ops(s, st):
        ops = []
        for n in range(s.ndma):
            pre, t = s.dma_text(st, n)
            ops.append([pre, t, ("D", st, n), []])
        if st + 1 < s.NST and s.dma_step(st) is not None:
            ops[-1][3] = ["s_add_u32 s%d, s%d, %d" % (s.sDoff, s.sDoff, s.dma_step(st))]
        return ops
    def a_ops(s, q):
        ops = []
        for i in range(s.NRB):
            r = s.aA(q, i)
            t = "buffer_load_dwordx4 a[%d:%d], v%d, s[%d:%d], s%d offen offset:%d" % (r, r + 3, s.vA[i], s.sA, s.sA + 3, s.sAoff, (q % 4) * 1024)
            ops.append([[], t, ("A", q, i), []])
        if q % 4 == 3:
            ops[-1][3] = ["s_add_u32 s%d, s%d, 4096" % (s.sAoff, s.sAoff)]
        return ops
    def put(s, p, op):
        pre, t, tag, post = op
        for x in pre: p.i(x)
        if pre: p.i("s_nop 0")
        p.vm(t, tag)
        for x in post: p.i(x)
    def base_setup(s, a):
        for k in range(1, s.nbase):
            a("v_add_u32 v%d, %d, v%d" % (s.vB[k], k * s.spb * s.STB, s.vB[0]))
    def emit_main(s, a, early, late):
        units = s.unit_order()
        N = len(units)
        PD = s.PD
        first_st, last_st, first_q, last_q = {}, {}, {}, {}
        for n, (st, sub, j) in enumerate(units):
            q = st * s.SUB + sub
            first_st.setdefault(st, n); last_st[st] = n
            first_q.setdefault(q, n); last_q[q] = n
        sync_step = {st: first_st[st] - PD for st in range(s.NST)}
        sync_at = {}
        for st, n in sync_step.items(): sync_at.setdefault(n, []).append(st)
        xbar = [last_st[st] + 1 for st in s.xbar_after]
        bsteps = sorted(list(sync_step.values()) + xbar)
        qd, qa, qd2 = [], [], []
        late_steps = {st: n - PD for st, n in s.late_steps(units).items()}
        late_at = {}
        for st, n in late_steps.items(): late_at.setdefault(n, []).append(st)
        for st in range(s.NST):
            if st < s.R: e = -10**9
            else:
                L = last_st[st - s.R]
                c = [b for b in bsteps if b > L]
                e = c[0]
                assert e < sync_step[st], ("dma cannot be issued before its sync", st)
            if s.LA is not None: e = max(e, sync_step[st] - s.LA)
            for op in s.dma_ops(st):
                late_ = s.is_late(st, op[2][2])
                (qd2 if late_ else qd).append((e, late_steps[st] if late_ else sync_step[st], op))
        qd += qd2
        nq = s.NST * s.SUB
        for q in range(nq):
            e = -10**9 if q < s.AR * s.SUB else last_q[q - s.AR * s.SUB] + 1
            assert e <= first_q[q], ("A ring too small", q)
            if s.LA is not None: e = max(e, first_q[q] - s.LA)
            for op in s.a_ops(q): qa.append((e, first_q[q], op))
        qx = list(s.extra_vm())
        if s.selfpf:
            for k, n in enumerate(s.retouch):
                qx.append((n, n, [[], "global_load_dword v%d, v%d, s[%d:%d]" % (s.vJunk, s.vCode, s.sCode, s.sCode + 1), ("C", k), []]))
        qx = sorted(qx, key=lambda x: x[0])
        def next_vm(step):
            c = []
            for qq in (qd, qa, qx):
                if qq and qq[0][0] <= step: c.append((qq[0][1], id(qq), qq))
            if not c: return None
            c.sort(key=lambda x: x[0])
            return c[0][2].pop(0)[2]
        p = Stream()
        p.i("s_mov_b32 s%d, 0" % s.sAoff)
        early(p)
        while (qd and qd[0][1] < 0) or (qa and qa[0][1] <= 0):
            s.put(p, next_vm(-1))
        for _ in range(s.npro):
            op = next_vm(-1)
            if op: s.put(p, op)
        late(p)
        def sync(st):
            p.wv(("D", st), [("D", st, n) for n in range(s.ndma) if not s.is_late(st, n)])
            p.i("s_barrier")
        def rd(n, h):
            if n >= N: return
            st, sub, j = units[n]
            slot = st % s.R
            r = s.aBbase + (n % s.NB) * 4 + 2 * h
            p.ds("ds_read_b64_tr_b16 a[%d:%d], v%d offset:%d" % (r, r + 1, s.vB[slot // s.spb], (slot % s.spb) * s.STB + s.rd_off(sub, j, h)), ("B", n, h))
        for n in range(-PD, 0):
            for st in sync_at.get(n, []):
                sync(st)
                if st == 0: s.post_sync0(p)
            rd(n + PD, 0); rd(n + PD, 1)
        if s.stamp is not None: p.i("s_memtime s[%d:%d]" % (SB + 8, SB + 9))
        vr = s.valu_ready(units)
        vq = []
        seen_q = set()
        seen_j = set()
        credit = 0.0
        for n, (st, sub, j) in enumerate(units):
            q = st * s.SUB + sub
            vq += vr.get(n, [])
            if s.stamp is not None and n in s.prof(N): p.i("s_memtime s[%d:%d]" % (SB + 16 + 2 * s.prof(N).index(n), SB + 17 + 2 * s.prof(N).index(n)))
            if q not in seen_q:
                seen_q.add(q)
                p.wv(("A", q), [("A", q, i) for i in range(s.NRB)])
                s.extra_unit(p, q)
            p.wl(("B", n), [("B", n, 0), ("B", n, 1)])
            b = s.aBbase + (n % s.NB) * 4
            for i in range(s.NRB):
                c = s.acc(j, i)
                p.i("v_mfma_f32_16x16x32_%s v[%d:%d], a[%d:%d], a[%d:%d], %s" % (s.dt,
                    c, c + 3, b, b + 3, s.aA(q, i), s.aA(q, i) + 3, ("v[%d:%d]" % (c, c + 3)) if j in seen_j else "0"))
                if i == 0:
                    for st2 in sync_at.get(n, []): sync(st2)
                    if n in xbar: p.i("s_barrier")
                    if n in late_at:
                        p.wv(("Dlate", n), [("D", st2, k) for st2 in late_at[n] for k in range(s.ndma) if s.is_late(st2, k)])
                        p.i("s_barrier")
                    rd(n + PD, 0)
                elif i == 1:
                    rd(n + PD, 1)
                if i == s.NRB - 1:
                    seen_j.add(j)
                    credit = min(credit + s.rate, max(s.rate, 1.0) + 0.99)
                    if qx and qx[0][0] <= n and qx[0][1] <= n:
                        s.put(p, qx.pop(0)[2])
                    while credit >= 1.0:
                        op = next_vm(n)
                        if not op: break
                        s.put(p, op); credit -= 1.0
                for _ in range(s.vpm):
                    if vq:
                        x = vq.pop(0)
                        if isinstance(x, tuple): p.wv(x[1], x[2])
                        elif x.startswith("buffer_"): p.vm(x, None)
                        else: p.i(x)
        assert not qd and not qa and not qx
        if s.stamp is not None: p.i("s_memtime s[%d:%d]" % (SB + 10, SB + 11))
        p.i("s_nop 7")
        for k in sorted(vr):
            if k >= N: vq += vr[k]
        for x in vq:
            if x.startswith("buffer_"): p.vm(x, None)
            else: p.i(x)
        s.tail(p)
        res = resolve([p])
        emit(a, p, res, s.skip)
    def tail(s, p): pass
    def prof(s, N): return [N * k // 8 for k in range(1, 8)]
    def header(s, a):
        a.begin_kernel(s.name)
        a("s_cmp_ge_u32 s2, 256")
        a("s_cbranch_scc1 %s_end" % s.name)
        if s.stamp is not None: stamp_begin(a)
        if s.selfpf: self_code_touch(a, s.name, "%s_end" % s.name, s.vCode, s.vJunk, s.sCode, 2)
    def footer(s, a, nagpr, lds):
        if s.stamp is not None:
            stamp_mid(a, 2); stamp_end(a, 40, s.stamp, s.sWave)
        a.label("%s_end" % s.name)
        a.end_kernel(s.name, s.VACC + s.NACC, nagpr, 102)
        a.launch(s.name, 256, 256, lds)

def touch_ops(g, skarg, vtmp, vdst, ssrd=64, soff=68):
    L = []
    srd_off(L.append, ssrd, skarg, 0, 1024 * 7168)
    L.append("s_lshl_b32 s%d, s2, 2" % soff)
    L.append("s_add_u32 s%d, s%d, s%d" % (soff, soff, g.sWave))
    L.append("s_mul_i32 s%d, s%d, 7168" % (soff, soff))
    L.append("v_lshlrev_b32 v%d, 6, v0" % vtmp)
    ops = [[[], "buffer_load_dword v%d, v%d, s[%d:%d], s%d offen" % (vdst, vtmp, ssrd, ssrd + 3, soff), ("T", 0), []],
           [[], "buffer_load_dword v%d, v%d, s[%d:%d], s%d offen offset:3072" % (vdst, vtmp, ssrd, ssrd + 3, soff), ("T", 1), []]]
    return L, ops

class G3(Gemm2):
    def __init__(s, AR=4, PD=3, R=5, pf=(30, 24, 364, 1), retouch=(150, 300), tfl='', dfl='', xbar=(), pk=False, pf0=8, TS=3, vpm=2, fill=12, fill_flags="", **kw):
        s.fill = fill; s.fill_flags = fill_flags
        kw.setdefault("npro", 7); kw.setdefault("rate", 0.66); kw.setdefault("st_flags", " sc1")
        super().__init__("g3_kernel", NRB=4, NF=14, SUB=2, NST=16, STB=28672, R=R, AR=AR, PD=PD, ndma=7, VACC=32, **kw)
        s.pf, s.TS, s.vpm = pf, TS, vpm
        s.sCode, s.retouch = 56, retouch
        s.tfl, s.dfl = tfl, dfl
        s.xbar_after = xbar
        s.pk = pk
        s.pf0 = pf0
        s.pair_order = [0, 1, 2, 3, 4, 5, 6]
        s.vC1 = [16, 17, 18, 19]; s.vT = 20
    def dma_text(s, st, n):
        pre = ["s_add_u32 m0, s%d, %d" % (s.sLdsW, (st % s.R) * s.STB + (n // 4) * 4096)] if n % 4 == 0 else []
        return pre, "buffer_load_dwordx4 v%d, s[%d:%d], s%d offen offset:%d%s lds" % (s.vD[n], s.sW, s.sW + 3, s.sDoff, (n % 4) * 1024, s.dfl)
    def dma_step(s, st): return 64 * 7168
    def rd_off(s, sub, j, h):
        mat, jj = divmod(j, 7)
        return (sub * 2 + mat) * 7168 + h * 16 * 224 + jj * 32
    def unit_order(s):
        u = [(st, sub, j) for st in range(s.NST - s.TS) for sub in range(s.SUB) for j in range(s.NF)]
        for p_ in s.pair_order:
            for st in range(s.NST - s.TS, s.NST):
                for sub in range(s.SUB):
                    u += [(st, sub, p_), (st, sub, p_ + 7)]
        return u
    def epi_pair(s, j):
        L = []
        if j % 2 == 1: L.append("s_add_u32 s45, s44, %d" % ((j // 2) * 1024))
        if j == 6: L.append("s_mov_b32 s45, s46")
        for i in range(s.NRB):
            g, u = s.acc(j, i), s.acc(j + 7, i)
            t = s.vT + 4 * (i % 2)
            o = g if j % 2 == 0 else s.acc(j - 1, i) + 2
            c = s.vC1[i]
            if s.pk:
                sel = "op_sel:[0,%d] op_sel_hi:[1,%d]" % (c % 2, c % 2)
                for r in (0, 2): L.append("v_pk_mul_f32 v[%d:%d], v[%d:%d], v[%d:%d] %s" % (t + r, t + r + 1, g + r, g + r + 1, c & ~1, (c & ~1) + 1, sel))
                for r in range(4):
                    L.append("v_exp_f32 v%d, v%d" % (t + r, t + r))
                    if r % 2 == 1: L.append("v_pk_mul_f32 v[%d:%d], v[%d:%d], v[%d:%d]" % (g + r - 1, g + r, g + r - 1, g + r, u + r - 1, u + r))
                for r in (0, 2): L.append("v_pk_add_f32 v[%d:%d], v[%d:%d], 1.0 op_sel_hi:[1,0]" % (t + r, t + r + 1, t + r, t + r + 1))
                for r in range(4): L.append("v_rcp_f32 v%d, v%d" % (t + r, t + r))
                if i and (j % 2 == 1 or j == 6): L.append("s_add_u32 s45, s45, %d" % (112 * 1024))
                for r in (0, 2): L.append("v_pk_mul_f32 v[%d:%d], v[%d:%d], v[%d:%d]" % (g + r, g + r + 1, g + r, g + r + 1, t + r, t + r + 1))
            else:
                for r in range(4): L.append("v_mul_f32 v%d, v%d, v%d" % (t + r, g + r, c))
                for r in range(4):
                    L.append("v_exp_f32 v%d, v%d" % (t + r, t + r))
                    L.append("v_mul_f32 v%d, v%d, v%d" % (g + r, g + r, u + r))
                for r in range(4): L.append("v_add_f32 v%d, 1.0, v%d" % (t + r, t + r))
                for r in range(4): L.append("v_rcp_f32 v%d, v%d" % (t + r, t + r))
                if i and (j % 2 == 1 or j == 6): L.append("s_add_u32 s45, s45, %d" % (112 * 1024))
                for r in range(4): L.append("v_mul_f32 v%d, v%d, v%d" % (g + r, g + r, t + r))
            L.append("v_cvt_pk_bf16_f32 v%d, v%d, v%d" % (o, g, g + 1))
            L.append("v_cvt_pk_bf16_f32 v%d, v%d, v%d" % (o + 1, g + 2, g + 3))
            if j == 6:
                L.append("buffer_store_dwordx2 v[%d:%d], v1, s[%d:%d], s45 offen" % (o, o + 1, s.sO, s.sO + 3))
            elif j % 2 == 1:
                L.append("buffer_store_dwordx4 v[%d:%d], v1, s[%d:%d], s45 offen%s" % (o - 2, o + 1, s.sO, s.sO + 3, s.st_flags))
        return L
    def valu_ready(s, units):
        last = {}
        for n, (st, sub, j) in enumerate(units): last[j % 7] = n
        out = {last[j] + 3: s.epi_pair(j) for j in range(7)}
        L = [("wv", "ssw", [("ss", i) for i in range(s.NRB)])]
        for i in range(s.NRB):
            b = s.vT
            for r in range(4): L.append("v_accvgpr_read_b32 v%d, a%d" % (b + r, s.aX + 4 * i + r))
            L.append("v_add_f32 v%d, v%d, v%d" % (b, b, b + 1))
            L.append("v_add_f32 v%d, v%d, v%d" % (b + 2, b + 2, b + 3))
            L.append("v_add_f32 v%d, v%d, v%d" % (b, b, b + 2))
            reduce_g4(L.append, b, b + 1)
            L.append("v_mov_b32 v%d, 0x%x" % (b + 1, f2u(1e-5)))
            L.append("v_fmac_f32 v%d, 0x%x, v%d" % (b + 1, f2u(1.0 / 1024), b))
            L.append("v_rsq_f32 v%d, v%d" % (b + 1, b + 1))
            L.append("s_nop 0")
            L.append("v_mul_f32 v%d, 0x%x, v%d" % (s.vC1[i], f2u(-LOG2E), b + 1))
        out[28 * 9] = L
        return out
    def extra_vm(s):
        L = []
        for i in range(s.NRB):
            L.append((28 * 6 + 5 * i, 28 * 7, [[], "buffer_load_dwordx4 a[%d:%d], v29, s[%d:%d], s47 offen offset:%d" % (s.aX + 4 * i, s.aX + 4 * i + 3, s.sS, s.sS + 3, i * 1024), ("ss", i), []]))
        if s.fill:
            for k in range(s.fill):
                post = ["s_add_u32 s69, s69, 4096"] if k % 4 == 3 else []
                L.append((28 * 4 + 9 * k, 28 * 5 + 9 * k, [[], "buffer_store_dwordx4 a[%d:%d], v29, s[52:55], s69 offen offset:%d%s" % (s.aF, s.aF + 3, (k % 4) * 1024, s.fill_flags), ("F", k), post]))
        if s.pf:
            n0, dn, m0_, dm = s.pf
            for k in range(16 - s.pf0):
                n = n0 + k * dn
                L.append((n, n, [[], "buffer_load_dword v31, v30, s[4:7], s70 offen" + s.tfl, ("T2", k), ["s_add_u32 s70, s70, %d" % (64 * 7168)]]))
            for k in range(2):
                n = m0_ + k * dm
                L.append((n, n, [["v_lshrrev_b32 v30, 3, v0", "v_lshlrev_b32 v30, 10, v30", "v_lshl_add_u32 v30, v0, 7, v30"] if k == 0 else [], "buffer_load_dword v31, v30, s[64:67], s68 offen", ("T3", k), ["s_add_u32 s68, s68, %d" % (7 * 2048)]]))
        return L
    def gen(s, a):
        NRB, sT, sWave, vT = s.NRB, s.sT, s.sWave, s.vT
        sNt, sMt = 33, 34
        s.header(a)
        a("s_load_dwordx4 s[36:39], s[0:1], 48")
        a("s_load_dwordx2 s[40:41], s[0:1], 88")
        a("s_load_dwordx2 s[48:49], s[0:1], 64")
        a("v_lshrrev_b32 v1, 6, v0")
        a("v_and_b32 v0, 63, v0")
        a("v_readfirstlane_b32 s%d, v1" % sWave)
        a("s_and_b32 s%d, s2, 7" % sT)
        a("s_lshl_b32 s%d, s%d, 2" % (sNt, sT))
        a("s_lshr_b32 s%d, s2, 3" % sT)
        a("s_and_b32 s%d, s%d, 3" % (sMt, sT))
        a("s_add_u32 s%d, s%d, s%d" % (sNt, sNt, sMt))
        a("s_lshr_b32 s%d, s%d, 2" % (sMt, sT))
        a("s_lshl_b32 s%d, s%d, 4" % (sT, sMt))
        a("s_mul_i32 s42, s%d, %d" % (sWave, NRB))
        a("s_add_u32 s42, s42, s%d" % sT)
        a("s_lshl_b32 s43, s42, 15")
        a("v_lshlrev_b32 v1, 4, v0")
        for i in range(NRB):
            a("s_add_u32 s%d, s43, %d" % (sT, i * 32768))
            a("v_add_u32 v%d, s%d, v1" % (s.vA[i], sT))
        a("s_lshl_b32 s47, s42, 10")
        for i in range(7):
            a("v_add_u32 v%d, %d, v0" % (vT, 64 * i))
            a("v_mul_u32_u24 v%d, 4682, v%d" % (vT + 1, vT))
            a("v_lshrrev_b32 v%d, 16, v%d" % (vT + 1, vT + 1))
            a("v_mul_u32_u24 v%d, %d, v%d" % (vT + 1, 7168 - 14 * 16, vT + 1))
            a("v_lshl_add_u32 v%d, v%d, 4, v%d" % (s.vD[i], vT, vT + 1))
            if i % 4:
                a("v_subrev_u32 v%d, %d, v%d" % (s.vD[i], (i % 4) * 1024, s.vD[i]))
        a("s_and_b32 s%d, s%d, 1" % (sT, sWave))
        a("s_mul_i32 s%d, s%d, %d" % (s.sDoff, sT, 32 * 7168))
        a("s_mul_i32 s32, s%d, 224" % sNt)
        a("s_add_u32 s%d, s%d, s32" % (s.sDoff, s.sDoff))
        a("s_lshl_b32 s%d, s%d, 1" % (sT, sT))
        a("s_bfe_u32 s32, s%d, 0x10001" % sWave)
        a("s_add_u32 s32, s32, s%d" % sT)
        a("s_mul_i32 s%d, s32, 7168" % s.sLdsW)
        a("s_waitcnt lgkmcnt(0)")
        a("s_bitcmp1_b32 s%d, 1" % sWave)
        a("s_cselect_b32 s%d, s38, s36" % s.sW)
        a("s_cselect_b32 s%d, s39, s37" % (s.sW + 1))
        a("s_and_b32 s%d, s%d, 0xffff" % (s.sW + 1, s.sW + 1))
        a("s_mov_b32 s%d, %d" % (s.sW + 2, 1024 * 7168))
        a("s_mov_b32 s%d, 0x00020000" % (s.sW + 3))
        srd_off(a, s.sA, 40, WS_HC, 4 * MB)
        if s.stamp is not None: stamp_mid(a, 3)
        aSS = s.aX
        tl, s.tops = touch_ops(s, 48, 30, 31)
        def early(p): pass
        def late(p):
            srd_off(p.i, s.sS, 40, WS_SS, 2048 * 64)
            srd_off(p.i, s.sO, 40, WS_ACT, 2048 * 3584 * 2)
            p.i("v_lshrrev_b32 v%d, 2, v0" % vT)
            p.i("v_mul_u32_u24 v%d, 224, v%d" % (vT, vT))
            p.i("v_and_b32 v%d, 3, v0" % (vT + 1))
            p.i("v_lshl_add_u32 v%d, v%d, 3, v%d" % (s.vB[0], vT + 1, vT))
            s.base_setup(p.i)
            p.i("v_mov_b32 v29, v1")
            p.i("s_mul_i32 s43, s42, %d" % (112 * 1024))
            p.i("v_add_u32 v1, s43, v1")
            p.i("s_lshr_b32 s%d, s%d, 4" % (sT, sNt))
            p.i("s_mul_i32 s46, s%d, %d" % (sT, 56 * 1024))
            p.i("s_and_b32 s%d, s%d, 15" % (sT, sNt))
            p.i("s_mul_i32 s44, s%d, 3072" % sT)
            p.i("s_add_u32 s44, s44, s46")
            p.i("s_lshr_b32 s%d, s%d, 1" % (sT, sT))
            p.i("s_lshl_b32 s%d, s%d, 10" % (sT, sT))
            p.i("s_add_u32 s46, s46, s%d" % sT)
            p.i("s_and_b32 s%d, s%d, 1" % (sT, sNt))
            p.i("s_lshl_b32 s%d, s%d, 3" % (sT, sT))
            p.i("s_add_u32 s46, s46, s%d" % sT)
            p.i("s_add_u32 s46, s46, %d" % (48 * 1024))
            if s.pf:
                srd_off(p.i, 64, 48, 0, 1024 * 7168)
                p.i("v_lshlrev_b32 v30, 7, v0")
                p.i("v_cmp_lt_u32 vcc, 6, v0")
                p.i("v_mov_b32 v%d, 0x40000000" % vT)
                p.i("s_lshr_b32 s70, s2, 3")
                p.i("v_cndmask_b32 v30, v30, v%d, vcc" % vT)
                p.i("s_lshl_b32 s70, s70, 2")
                p.i("s_add_u32 s70, s70, s%d" % sWave)
                p.i("s_mul_i32 s68, s70, %d" % (14 * 2048))
                p.i("s_bfe_u32 s71, s2, 0x10002")
                p.i("s_mul_i32 s71, s71, %d" % (1792 * 2048))
                p.i("s_add_u32 s68, s68, s71")
                p.i("s_and_b32 s71, s2, 1")
                p.i("s_lshl_b32 s71, s71, 10")
                p.i("s_add_u32 s68, s68, s71")
                p.i("s_bitcmp1_b32 s70, 6")
                p.i("s_cselect_b32 s4, s38, s36")
                p.i("s_cselect_b32 s5, s39, s37")
                p.i("s_and_b32 s5, s5, 0xffff")
                p.i("s_mov_b32 s6, %d" % (1024 * 7168))
                p.i("s_mov_b32 s7, 0x00020000")
                p.i("s_and_b32 s70, s70, 63")
                p.i("s_mul_i32 s70, s70, 7168")
                p.i("s_and_b32 s71, s2, 7")
                p.i("s_mul_i32 s71, s71, 896")
                p.i("s_add_u32 s70, s70, s71")
                p.i("s_add_u32 s70, s70, %d" % (s.pf0 * 64 * 7168))
            if s.fill:
                srd_off(p.i, 52, 40, 64 * MB, s.fill * MB)
                p.i("s_lshl_b32 s69, s2, 2")
                p.i("s_add_u32 s69, s69, s%d" % sWave)
                p.i("s_mul_i32 s69, s69, %d" % (s.fill * 1024))
                for r in range(4): p.i("v_accvgpr_write_b32 a%d, -1" % (s.aF + r))
        s.aF = aSS + 4 * NRB
        s.emit_main(a, early, late)
        s.footer(a, aSS + 4 * NRB + 4, s.R * s.STB)

class G4(Gemm2):
    def __init__(s, AR=4, PD=3, R=6, name="g4_kernel", NST=28, **kw):
        kw.setdefault("npro", 12)
        super().__init__(name, NRB=2, NF=4, SUB=4, NST=NST, STB=16896, R=R, AR=AR, PD=PD, ndma=4, VACC=64, **kw)
    def dma_text(s, st, n):
        pre = ["s_add_u32 m0, s%d, %d" % (s.sLdsW, (st % s.R) * s.STB)] if n == 0 else []
        return pre, "buffer_load_dwordx4 v%d, s[%d:%d], s%d offen offset:%d lds" % (s.vD[n], s.sW, s.sW + 3, s.sDoff, n * 1056)
    def dma_step(s, st): return 128 * 2048
    def rd_off(s, sub, j, h):
        return (sub // 2) * 8448 + (sub % 2) * 512 + h * 256 + j * 32
    def lane_addrs(s, a, vT):
        a("v_bfe_u32 v%d, v0, 2, 3" % vT)
        a("v_mul_u32_u24 v%d, 1056, v%d" % (vT, vT))
        a("v_lshrrev_b32 v%d, 5, v0" % (vT + 1))
        a("v_lshl_add_u32 v%d, v%d, 7, v%d" % (vT, vT + 1, vT))
        a("v_and_b32 v%d, 3, v0" % (vT + 1))
        a("v_lshl_add_u32 v%d, v%d, 3, v%d" % (s.vB[0], vT + 1, vT))
        s.base_setup(a)
    def extra_vm(s): return s.xops
    def gen(s, a):
        NRB, sT, sWave = s.NRB, s.sT, s.sWave
        vT = 20; vR2 = [16, 17]; vM = [18, 19]; vH = 32
        sNt, sMt, sH, sM = 33, 34, 48, 52
        s.header(a)
        a("s_load_dwordx4 s[36:39], s[0:1], 64")
        a("s_load_dwordx2 s[40:41], s[0:1], 88")
        a("v_lshrrev_b32 v1, 6, v0")
        a("v_and_b32 v0, 63, v0")
        a("v_readfirstlane_b32 s%d, v1" % sWave)
        a("s_bfe_u32 s%d, s2, 0x20001" % sT)
        a("s_lshl_b32 s%d, s%d, 2" % (sMt, sT))
        a("s_lshr_b32 s%d, s2, 6" % sT)
        a("s_add_u32 s%d, s%d, s%d" % (sMt, sMt, sT))
        a("s_and_b32 s%d, s2, 1" % sT)
        a("s_lshl_b32 s%d, s%d, 3" % (sNt, sT))
        a("s_bfe_u32 s%d, s2, 0x30003" % sT)
        a("s_add_u32 s%d, s%d, s%d" % (sNt, sNt, sT))
        a("s_lshl_b32 s42, s%d, 3" % sMt)
        a("s_lshl_b32 s%d, s%d, 1" % (sT, sWave))
        a("s_add_u32 s42, s42, s%d" % sT)
        a("s_mul_i32 s43, s42, %d" % (112 * 1024))
        a("v_lshlrev_b32 v1, 4, v0")
        for i in range(NRB):
            a("s_add_u32 s%d, s43, %d" % (sT, i * 112 * 1024))
            a("v_add_u32 v%d, s%d, v1" % (s.vA[i], sT))
        a("v_lshrrev_b32 v%d, 3, v0" % vT)
        a("v_lshlrev_b32 v%d, 14, v%d" % (vT, vT))
        a("v_and_b32 v%d, 7, v0" % (vT + 1))
        a("v_lshl_add_u32 v%d, v%d, 4, v%d" % (s.vD[0], vT + 1, vT))
        for n in range(1, 4):
            a("v_add_u32 v%d, %d, v%d" % (s.vD[n], n * (2048 - 1056), s.vD[0]))
        a("s_mul_i32 s%d, s%d, 4224" % (s.sLdsW, sWave))
        a("s_lshr_b32 s%d, s%d, 1" % (sT, sWave))
        a("s_lshl_b32 s%d, s%d, 17" % (s.sDoff, sT))
        a("s_and_b32 s%d, s%d, 1" % (sT, sWave))
        a("s_lshl_b32 s%d, s%d, 13" % (sT, sT))
        a("s_add_u32 s%d, s%d, s%d" % (s.sDoff, s.sDoff, sT))
        a("s_lshl_b32 s%d, s%d, 7" % (sT, sNt))
        a("s_add_u32 s%d, s%d, s%d" % (s.sDoff, s.sDoff, sT))
        a("s_waitcnt lgkmcnt(0)")
        srd_off(a, s.sW, 36, 0, 3584 * 2048)
        srd_off(a, s.sA, 40, WS_ACT, 2048 * 3584 * 2)
        if s.stamp is not None: stamp_mid(a, 3)
        n0 = (s.NST - 4) * s.NF * s.SUB
        s.xops = []
        for i in range(NRB):
            s.xops.append((n0, 10**9, [[], "buffer_load_dwordx4 v[%d:%d], v1, s[%d:%d], s47 offen offset:%d" % (48 + 4 * i, 51 + 4 * i, s.sS, s.sS + 3, i * 1024), ("ss", i), []]))
            for q in range(2):
                r = vH + (i * 2 + q) * 4
                s.xops.append((n0, 10**9, [[], "buffer_load_dwordx4 v[%d:%d], v1, s[%d:%d], s%d offen offset:%d" % (r, r + 3, sH, sH + 3, 45 + i, q * 1024), ("h", i, q), []]))
            s.xops.append((n0, 10**9, [[], "buffer_load_dword v%d, v%d, s[%d:%d], 0 offen offset:%d" % (vM[i], vT + 10, sM, sM + 3, i * 64), ("m", i), []]))
        def early(p): pass
        def late(p):
            s.lane_addrs(p.i, vT)
            srd_off(p.i, s.sS, 40, WS_SS, 2048 * 64)
            srd_off(p.i, s.sO, 38, 0, 2048 * 2048)
            srd_off(p.i, sH, 40, WS_HC, 4 * MB)
            srd_off(p.i, sM, 40, WS_MT, 8192)
            p.i("s_lshl_b32 s47, s42, 10")
            p.i("s_lshl_b32 s%d, s42, 15" % sT)
            p.i("s_lshl_b32 s45, s%d, 11" % sNt)
            p.i("s_add_u32 s45, s45, s%d" % sT)
            p.i("s_add_u32 s46, s45, 0x8000")
            p.i("v_and_b32 v%d, 15, v0" % vT)
            p.i("s_lshl_b32 s%d, s42, 4" % sT)
            p.i("v_add_u32 v%d, s%d, v%d" % (vT, sT, vT))
            p.i("v_lshlrev_b32 v%d, 2, v%d" % (vT + 10, vT))
            p.i("v_lshrrev_b32 v%d, 8, v%d" % (vT + 1, vT))
            p.i("v_and_b32 v%d, 255, v%d" % (vT, vT))
            p.i("v_lshl_add_u32 v%d, v%d, 3, v%d" % (vT, vT, vT + 1))
            p.i("v_lshlrev_b32 v%d, 11, v%d" % (vT, vT))
            p.i("v_lshrrev_b32 v%d, 4, v0" % (vT + 1))
            p.i("v_lshl_add_u32 v%d, v%d, 3, v%d" % (vT, vT + 1, vT))
            p.i("s_lshl_b32 s44, s%d, 7" % sNt)
        def tail(e):
            e.wv("side", [("ss", i) for i in range(NRB)] + [("h", i, q) for i in range(NRB) for q in range(2)] + [("m", i) for i in range(NRB)])
            for i in range(NRB):
                b = 48 + 4 * i
                e.i("v_add_f32 v%d, v%d, v%d" % (b, b, b + 1))
                e.i("v_add_f32 v%d, v%d, v%d" % (b + 2, b + 2, b + 3))
                e.i("v_add_f32 v%d, v%d, v%d" % (b, b, b + 2))
                reduce_g4(e.i, b, b + 1)
                e.i("v_mov_b32 v%d, 0x%x" % (b + 1, f2u(1e-5)))
                e.i("v_fmac_f32 v%d, 0x%x, v%d" % (b + 1, f2u(1.0 / 1024), b))
                e.i("v_rcp_f32 v%d, v%d" % (vR2[i], b + 1))
            for i in range(NRB):
                for j in range(4):
                    c = s.acc(j, i)
                    h = vH + (i * 2 + j // 2) * 4 + (j % 2) * 2
                    t = vT + 2 + 4 * (j % 2)
                    e.i("v_lshlrev_b32 v%d, 16, v%d" % (t, h))
                    e.i("v_and_b32 v%d, 0xffff0000, v%d" % (t + 1, h))
                    e.i("v_lshlrev_b32 v%d, 16, v%d" % (t + 2, h + 1))
                    e.i("v_and_b32 v%d, 0xffff0000, v%d" % (t + 3, h + 1))
                    for r in range(4): e.i("v_add_f32 v%d, v%d, v%d" % (t + r, t + r, vM[i]))
                    for r in range(4): e.i("v_fmac_f32 v%d, v%d, v%d" % (t + r, c + r, vR2[i]))
                    e.i("v_cvt_pk_bf16_f32 v%d, v%d, v%d" % (c, t, t + 1))
                    e.i("v_cvt_pk_bf16_f32 v%d, v%d, v%d" % (c + 1, t + 2, t + 3))
                    e.vm("buffer_store_dwordx2 v[%d:%d], v%d, s[%d:%d], s44 offen offset:%d" % (c, c + 1, vT, s.sO, s.sO + 3, j * 32))
                e.i("s_add_u32 s44, s44, %d" % (16 * 8 * 2048))
        s.tail = tail
        s.emit_main(a, early, late)
        s.footer(a, s.aX, s.R * s.STB)

class K2(G4):
    def __init__(s, PD=3, pf=False, xneed=12, **kw):
        kw.setdefault("npro", 14)
        kw.setdefault("rate", 0.7)
        super().__init__(AR=4, PD=PD, R=4, name="k2_kernel", NST=4, **kw)
        s.pf, s.xneed = pf, xneed
        s.aM = s.aX
        s.vAccM = 56
        s.vMl = 31
        s.vJunk = 30
        s.dt = 'f16'
        s.LM = s.R * s.STB
        s.LX = s.LM + 4096
    def dma_text(s, st, n):
        pre = ["s_add_u32 m0, s%d, %d" % (s.sLdsW, (st % s.R) * s.STB + 32 * n)]
        return pre, "buffer_load_dwordx4 v1, s[%d:%d], s%d offen offset:%d lds" % (s.sW, s.sW + 3, s.sDoff, n * 1024)
    def dma_step(s, st): return 16384
    def rdm(s, p, q):
        if q < 16:
            r = s.aM + 4 * (q % 4)
            p.ds("ds_read_b128 a[%d:%d], v%d offset:%d" % (r, r + 3, s.vMl, q * 64), ("M", q))
    def post_sync0(s, p):
        p.wv("vmw", [("vm",)])
        for q in range(3): s.rdm(p, q)
    def extra_unit(s, p, q):
        p.wl(("M", q), [("M", q)])
        r = s.aM + 4 * (q % 4)
        for i in range(s.NRB):
            c = s.vAccM + 4 * i
            src = "0" if q == 0 else "v[%d:%d]" % (c, c + 3)
            p.i("v_mfma_f32_16x16x32_f16 v[%d:%d], a[%d:%d], a[%d:%d], %s" % (c, c + 3, r, r + 3, s.aA(q, i), s.aA(q, i) + 3, src))
        s.rdm(p, q + 3)
    def gen(s, a):
        NRB, sT, sWave = s.NRB, s.sT, s.sWave
        vT = 20; vXM = [18, 19]; vX = 32; vXa = 16; vXr = 8
        sNt, sT1, sX, sM, sXM, sVM = 33, 34, 48, 52, 56, 60
        s.header(a)
        a("s_load_dwordx2 s[36:37], s[0:1], 0")
        a("s_load_dwordx2 s[38:39], s[0:1], 56")
        a("s_load_dwordx2 s[40:41], s[0:1], 88")
        a("v_lshrrev_b32 v1, 6, v0")
        a("v_and_b32 v0, 63, v0")
        a("v_readfirstlane_b32 s%d, v1" % sWave)
        a("s_and_b32 s%d, s2, 7" % sT1)
        a("s_bfe_u32 s%d, s2, 0x40003" % sNt)
        if s.pf:
            a("s_cmp_eq_u32 s%d, 4" % sWave)
            a("s_cbranch_scc1 k2_helper")
        a("s_lshr_b32 s%d, s2, 7" % sT)
        a("s_lshl_b32 s42, s%d, 4" % sT1)
        a("s_lshl_b32 s%d, s%d, 3" % (sT, sT))
        a("s_add_u32 s42, s42, s%d" % sT)
        a("s_lshl_b32 s%d, s%d, 1" % (sT, sWave))
        a("s_add_u32 s42, s42, s%d" % sT)
        a("s_lshl_b32 s43, s42, 14")
        a("v_lshlrev_b32 v1, 4, v0")
        for i in range(NRB):
            a("s_add_u32 s%d, s43, %d" % (sT, i * 16384))
            a("v_add_u32 v%d, s%d, v1" % (s.vA[i], sT))
        a("s_mul_i32 s%d, s%d, 4224" % (s.sLdsW, sWave))
        a("s_lshl_b32 s%d, s%d, 4" % (sT, sT1))
        a("s_add_u32 s%d, s%d, s%d" % (sT, sT, sNt))
        a("s_lshl_b32 s%d, s%d, 16" % (s.sDoff, sT))
        a("s_lshl_b32 s%d, s%d, 12" % (sT, sWave))
        a("s_add_u32 s%d, s%d, s%d" % (s.sDoff, s.sDoff, sT))
        a("s_lshl_b32 s45, s%d, 10" % sWave)
        a("s_add_u32 s45, s45, %d" % s.LM)
        a("s_lshl_b32 s46, s%d, 10" % sT1)
        a("s_waitcnt lgkmcnt(0)")
        srd_off(a, s.sW, 40, WS_V, 8 * MB)
        srd_off(a, s.sA, 40, WS_WSF, 2 * MB)
        srd_off(a, sVM, 40, WS_VM, 8192)
        if s.stamp is not None: stamp_mid(a, 3)
        s.xops = []
        for k in range(4):
            s.xops.append((0, s.xneed, [["s_add_u32 m0, s64, %d" % (k * 1024)],
                           "buffer_load_dwordx4 v%d, s[%d:%d], s47 offen lds" % (vXa + (k % 2), sX, sX + 3), ("x", k),
                           ["s_add_u32 s47, s47, %d" % (8 * 16384)]]))
        for i in range(NRB):
            s.xops.append((0, s.xneed, [[], "buffer_load_dword v%d, v%d, s[%d:%d], 0 offen offset:%d" % (vXM[i], vT + 3, sXM, sXM + 3, i * 64), ("xm", i), []]))
        def early(p):
            p.i("s_mov_b32 m0, s45")
            p.i("s_nop 0")
            p.vm("buffer_load_dwordx4 v1, s[%d:%d], s46 offen lds" % (sVM, sVM + 3), ("vm",))
        def late(p):
            s.lane_addrs(p.i, vT)
            p.i("v_lshrrev_b32 v%d, 4, v0" % vT)
            p.i("v_lshlrev_b32 v%d, 4, v%d" % (vT, vT))
            p.i("v_add_u32 v%d, s45, v%d" % (s.vMl, vT))
            p.i("v_and_b32 v%d, 15, v0" % vT)
            p.i("v_lshlrev_b32 v%d, 4, v%d" % (vT + 2, vT))
            p.i("s_lshl_b32 s%d, s42, 4" % sT)
            p.i("v_add_u32 v%d, s%d, v%d" % (vT + 3, sT, vT))
            p.i("v_lshlrev_b32 v%d, 2, v%d" % (vT + 3, vT + 3))
            p.i("v_lshrrev_b32 v%d, 3, v0" % (vT + 1))
            p.i("v_lshrrev_b32 v%d, 4, v0" % (vT + 4))
            p.i("v_and_b32 v%d, 7, v0" % (vT + 5))
            p.i("v_xor_b32 v%d, v%d, v%d" % (vT + 4, vT + 4, vT + 5))
            p.i("v_lshlrev_b32 v%d, 14, v%d" % (vT + 1, vT + 1))
            p.i("v_lshl_add_u32 v%d, v%d, 4, v%d" % (vXa, vT + 4, vT + 1))
            p.i("v_xor_b32 v%d, 64, v%d" % (vXa + 1, vXa))
            p.i("s_lshl_b32 s64, s%d, 12" % sWave)
            p.i("s_add_u32 s64, s64, %d" % s.LX)
            p.i("v_lshlrev_b32 v%d, 7, v%d" % (vT + 1, vT))
            p.i("v_add_u32 v%d, s64, v%d" % (vT + 1, vT + 1))
            p.i("v_bfe_u32 v%d, v0, 4, 1" % (vT + 4))
            p.i("v_lshl_add_u32 v%d, v%d, 3, v%d" % (vT + 1, vT + 4, vT + 1))
            p.i("v_lshrrev_b32 v%d, 5, v0" % (vT + 4))
            p.i("v_lshrrev_b32 v%d, 1, v%d" % (vT + 5, vT))
            p.i("v_xor_b32 v%d, v%d, v%d" % (vT + 4, vT + 4, vT + 5))
            for j in range(4):
                p.i("v_xor_b32 v%d, %d, v%d" % (vT + 5, 2 * j, vT + 4))
                p.i("v_lshl_add_u32 v%d, v%d, 4, v%d" % (vXr + j, vT + 5, vT + 1))
            p.i("s_lshr_b32 s47, s42, 4")
            p.i("s_and_b32 s%d, s42, 15" % sT)
            p.i("s_lshl_b32 s%d, s%d, 7" % (sT, sT))
            p.i("s_add_u32 s47, s47, s%d" % sT)
            p.i("s_lshl_b32 s47, s47, 11")
            p.i("s_lshl_b32 s%d, s%d, 7" % (sT, sNt))
            p.i("s_add_u32 s47, s47, s%d" % sT)
            srd_off(p.i, s.sS, 40, WS_SS, 2048 * 64)
            srd_off(p.i, s.sO, 40, WS_HC, 4 * MB)
            srd_off(p.i, sX, 36, 0, 2048 * 2048)
            srd_off(p.i, sM, 40, WS_MT, 8192)
            srd_off(p.i, sXM, 40, WS_XM, 8192)
            p.i("s_lshl_b32 s44, s42, 15")
            p.i("s_lshl_b32 s%d, s%d, 11" % (sT, sNt))
            p.i("s_add_u32 s44, s44, s%d" % sT)
            p.i("s_lshl_b32 s45, s42, 10")
            p.i("s_lshr_b32 s%d, s%d, 2" % (sT, sNt))
            p.i("s_lshl_b32 s%d, s%d, 8" % (sT, sT))
            p.i("s_add_u32 s45, s45, s%d" % sT)
            p.i("s_and_b32 s%d, s%d, 3" % (sT, sNt))
            p.i("s_lshl_b32 s%d, s%d, 2" % (sT, sT))
            p.i("s_add_u32 s45, s45, s%d" % sT)
        def tail(e):
            e.wv("side", [("x", k) for k in range(4)] + [("xm", i) for i in range(NRB)])
            for i in range(NRB):
                for j in range(4):
                    x = vX + (i * 4 + j) * 2
                    e.ds("ds_read_b64 v[%d:%d], v%d offset:%d" % (x, x + 1, vXr + j, i * 2048), ("xr", i, j))
            for i in range(NRB):
                m = vXM[i]
                e.i("v_add_f32 v%d, v%d, v%d" % (m, m, s.vAccM + 4 * i))
                ssr = 48 + 2 * i
                for j in range(4):
                    c = s.acc(j, i)
                    x = vX + (i * 4 + j) * 2
                    t = vT + 4
                    for r in range(4): e.i("v_sub_f32 v%d, v%d, v%d" % (c + r, c + r, m))
                    e.wl(("xr", i, j), [("xr", i, j)])
                    e.i("v_lshlrev_b32 v%d, 16, v%d" % (t, x))
                    e.i("v_and_b32 v%d, 0xffff0000, v%d" % (t + 1, x))
                    e.i("v_lshlrev_b32 v%d, 16, v%d" % (t + 2, x + 1))
                    e.i("v_and_b32 v%d, 0xffff0000, v%d" % (t + 3, x + 1))
                    for r in range(4): e.i("v_add_f32 v%d, v%d, v%d" % (t + r, t + r, c + r))
                    e.i("v_cvt_pk_bf16_f32 v%d, v%d, v%d" % (x, t, t + 1))
                    e.i("v_cvt_pk_bf16_f32 v%d, v%d, v%d" % (x + 1, t + 2, t + 3))
                    if j % 2 == 1:
                        e.vm("buffer_store_dwordx4 v[%d:%d], v1, s[%d:%d], s44 offen offset:%d%s" % (x - 2, x + 1, s.sO, s.sO + 3, (j // 2) * 1024, s.st_flags))
                    for r in range(4):
                        if j == 0 and r == 0: e.i("v_mul_f32 v%d, v%d, v%d" % (ssr, t, t))
                        else: e.i("v_fmac_f32 v%d, v%d, v%d" % (ssr, t + r, t + r))
                e.i("s_add_u32 s44, s44, 0x8000")
                reduce_g4(e.i, ssr, ssr + 1)
                e.vm("buffer_store_dword v%d, v%d, s[%d:%d], s45 offen offset:%d" % (ssr, vT + 2, s.sS, s.sS + 3, i * 1024))
            e.i("s_cmp_lg_u32 s%d, 0" % sNt)
            e.i("s_cbranch_scc1 %s_nomt" % s.name)
            for i in range(NRB):
                e.vm("buffer_store_dword v%d, v%d, s[%d:%d], 0 offen offset:%d" % (vXM[i], vT + 3, sM, sM + 3, i * 64))
            e.label("%s_nomt" % s.name)
        s.tail = tail
        s.emit_main(a, early, late)
        if s.stamp is not None:
            stamp_mid(a, 2); stamp_end(a, 40, s.stamp, s.sWave)
        if s.pf:
            a("s_branch %s_end" % s.name)
            a.label("k2_helper")
            a("s_waitcnt lgkmcnt(0)")
            srd_off(a, 64, 38, 0, 1024 * 7168)
            a("s_mul_i32 s68, s2, 28672")
            a("v_lshlrev_b32 v6, 6, v0")
            for k in range(7):
                a("buffer_load_dword v7, v6, s[64:67], s68 offen")
                a("s_add_u32 s68, s68, 4096")
            for k in range(s.NST): a("s_barrier")
        a.label("%s_end" % s.name)
        a.end_kernel(s.name, s.VACC + s.NACC, s.aM + 16, 102)
        a.launch(s.name, 256, 320 if s.pf else 256, s.LX + 16384)

WS_XB = 64 * MB
class G4S(Gemm2):
    def __init__(s, SK=2, AR=None, PD=3, R=8, TS=1, LK=None, xfl=" sc1", l2pf=0, l2d=2, retouch=(200,), defer=True, lgrp=2, rc_ahead=28, **kw):
        kw.setdefault("npro", 8); kw.setdefault("rate", 0.6)
        s.l2pf, s.l2d = l2pf, l2d
        s.SK = SK
        NRB = SK
        AR = AR or (7 if SK == 4 else 10)
        s.LK = LK or (7 if SK == 4 else 8)
        s.KF = 8 // SK
        s.xfl = xfl
        super().__init__("g4_kernel", NRB=NRB, NF=8, SUB=2, NST=56 // SK, STB=16896, R=R, AR=AR, PD=PD, ndma=4, VACC=128, **kw)
        s.TS = TS
        s.retouch = retouch
        s.vCode = 10
        s.defer = defer
        s.lgrp, s.rc_ahead = lgrp, rc_ahead
        s.vD2 = [116, 117, 118, 119]
        s.vpm = 1
    def crow(s, kb):
        return (kb // 3) * 112 + (kb % 3) * 32 if kb < 48 else (kb - 48) * 224 + 96
    def is_late(s, st, n): return s.defer and st >= s.NST - s.LK and n >= 2
    def late_steps(s, units):
        if not s.defer: return {}
        first = {}
        for n, (st, sub, j) in enumerate(units):
            if st >= s.NST - s.LK and j < s.KF: first.setdefault(st, n)
        out = {}
        for st in first:
            g0 = s.NST - s.LK + (st - (s.NST - s.LK)) // s.lgrp * s.lgrp
            out[st] = first[g0]
        return out
    def dma_text(s, st, n):
        pre = []
        if n % 2 == 0:
            d = s.crow(2 * st + 1) - s.crow(2 * st)
            if n == 0 or s.is_late(st, n):
                pre.append("s_add_u32 s%d, s%d, %d" % (s.sDoff, {32: 27, 48: 29, 224: 30}[d], s.crow(2 * st) * 2048))
            pre.append("s_add_u32 m0, s%d, %d" % (s.sLdsW, (st % s.R) * s.STB + (0 if n else 4224)))
        v = (s.vD2 if st >= 24 else s.vD)[n]
        return pre, "buffer_load_dwordx4 v%d, s[%d:%d], s%d offen offset:%d lds" % (v, s.sW, s.sW + 3, s.sDoff, (n % 2) * 1056)
    def dma_step(s, st): return None
    def rd_off(s, sub, j, h): return sub * 8448 + (j // 4) * 4224 + h * 512 + (j % 4) * 32
    def unit_order(s):
        KF = s.KF
        u = [(st, sub, j) for st in range(s.NST - s.LK) for sub in range(s.SUB) for j in range(s.NF)]
        u += [(st, sub, j) for st in range(s.NST - s.LK, s.NST - s.TS) for sub in range(s.SUB) for j in range(KF, s.NF)]
        for pr in range(KF // 2, 4):
            for st in range(s.NST - s.TS, s.NST):
                for sub in range(s.SUB):
                    u += [(st, sub, 2 * pr), (st, sub, 2 * pr + 1)]
        u += [(st, sub, j) for st in range(s.NST - s.LK, s.NST) for sub in range(s.SUB) for j in range(KF)]
        return u
    def valu_ready(s, units):
        last = {}
        for n, (st, sub, j) in enumerate(units): last[j // 2] = n
        out = {}
        ppg = s.KF // 2
        for pr in range(ppg, 4):
            g, pi = divmod(pr, ppg)
            L = []
            for i in range(s.NRB):
                c0, c1 = s.acc(2 * pr, i), s.acc(2 * pr + 1, i)
                L.append("v_cvt_pk_bf16_f32 v%d, v%d, v%d" % (c0, c0, c0 + 1))
                L.append("v_cvt_pk_bf16_f32 v%d, v%d, v%d" % (c0 + 1, c0 + 2, c0 + 3))
                L.append("v_cvt_pk_bf16_f32 v%d, v%d, v%d" % (c0 + 2, c1, c1 + 1))
                L.append("v_cvt_pk_bf16_f32 v%d, v%d, v%d" % (c0 + 3, c1 + 2, c1 + 3))
                L.append("buffer_store_dwordx4 v[%d:%d], v1, s[%d:%d], s%d offen offset:%d%s" % (c0, c0 + 3, s.sX, s.sX + 3, s.sXo + g - 1, (i * ppg + pi) * 1024, s.xfl))
            out[last[pr] + (3 if s.NRB == 4 else 5)] = L
        k = s.side_fill[0]
        while k in out: k += 1
        out[k] = s.side_fill[1]
        return out
    def extra_vm(s): return s.xops
    def gen(s, a):
        NRB, sT, sWave, SK, KF = s.NRB, s.sT, s.sWave, s.SK, s.KF
        ppg = KF // 2
        vT = 20; vR2 = 16; vM = 32; vH = 36; vS = 52; vRc = 68
        NRC = (SK - 1) * 16
        sNt, sMt, sKk, sH, sM = 33, 34, 35, 48, 52
        s.sX, s.sXo = 56, 60
        KQ = 3584 // SK
        s.header(a)
        a("s_load_dwordx4 s[36:39], s[0:1], 64")
        a("s_load_dwordx2 s[40:41], s[0:1], 88")
        a("v_lshrrev_b32 v1, 6, v0")
        a("v_and_b32 v0, 63, v0")
        a("v_readfirstlane_b32 s%d, v1" % sWave)
        if SK == 4:
            a("s_bfe_u32 s%d, s2, 0x20001" % sKk)
            a("s_and_b32 s%d, s2, 1" % sT)
        else:
            a("s_bfe_u32 s%d, s2, 0x10002" % sKk)
            a("s_bfe_u32 s%d, s2, 0x10001" % sT)
            a("s_lshl_b32 s%d, s%d, 3" % (sMt, sT))
            a("s_lshr_b32 s%d, s2, 5" % sT)
            a("s_add_u32 s%d, s%d, s%d" % (sMt, sMt, sT))
            a("s_and_b32 s%d, s2, 1" % sT)
            a("s_lshl_b32 s%d, s%d, 2" % (sNt, sT))
            a("s_bfe_u32 s%d, s2, 0x20003" % sT)
            a("s_add_u32 s%d, s%d, s%d" % (sNt, sNt, sT))
        a("s_mul_i32 s42, s%d, %d" % (sMt, 4 * NRB))
        a("s_mul_i32 s%d, s%d, %d" % (sT, sWave, NRB))
        a("s_add_u32 s42, s42, s%d" % sT)
        a("s_mul_i32 s43, s42, %d" % (112 * 1024))
        a("s_mul_i32 s%d, s%d, %d" % (sT, sKk, KQ // 32 * 1024))
        a("s_add_u32 s43, s43, s%d" % sT)
        a("v_lshlrev_b32 v1, 4, v0")
        for i in range(NRB):
            a("s_add_u32 s%d, s43, %d" % (sT, i * 112 * 1024))
            a("v_add_u32 v%d, s%d, v1" % (s.vA[i], sT))
        assert SK == 2
        a("v_lshrrev_b32 v%d, 3, v0" % vT)
        a("v_lshlrev_b32 v%d, 13, v%d" % (vT, vT))
        a("v_and_b32 v%d, 7, v0" % (vT + 1))
        a("v_lshl_add_u32 v%d, v%d, 4, v%d" % (vT, vT + 1, vT))
        a("s_lshl_b32 s%d, s%d, 7" % (sT, sKk))
        a("v_add_u32 v%d, s%d, v%d" % (s.vD[2], sT, vT))
        a("v_xor_b32 v%d, 128, v%d" % (s.vD[0], s.vD[2]))
        a("v_add_u32 v%d, %d, v%d" % (s.vD[1], 2048 - 1056, s.vD[0]))
        a("v_add_u32 v%d, %d, v%d" % (s.vD[3], 2048 - 1056, s.vD[2]))
        a("s_lshr_b32 s%d, s%d, 1" % (sT, sWave))
        a("s_mul_i32 s%d, s%d, 8448" % (s.sLdsW, sT))
        a("s_and_b32 s32, s%d, 1" % sWave)
        a("s_mul_i32 s%d, s32, 2112" % s.sDoff)
        a("s_add_u32 s%d, s%d, s%d" % (s.sLdsW, s.sLdsW, s.sDoff))
        a("s_mul_i32 s%d, s%d, %d" % (s.sDoff, sKk, KQ * 2048))
        a("s_lshl_b32 s32, s32, 12")
        a("s_add_u32 s%d, s%d, s32" % (s.sDoff, s.sDoff))
        a("s_lshl_b32 s32, s%d, 8" % sNt)
        a("s_add_u32 s%d, s%d, s32" % (s.sDoff, s.sDoff))
        for reg, d in ((27, 32), (29, 48), (30, 224)):
            a("s_mul_i32 s%d, s%d, %d" % (reg, sT, d * 2048))
            a("s_add_u32 s%d, s%d, s%d" % (reg, reg, s.sDoff))
        a("s_waitcnt lgkmcnt(0)")
        srd_off(a, s.sW, 36, 0, 3584 * 2048)
        srd_off(a, s.sA, 40, WS_ACT, 2048 * 3584 * 2)
        if s.stamp is not None: stamp_mid(a, 3)
        n0 = (s.NST * 2 // 3) * s.NF * s.SUB
        big = n0 + 40
        s.xops = []
        for i in range(NRB):
            s.xops.append((n0, big, [[], "buffer_load_dwordx4 v[%d:%d], v1, s[%d:%d], s47 offen offset:%d" % (vS + 4 * i, vS + 4 * i + 3, s.sS, s.sS + 3, i * 1024), ("ss", i), []]))
            for pi in range(ppg):
                r = vH + (i * ppg + pi) * 4
                s.xops.append((n0, big, [[], "buffer_load_dwordx4 v[%d:%d], v1, s[%d:%d], s45 offen offset:%d" % (r, r + 3, sH, sH + 3, pi * 1024), ("h", i, pi),
                                         ["s_add_u32 s45, s45, 0x8000"] if pi == ppg - 1 else []]))
            s.xops.append((n0, big, [[], "buffer_load_dword v%d, v%d, s[%d:%d], 0 offen offset:%d" % (vM + i, vT + 10, sM, sM + 3, i * 64), ("m", i), []]))
        if s.l2pf:
            assert SK == 2
            upc = 4 * s.NF * s.SUB
            for c in range(1, 7):
                for hh in range(s.l2pf):
                    s.xops.append((max(0, (c - s.l2d) * upc), -1, [[], "buffer_load_dword v31, v12, s[4:7], s70 offen offset:%d" % (hh * 64), ("L2", c, hh),
                                   ["s_add_u32 s70, s70, s71"] if hh == s.l2pf - 1 else []]))
        def early(p): pass
        def late(p):
            if s.l2pf:
                p.i("s_lshr_b32 s67, s2, 3")
                p.i("s_lshl_b32 s67, s67, 2")
                p.i("s_add_u32 s67, s67, s%d" % sWave)
                p.i("v_lshlrev_b32 v12, 7, v0")
                p.i("s_and_b32 s70, s2, 3")
                p.i("s_lshl_b32 s70, s70, 5")
                p.i("s_add_u32 s70, s70, s67")
                p.i("s_mul_i32 s70, s70, %d" % (112 * 1024))
                p.i("s_mul_i32 s%d, s%d, %d" % (sT, sKk, 56 * 1024))
                p.i("s_add_u32 s70, s70, s%d" % sT)
                p.i("s_add_u32 s70, s70, 8192")
                p.i("s_mul_i32 s68, s%d, %d" % (sKk, 1792 * 2048))
                p.i("s_lshl_b32 s%d, s67, 13" % sT)
                p.i("s_add_u32 s68, s68, s%d" % sT)
                p.i("s_add_u32 s68, s68, %d" % (524288 - 32 * 8192))
                p.i("s_mov_b32 s71, 524288")
                p.i("s_cmp_lt_u32 s67, 32")
                p.i("s_cselect_b32 s70, s70, s68")
                p.i("s_cselect_b32 s71, 8192, s71")
                p.i("s_cselect_b32 s4, s%d, s%d" % (s.sA, s.sW))
                p.i("s_cselect_b32 s5, s%d, s%d" % (s.sA + 1, s.sW + 1))
                p.i("s_cselect_b32 s6, s%d, s%d" % (s.sA + 2, s.sW + 2))
                p.i("s_mov_b32 s7, 0x00020000")
                p.i("s_cmp_lt_u32 s67, 96")
                p.i("s_cselect_b32 s6, s6, 0")
            p.i("v_bfe_u32 v%d, v0, 2, 2" % vT)
            p.i("v_mul_u32_u24 v%d, 1056, v%d" % (vT, vT))
            p.i("v_lshrrev_b32 v%d, 4, v0" % (vT + 1))
            p.i("v_lshl_add_u32 v%d, v%d, 7, v%d" % (vT, vT + 1, vT))
            p.i("v_and_b32 v%d, 3, v0" % (vT + 1))
            p.i("v_lshl_add_u32 v%d, v%d, 3, v%d" % (s.vB[0], vT + 1, vT))
            p.i("v_lshrrev_b32 v11, 5, v0")
            p.i("v_mul_u32_u24 v11, %d, v11" % (96 * 2048))
            for k in range(4): p.i("v_add_u32 v%d, v%d, v11" % (s.vD2[k], s.vD[k]))
            s.base_setup(p.i)
            srd_off(p.i, s.sS, 40, WS_SS, 2048 * 64)
            srd_off(p.i, s.sO, 38, 0, 2048 * 2048)
            srd_off(p.i, sH, 40, WS_HC, 4 * MB)
            srd_off(p.i, sM, 40, WS_MT, 8192)
            srd_off(p.i, s.sX, 40, WS_XB, (SK - 1) * 4 * MB)
            p.i("s_lshl_b32 s47, s42, 10")
            p.i("s_lshl_b32 s45, s42, 5")
            p.i("s_lshl_b32 s%d, s%d, 2" % (sT, sNt))
            p.i("s_add_u32 s45, s45, s%d" % sT)
            p.i("s_mul_i32 s%d, s%d, %d" % (sT, sKk, ppg))
            p.i("s_add_u32 s45, s45, s%d" % sT)
            p.i("s_lshl_b32 s45, s45, 10")
            p.i("s_lshl_b32 s46, s%d, 3" % sMt)
            p.i("s_add_u32 s46, s46, s%d" % sNt)
            p.i("s_mul_i32 s46, s46, %d" % SK)
            p.i("s_lshl_b32 s44, s%d, 12" % sWave)
            for g in range(1, SK):
                d = s.sXo + g - 1
                p.i("s_add_u32 s%d, s%d, %d" % (sT, sKk, g))
                p.i("s_and_b32 s%d, s%d, %d" % (sT, sT, SK - 1))
                p.i("s_add_u32 s%d, s%d, s46" % (sT, sT))
                p.i("s_mul_i32 s%d, s%d, %d" % (d, sT, (SK - 1) * 16384))
                p.i("s_add_u32 s%d, s%d, %d" % (d, d, (g - 1) * 16384))
                p.i("s_add_u32 s%d, s%d, s44" % (d, d))
            p.i("s_add_u32 s%d, s%d, s46" % (sT, sKk))
            p.i("s_mul_i32 s63, s%d, %d" % (sT, (SK - 1) * 16384))
            p.i("s_add_u32 s63, s63, s44")
            p.i("v_and_b32 v%d, 15, v0" % vT)
            p.i("s_lshl_b32 s%d, s42, 4" % sT)
            p.i("v_add_u32 v%d, s%d, v%d" % (vT + 10, sT, vT))
            p.i("v_lshlrev_b32 v%d, 2, v%d" % (vT + 10, vT + 10))
            p.i("s_lshl_b32 s64, s%d, 12" % sWave)
            p.i("s_add_u32 s64, s64, %d" % (s.R * s.STB))
            p.i("v_lshlrev_b32 v%d, 7, v%d" % (vT + 1, vT))
            p.i("v_add_u32 v%d, s64, v%d" % (vT + 1, vT + 1))
            p.i("v_bfe_u32 v%d, v0, 4, 1" % (vT + 2))
            p.i("v_lshl_add_u32 v%d, v%d, 3, v%d" % (vT + 1, vT + 2, vT + 1))
            p.i("v_lshrrev_b32 v%d, 5, v0" % (vT + 2))
            p.i("v_and_b32 v%d, 7, v0" % (vT + 3))
            p.i("v_xor_b32 v%d, v%d, v%d" % (vT + 2, vT + 2, vT + 3))
            for j in range(4):
                p.i("v_xor_b32 v%d, %d, v%d" % (vT + 3, 2 * j, vT + 2))
                p.i("v_lshl_add_u32 v%d, v%d, 4, v%d" % (vT + 4 + j, vT + 3, vT + 1))
            p.i("v_add_u32 v%d, s64, v1" % (vT + 8))
            p.i("v_lshrrev_b32 v%d, 3, v0" % (vT + 1))
            p.i("v_and_b32 v%d, 7, v0" % (vT + 2))
            p.i("v_xor_b32 v%d, v%d, v%d" % (vT + 2, vT + 2, vT + 1))
            p.i("v_lshlrev_b32 v%d, 14, v%d" % (vT + 1, vT + 1))
            p.i("v_lshl_add_u32 v%d, v%d, 4, v%d" % (vT, vT + 2, vT + 1))
            p.i("s_lshr_b32 s44, s42, 4")
            p.i("s_and_b32 s%d, s42, 15" % sT)
            p.i("s_lshl_b32 s%d, s%d, 7" % (sT, sT))
            p.i("s_add_u32 s44, s44, s%d" % sT)
            p.i("s_lshl_b32 s44, s44, 11")
            p.i("s_lshl_b32 s%d, s%d, 8" % (sT, sNt))
            p.i("s_add_u32 s44, s44, s%d" % sT)
            p.i("s_mul_i32 s%d, s%d, %d" % (sT, sKk, KF * 32))
            p.i("s_add_u32 s44, s44, s%d" % sT)
            p.i("s_mov_b32 s66, 0")
        vP = 84
        NU = s.NST * s.SUB * s.NF
        def rc_text(k):
            r = vRc + k * 4
            return "buffer_load_dwordx4 v[%d:%d], v1, s[%d:%d], s63 offen offset:%d%s" % (r, r + 3, s.sX, s.sX + 3, k * 1024, s.xfl)
        for k in range(4):
            n = NU - s.rc_ahead + k
            s.xops.append((n, n, [[], rc_text(k), ("rc", k), []]))
        F = [("wv", "side", [("ss", i) for i in range(NRB)] + [("h", i, pi) for i in range(NRB) for pi in range(ppg)] + [("m", i) for i in range(NRB)])]
        for i in range(NRB):
            b = vS + 4 * i
            F.append("v_add_f32 v%d, v%d, v%d" % (b, b, b + 1))
            F.append("v_add_f32 v%d, v%d, v%d" % (b + 2, b + 2, b + 3))
            F.append("v_add_f32 v%d, v%d, v%d" % (b, b, b + 2))
            reduce_g4(F.append, b, b + 1)
            F.append("v_mov_b32 v%d, 0x%x" % (b + 1, f2u(1e-5)))
            F.append("v_fmac_f32 v%d, 0x%x, v%d" % (b + 1, f2u(1.0 / 1024), b))
            F.append("v_rcp_f32 v%d, v%d" % (vR2 + i, b + 1))
        for i in range(NRB):
            for j in range(KF):
                h = vH + (i * ppg + j // 2) * 4 + 2 * (j % 2)
                t = vP + (i * KF + j) * 4
                F.append("v_lshlrev_b32 v%d, 16, v%d" % (t, h))
                F.append("v_and_b32 v%d, 0xffff0000, v%d" % (t + 1, h))
                F.append("v_lshlrev_b32 v%d, 16, v%d" % (t + 2, h + 1))
                F.append("v_and_b32 v%d, 0xffff0000, v%d" % (t + 3, h + 1))
                for r in range(4): F.append("v_add_f32 v%d, v%d, v%d" % (t + r, t + r, vM + i))
        s.side_fill = (NU - 56, F)
        def tail(e):
            def recv():
                for k in range(4): e.vm(rc_text(k), ("rc2", k))
            for i in range(NRB):
                for j in range(KF):
                    c = s.acc(j, i)
                    t = vP + (i * KF + j) * 4
                    for r in range(4): e.i("v_fmac_f32 v%d, v%d, v%d" % (t + r, c + r, vR2 + i))
            e.i("s_branch %s_chk" % s.name)
            e.label("%s_retry" % s.name)
            recv()
            e.label("%s_chk" % s.name)
            e.i("s_waitcnt vmcnt(0)")
            e.i("v_max_u32 v%d, v%d, v%d" % (vT + 2, vRc, vRc + 1))
            e.i("v_max_u32 v%d, v%d, v%d" % (vT + 3, vRc + 2, vRc + 3))
            for k in range(4, NRC, 4):
                e.i("v_max3_u32 v%d, v%d, v%d, v%d" % (vT + 2, vT + 2, vRc + k, vRc + k + 1))
                e.i("v_max3_u32 v%d, v%d, v%d, v%d" % (vT + 3, vT + 3, vRc + k + 2, vRc + k + 3))
            e.i("v_max_u32 v%d, v%d, v%d" % (vT + 2, vT + 2, vT + 3))
            e.i("v_cmp_eq_u32 vcc, -1, v%d" % (vT + 2))
            e.i("s_add_u32 s66, s66, 1")
            e.i("s_cmp_lt_u32 s66, 0x20000")
            e.i("s_cselect_b64 s[68:69], vcc, 0")
            e.i("s_cmp_lg_u64 s[68:69], 0")
            e.i("s_cbranch_scc1 %s_retry" % s.name)
            if s.stamp is not None: e.i("s_memtime s[%d:%d]" % (SB + 28, SB + 29))
            for i in range(NRB):
                for j in range(KF):
                    r = vRc + (i * ppg + j // 2) * 4 + 2 * (j % 2)
                    t = vP + (i * KF + j) * 4
                    u = vH + 4 * (j % 2)
                    e.i("v_lshlrev_b32 v%d, 16, v%d" % (u, r))
                    e.i("v_and_b32 v%d, 0xffff0000, v%d" % (u + 1, r))
                    e.i("v_lshlrev_b32 v%d, 16, v%d" % (u + 2, r + 1))
                    e.i("v_and_b32 v%d, 0xffff0000, v%d" % (u + 3, r + 1))
                    for q in range(4): e.i("v_fmac_f32 v%d, v%d, v%d" % (t + q, u + q, vR2 + i))
                    e.i("v_cvt_pk_bf16_f32 v%d, v%d, v%d" % (t, t, t + 1))
                    e.i("v_cvt_pk_bf16_f32 v%d, v%d, v%d" % (t + 1, t + 2, t + 3))
                    e.i("ds_write_b64 v%d, v[%d:%d] offset:%d" % (vT + 4 + j, t, t + 1, i * 2048))
            e.i("s_waitcnt lgkmcnt(0)")
            for k in range(4):
                e.i("ds_read_b128 v[%d:%d], v%d offset:%d" % (vRc + 4 * k, vRc + 4 * k + 3, vT + 8, k * 1024))
            for k in range(4):
                e.i("s_waitcnt lgkmcnt(%d)" % (3 - k))
                e.vm("buffer_store_dwordx4 v[%d:%d], v%d, s[%d:%d], s44 offen" % (vRc + 4 * k, vRc + 4 * k + 3, vT, s.sO, s.sO + 3))
                if k < 3: e.i("s_add_u32 s44, s44, %d" % (8 * 16384))
        s.tail = tail
        s.emit_main(a, early, late)
        s.footer(a, s.aX, s.R * s.STB + 16384)
    def prof(s, N): return [N * k // 7 for k in range(1, 7)]
```

```python
import sys
from common import *
from gemm2 import *
from k1b import gen_k1
HEADER = """pre-LN FNet mixing + pre-LN SwiGLU FFN, gfx950. 4 launches:
k1: LayerNorm(x) + 1024-pt DFT along hidden (2-stage 32x32 MFMA factorisation) + radix-8 step of the sequence DFT
k2: remaining 256-pt part of the sequence DFT as GEMM with the input DFT matrices, residual, row-centering, row sum-of-squares
g3: gate/up GEMM + SiLU*up (LayerNorm scale folded in)
g4: down GEMM + residual"""
def build(stamp=False, c3={}, c4={}, c2={}, c1={}, split=True):
    a = Asm()
    gen_k1(a, stamp=0 if stamp else None, **c1)
    K2(stamp=1 if stamp else None, **c2).gen(a)
    c3 = dict(c3); c3.setdefault('fill', 4 * (c4.get('SK', 2) - 1) if split else 0)
    G3(stamp=2 if stamp else None, **c3).gen(a)
    (G4S if split else G4)(stamp=3 if stamp else None, **c4).gen(a)
    a.label('code_end')
    return a.text(HEADER)
if __name__ == "__main__":
    out = sys.argv[1] if len(sys.argv) > 1 else "sequential_preLN__spectral_fnet__swiglu_ffn__prompt.s"
    open(out, "w").write(build())
```

```python
from common import *
import math

def gen_k1(a, stamp=None, prefetch=1, codepf=True, selfpf=True, st_flags=" sc1", early_touch=True, wsf_flags=''):
    name = "k1_kernel"
    ZROW = 4608
    LX = 8 * ZROW
    LX0 = LX + 8 * 2048
    LDS = LX0 + 64
    sWave, sT = 24, 31
    sX, sV, sVM, sXM, sWs, sWF = 8, 12, 16, 20, 44, 48
    vRaw, vF, vWr, vWi, vWn, vTr, vTi, vXop, vD, vU = 4, 16, 32, 40, 48, 56, 72, 88, 96, 128
    vT = 144
    vJ = 160
    a.begin_kernel(name)
    a("s_cmp_ge_u32 s2, 256")
    a("s_cbranch_scc1 %s_end" % name)
    if stamp is not None: stamp_begin(a)
    a("s_load_dwordx2 s[36:37], s[0:1], 0")
    a("s_load_dwordx4 s[52:55], s[0:1], 8")
    a("s_load_dwordx2 s[40:41], s[0:1], 88")
    a("s_load_dwordx4 s[56:59], s[0:1], 48")
    if selfpf: self_code_touch(a, name, "%s_end" % name, vJ + 1, vJ, 4, 3)
    a("v_lshrrev_b32 v1, 6, v0")
    a("v_and_b32 v0, 63, v0")
    a("v_readfirstlane_b32 s%d, v1" % sWave)
    a("v_lshlrev_b32 v1, 4, v0")
    a("s_lshl_b32 s25, s%d, 8" % sWave)
    a("s_add_u32 s25, s25, s2")
    a("s_lshl_b32 s26, s25, 11")
    a("s_and_b32 s27, s2, 7")
    a("s_lshl_b32 s27, s27, 8")
    a("s_and_b32 s28, s2, 0xf8")
    a("s_add_u32 s27, s27, s28")
    a("s_add_u32 s27, s27, s%d" % sWave)
    a("s_lshr_b32 s28, s27, 4")
    a("s_lshl_b32 s28, s28, 4")
    a("v_and_b32 v2, 15, v0")
    a("v_add_u32 v%d, s28, v2" % vT)
    a("v_lshrrev_b32 v%d, 8, v%d" % (vT + 1, vT))
    a("v_and_b32 v%d, 255, v%d" % (vT, vT))
    a("v_lshl_add_u32 v%d, v%d, 3, v%d" % (vT, vT, vT + 1))
    a("v_lshlrev_b32 v%d, 12, v%d" % (vT, vT))
    a("v_lshrrev_b32 v%d, 4, v0" % (vT + 1))
    a("v_lshl_add_u32 v%d, v%d, 3, v%d" % (vT, vT + 1, vT))
    a("s_and_b32 s28, s27, 7")
    a("s_lshl_b32 s28, s28, 6")
    a("s_waitcnt lgkmcnt(0)")
    srd_off(a, sX, 36, 0, 2048 * 2048)
    a("buffer_load_dwordx4 v[%d:%d], v1, s[%d:%d], s26 offen" % (vRaw, vRaw + 3, sX, sX + 3))
    a("buffer_load_dwordx4 v[%d:%d], v1, s[%d:%d], s26 offen offset:1024" % (vRaw + 4, vRaw + 7, sX, sX + 3))
    a("s_bitcmp1_b32 s27, 3")
    a("s_cselect_b32 s%d, s54, s52" % sWs)
    a("s_cselect_b32 s%d, s55, s53" % (sWs + 1))
    a("s_and_b32 s%d, s%d, 0xffff" % (sWs + 1, sWs + 1))
    a("s_mov_b32 s%d, %d" % (sWs + 2, 2048 * 4096))
    a("s_mov_b32 s%d, 0x00020000" % (sWs + 3))
    a("buffer_load_dwordx2 v[12:13], v%d, s[%d:%d], s28 offen" % (vT, sWs, sWs + 3))
    a("buffer_load_dwordx2 v[14:15], v%d, s[%d:%d], s28 offen offset:32" % (vT, sWs, sWs + 3))
    srd_off(a, sV, 40, WS_V, 8 * MB)
    srd_off(a, sVM, 40, WS_VM, 8192)
    srd_off(a, sXM, 40, WS_XM, 8192)
    srd_off(a, sWF, 40, WS_WSF, 2 * MB)
    a("v_cvt_f32_u32 v%d, v2" % (vT + 2))
    a("v_lshlrev_b32 v%d, 2, v%d" % (vT + 1, vT + 1))
    a("v_cvt_f32_u32 v%d, v%d" % (vT + 3, vT + 1))
    for blk in range(2):
        a("v_add_f32 v%d, 0x%x, v%d" % (vT + 4, f2u(16.0 * blk), vT + 2))
        a("v_mul_f32 v%d, 0x%x, v%d" % (vT + 5, f2u(1.0 / 1024), vT + 4))
        a("v_mul_f32 v%d, 0x%x, v%d" % (vT + 4, f2u(1.0 / 32), vT + 4))
        for half in range(2):
            for rp in range(2):
                for q in range(2):
                    r = 2 * rp + q
                    a("v_add_f32 v%d, 0x%x, v%d" % (vT + 6, f2u(16.0 * half + r), vT + 3))
                    a("v_mul_f32 v%d, v%d, v%d" % (vT + 7, vT + 6, vT + 4))
                    a("v_mul_f32 v%d, v%d, v%d" % (vT + 6, vT + 6, vT + 5))
                    a("v_fract_f32 v%d, v%d" % (vT + 7, vT + 7))
                    a("v_cos_f32 v%d, v%d" % (vT + 8 + q, vT + 7))
                    a("v_sin_f32 v%d, v%d" % (vT + 10 + q, vT + 7))
                    a("v_cos_f32 v%d, v%d" % (vTr + (half * 2 + blk) * 4 + r, vT + 6))
                    a("v_sin_f32 v%d, v%d" % (vTi + (half * 2 + blk) * 4 + r, vT + 6))
                d = blk * 4 + half * 2 + rp
                a("v_cvt_pk_f16_f32 v%d, v%d, v%d" % (vWr + d, vT + 8, vT + 9))
                a("v_cvt_pk_f16_f32 v%d, v%d, v%d" % (vWn + d, vT + 10, vT + 11))
                a("v_xor_b32 v%d, 0x80008000, v%d" % (vWi + d, vWn + d))
    a("s_lshl_b32 s29, s%d, 11" % sWave)
    a("s_add_u32 s29, s29, %d" % LX)
    a("v_add_u32 v%d, s29, v1" % (vT + 12))
    a("v_lshrrev_b32 v%d, 2, v0" % (vT + 13))
    a("v_lshlrev_b32 v%d, 6, v%d" % (vT + 13, vT + 13))
    a("v_and_b32 v%d, 3, v0" % (vT + 14))
    a("v_lshl_add_u32 v%d, v%d, 3, v%d" % (vT + 13, vT + 14, vT + 13))
    a("v_add_u32 v%d, s29, v%d" % (vT + 13, vT + 13))
    a("v_mul_u32_u24 v%d, 144, v2" % (vT + 14))
    a("v_lshl_add_u32 v%d, v%d, 2, v%d" % (vT + 14, vT + 1, vT + 14))
    a("s_mul_i32 s30, s%d, %d" % (sWave, ZROW))
    a("v_add_u32 v%d, s30, v%d" % (vT + 14, vT + 14))
    a("s_and_b32 s30, s%d, 3" % sWave)
    a("s_lshl_b32 s%d, s30, 6" % sT)
    a("v_and_b32 v%d, 31, v0" % (vT + 8))
    a("v_lshrrev_b32 v%d, 5, v0" % (vT + 9))
    a("v_lshl_add_u32 v%d, v%d, 1, v%d" % (vT + 10, vT + 8, vT + 9))
    a("v_add_u32 v%d, s%d, v%d" % (vT + 10, sT, vT + 10))
    a("v_lshrrev_b32 v%d, 3, v%d" % (vT + 11, vT + 10))
    a("v_add_u32 v%d, v%d, v%d" % (vT + 10, vT + 10, vT + 11))
    a("v_lshlrev_b32 v%d, 4, v%d" % (vT + 15, vT + 10))
    a("v_lshrrev_b32 v%d, 3, v%d" % (vT + 10, vT + 8))
    a("v_lshlrev_b32 v%d, 16, v%d" % (vT + 10, vT + 10))
    a("v_and_b32 v%d, 7, v0" % (vT + 11))
    a("v_lshl_add_u32 v%d, v%d, 4, v%d" % (vT + 10, vT + 11, vT + 10))
    a("v_lshl_add_u32 v%d, v%d, 15, v%d" % (vT + 10, vT + 9, vT + 10))
    a("s_lshl_b32 s30, s30, 18")
    a("v_add_u32 v3, s30, v%d" % (vT + 10))
    a("s_and_b32 s26, s2, 0xc0")
    a("s_and_b32 s%d, s2, 7" % sT)
    a("s_lshl_b32 s%d, s%d, 3" % (sT, sT))
    a("s_add_u32 s26, s26, s%d" % sT)
    a("s_bfe_u32 s%d, s2, 0x30003" % sT)
    a("s_add_u32 s26, s26, s%d" % sT)
    a("s_lshl_b32 s26, s26, 7")
    a("s_and_b32 s%d, s25, 7" % sT)
    a("s_lshl_b32 s%d, s%d, 8" % (sT, sT))
    a("s_lshr_b32 s33, s25, 3")
    a("s_add_u32 s33, s33, s%d" % sT)
    a("s_lshl_b32 s33, s33, 2")
    a("s_lshr_b32 s35, s2, 3")
    a("s_lshl_b32 s35, s35, 3")
    a("s_add_u32 s35, s35, s%d" % sWave)
    if prefetch:
        a("s_bitcmp1_b32 s35, 7")
        a("s_cselect_b32 s64, s58, s56")
        a("s_cselect_b32 s65, s59, s57")
        a("s_and_b32 s65, s65, 0xffff")
        a("s_mov_b32 s66, %d" % (1024 * 7168))
        a("s_mov_b32 s67, 0x00020000")
        a("s_and_b32 s29, s35, 127")
        a("s_mul_i32 s29, s29, %d" % (4 * 7168))
        a("s_and_b32 s34, s2, 7")
        a("s_mul_i32 s34, s34, 896")
        a("s_add_u32 s29, s29, s34")
        a("v_mul_u32_u24 v%d, 9363, v0" % (vJ + 2))
        a("v_lshrrev_b32 v%d, 16, v%d" % (vJ + 2, vJ + 2))
        a("v_mul_u32_u24 v%d, %d, v%d" % (vJ + 2, 7168 - 7 * 128, vJ + 2))
        a("v_lshl_add_u32 v%d, v0, 7, v%d" % (vJ + 2, vJ + 2))
        a("v_cmp_lt_u32 vcc, 27, v0")
        a("v_mov_b32 v%d, 0x40000000" % (vJ + 3))
        a("s_nop 0")
        a("v_cndmask_b32 v%d, v%d, v%d, vcc" % (vJ + 2, vJ + 2, vJ + 3))
    if codepf:
        a("s_getpc_b64 s[62:63]")
        a.label("k1_pc2")
        a("s_add_u32 s62, s62, k2_kernel - k1_pc2")
        a("s_addc_u32 s63, s63, 0")
        a("s_min_u32 s34, s35, (code_end - k2_kernel) / 8192 - 1")
        a("s_lshl_b32 s34, s34, 13")
        a("v_lshlrev_b32 v%d, 7, v0" % (vJ + 3))
        a("v_add_u32 v%d, s34, v%d" % (vJ + 3, vJ + 3))
    if stamp is not None: stamp_mid(a, 3)
    npf = 0
    def touches():
        n = 0
        if codepf:
            a("global_load_dword v%d, v%d, s[62:63]" % (vJ, vJ + 3)); n += 1
        if prefetch:
            a("buffer_load_dword v%d, v%d, s[64:67], s29 offen" % (vJ, vJ + 2)); n += 1
        return n
    if early_touch: npf = touches()
    a("s_waitcnt vmcnt(%d)" % (2 + npf))
    if not early_touch: npf = touches()
    a("v_readfirstlane_b32 s30, v%d" % vRaw)
    for k in range(8):
        a("v_lshlrev_b32 v%d, 16, v%d" % (vF + 2 * k, vRaw + k))
        a("v_and_b32 v%d, 0xffff0000, v%d" % (vF + 2 * k + 1, vRaw + k))
    a("s_lshl_b32 s30, s30, 16")
    for k in range(16):
        a("v_subrev_f32 v%d, s30, v%d" % (vF + k, vF + k))
    s0 = vT
    a("v_add_f32 v%d, v%d, v%d" % (s0, vF, vF + 1))
    a("v_mul_f32 v%d, v%d, v%d" % (s0 + 2, vF, vF))
    a("v_add_f32 v%d, v%d, v%d" % (s0 + 1, vF + 2, vF + 3))
    a("v_mul_f32 v%d, v%d, v%d" % (s0 + 3, vF + 1, vF + 1))
    for k in range(2, 16, 2):
        if k >= 4:
            a("v_add_f32 v%d, v%d, v%d" % (s0, s0, vF + k))
            a("v_add_f32 v%d, v%d, v%d" % (s0 + 1, s0 + 1, vF + k + 1))
        a("v_fmac_f32 v%d, v%d, v%d" % (s0 + 2, vF + k, vF + k))
        a("v_fmac_f32 v%d, v%d, v%d" % (s0 + 3, vF + k + 1, vF + k + 1))
    a("v_add_f32 v%d, v%d, v%d" % (s0, s0, s0 + 1))
    a("v_add_f32 v%d, v%d, v%d" % (s0 + 2, s0 + 2, s0 + 3))
    for sh in (8, 4, 2, 1):
        a("s_nop 0")
        a("v_add_f32_dpp v%d, v%d, v%d row_ror:%d row_mask:0xf bank_mask:0xf" % (s0, s0, s0, sh))
        a("v_add_f32_dpp v%d, v%d, v%d row_ror:%d row_mask:0xf bank_mask:0xf" % (s0 + 2, s0 + 2, s0 + 2, sh))
    for op in ("v_permlane32_swap_b32", "v_permlane16_swap_b32"):
        a("v_mov_b32 v%d, v%d" % (s0 + 1, s0))
        a("v_mov_b32 v%d, v%d" % (s0 + 3, s0 + 2))
        a("s_nop 0")
        a("%s v%d, v%d" % (op, s0, s0 + 1))
        a("%s v%d, v%d" % (op, s0 + 2, s0 + 3))
        a("v_add_f32 v%d, v%d, v%d" % (s0, s0, s0 + 1))
        a("v_add_f32 v%d, v%d, v%d" % (s0 + 2, s0 + 2, s0 + 3))
    a("v_mul_f32 v%d, 0x%x, v%d" % (s0, f2u(1.0 / 1024), s0))
    a("v_mul_f32 v%d, 0x%x, v%d" % (s0 + 2, f2u(1.0 / 1024), s0 + 2))
    a("v_fma_f32 v%d, -v%d, v%d, v%d" % (s0 + 2, s0, s0, s0 + 2))
    a("v_max_f32 v%d, 0, v%d" % (s0 + 2, s0 + 2))
    a("v_add_f32 v%d, 0x%x, v%d" % (s0 + 2, f2u(1e-5), s0 + 2))
    a("v_rsq_f32 v%d, v%d" % (s0 + 3, s0 + 2))
    a("v_add_f32 v%d, s30, v%d" % (s0 + 4, s0))
    a("v_mul_f32 v%d, v%d, v%d" % (s0 + 1, s0, s0 + 3))
    for k in range(16):
        a("v_fma_f32 v%d, v%d, v%d, -v%d" % (vF + k, vF + k, s0 + 3, s0 + 1))
    for k in range(8):
        a("v_cvt_pk_f16_f32 v%d, v%d, v%d" % (vRaw + k, vF + 2 * k, vF + 2 * k + 1))
    a("ds_write_b128 v%d, v[%d:%d]" % (vT + 12, vRaw, vRaw + 3))
    a("ds_write_b128 v%d, v[%d:%d] offset:1024" % (vT + 12, vRaw + 4, vRaw + 7))
    a("v_mov_b32 v%d, 0" % (s0 + 5))
    a("buffer_store_dword v%d, v%d, s[%d:%d], s33 offen" % (s0 + 4, s0 + 5, sXM, sXM + 3))
    a("v_readfirstlane_b32 s30, v%d" % vF)
    a("s_lshl_b32 s%d, s%d, 2" % (sT, sWave))
    a("s_add_u32 s%d, s%d, %d" % (sT, sT, LX0))
    a("s_waitcnt lgkmcnt(0)")
    for ib in range(2):
        for h in range(2):
            a("ds_read_b64_tr_b16 v[%d:%d], v%d offset:%d" % (vXop + ib * 4 + 2 * h, vXop + ib * 4 + 2 * h + 1, vT + 13, h * 1024 + ib * 32))
    a("v_mov_b32 v%d, s%d" % (s0 + 6, sT))
    a("v_mov_b32 v%d, s30" % (s0 + 7))
    a("ds_write_b32 v%d, v%d" % (s0 + 6, s0 + 7))
    a("s_waitcnt vmcnt(%d)" % (1 + npf))
    for k in range(4):
        a("v_lshlrev_b32 v%d, 16, v%d" % (vF + 2 * k, 12 + k))
        a("v_and_b32 v%d, 0xffff0000, v%d" % (vF + 2 * k + 1, 12 + k))
    for k in range(4):
        a("v_cvt_pk_f16_f32 v%d, v%d, v%d" % (12 + k, vF + 2 * k, vF + 2 * k + 1))
    a("s_lshl_b32 s27, s27, 10")
    a("buffer_store_dwordx4 v[12:15], v1, s[%d:%d], s27 offen%s" % (sWF, sWF + 3, wsf_flags))
    if stamp is not None: stamp_mid(a, 0)
    a("s_waitcnt lgkmcnt(0)")
    D1 = lambda ib, jb, p: vD + ((ib * 2 + jb) * 2 + p) * 4
    for jb in range(2):
        for ib in range(2):
            for p in range(2):
                w = (vWr if p == 0 else vWi) + jb * 4
                a("v_mfma_f32_16x16x32_f16 v[%d:%d], v[%d:%d], v[%d:%d], 0" % (D1(ib, jb, p), D1(ib, jb, p) + 3, vXop + ib * 4, vXop + ib * 4 + 3, w, w + 3))
    a("s_nop 3")
    D2 = lambda jb, fb, p: 16 + ((fb) * 2 + p) * 4 if jb == 0 else vD + ((fb) * 2 + p) * 4 * 0 + (0)
    U_ = lambda jb, p: vU + (jb * 2 + p) * 4
    def D2(jb, fb, p):
        if jb == 0: return 16 + (fb * 2 + p) * 4
        return D1(fb, 0, p)
    for jb in range(2):
        for ib in range(2):
            for r in range(4):
                ur, ui = D1(ib, jb, 0) + r, D1(ib, jb, 1) + r
                c, s_ = vTr + (ib * 2 + jb) * 4 + r, vTi + (ib * 2 + jb) * 4 + r
                a("v_mul_f32 v%d, v%d, v%d" % (vT + r, ur, c))
                a("v_mul_f32 v%d, v%d, v%d" % (vT + 4 + r, ui, c))
                a("v_fmac_f32 v%d, v%d, v%d" % (vT + r, ui, s_))
                a("v_fma_f32 v%d, -v%d, v%d, v%d" % (vT + 4 + r, ur, s_, vT + 4 + r))
            for p in range(2):
                u = U_(jb, p) + ib * 2
                a("v_cvt_pk_f16_f32 v%d, v%d, v%d" % (u, vT + 4 * p, vT + 4 * p + 1))
                a("v_cvt_pk_f16_f32 v%d, v%d, v%d" % (u + 1, vT + 4 * p + 2, vT + 4 * p + 3))
        a("s_nop 1")
        for fb in range(2):
            d = D2(jb, fb, 0)
            a("v_mfma_f32_16x16x32_f16 v[%d:%d], v[%d:%d], v[%d:%d], 0" % (d, d + 3, U_(jb, 0), U_(jb, 0) + 3, vWr + fb * 4, vWr + fb * 4 + 3))
            a("v_mfma_f32_16x16x32_f16 v[%d:%d], v[%d:%d], v[%d:%d], v[%d:%d]" % (d, d + 3, U_(jb, 1), U_(jb, 1) + 3, vWn + fb * 4, vWn + fb * 4 + 3, d, d + 3))
            d = D2(jb, fb, 1)
            a("v_mfma_f32_16x16x32_f16 v[%d:%d], v[%d:%d], v[%d:%d], 0" % (d, d + 3, U_(jb, 0), U_(jb, 0) + 3, vWi + fb * 4, vWi + fb * 4 + 3))
            a("v_mfma_f32_16x16x32_f16 v[%d:%d], v[%d:%d], v[%d:%d], v[%d:%d]" % (d, d + 3, U_(jb, 1), U_(jb, 1) + 3, vWr + fb * 4, vWr + fb * 4 + 3, d, d + 3))
    for jb in range(2):
        if jb == 1: a("s_nop 1")
        for fb in range(2):
            o = vRaw + fb * 4 if jb == 0 else vXop + fb * 4
            for p in range(2):
                d = D2(jb, fb, p)
                a("v_cvt_pk_f16_f32 v%d, v%d, v%d" % (o + 2 * p, d, d + 1))
                a("v_cvt_pk_f16_f32 v%d, v%d, v%d" % (o + 2 * p + 1, d + 2, d + 3))
            a("ds_write_b128 v%d, v[%d:%d] offset:%d" % (vT + 14, o, o + 3, fb * 16 * 144 + jb * 64))
    a("s_waitcnt lgkmcnt(0)")
    a("s_barrier")
    if stamp is not None: stamp_mid(a, 1)
    Z = lambda k: 16 + k * 4
    for k in (0, 4, 2, 6, 1, 5, 3, 7):
        a("ds_read_b128 v[%d:%d], v%d offset:%d" % (Z(k), Z(k) + 3, vT + 15, k * ZROW))
    def pk(d, x, y, nx=0, ny=0):
        m = " neg_lo:[%d,%d] neg_hi:[%d,%d]" % (nx, ny, nx, ny) if (nx or ny) else ""
        a("v_pk_add_f16 v%d, v%d, v%d%s" % (d, x, y, m))
    P = lambda k: 48 + k * 4
    X = lambda m: 64 + m * 4
    def dft4_store(t1_of_m, b):
        for h in range(2):
            for p in range(2):
                (r0, n0), (r2, n2) = b[0][p], b[2][p]
                (r1, n1), (r3, n3) = b[1][p], b[3][p]
                pk(P(0) + 2 * p + h, r0 + h, r2 + h, n0, n2)
                pk(P(1) + 2 * p + h, r0 + h, r2 + h, n0, 1 - n2)
                pk(P(2) + 2 * p + h, r1 + h, r3 + h, n1, n3)
                pk(P(3) + 2 * p + h, r1 + h, r3 + h, n1, 1 - n3)
        for m in range(4):
            for h in range(2):
                re, im = 0 + h, 2 + h
                if m == 0:
                    pk(X(0) + re, P(0) + re, P(2) + re); pk(X(0) + im, P(0) + im, P(2) + im, 1, 1)
                elif m == 2:
                    pk(X(2) + re, P(0) + re, P(2) + re, 0, 1); pk(X(2) + im, P(2) + im, P(0) + im, 0, 1)
                elif m == 1:
                    pk(X(1) + re, P(1) + re, P(3) + im); pk(X(1) + im, P(3) + re, P(1) + im, 0, 1)
                else:
                    pk(X(3) + re, P(1) + re, P(3) + im, 0, 1); pk(X(3) + im, P(1) + im, P(3) + re, 1, 1)
            a("s_add_u32 s30, s26, 0x%x" % (t1_of_m(m) * MB))
            a("s_nop 0")
            a("v_permlane32_swap_b32 v%d, v%d" % (X(m), X(m) + 2))
            a("v_permlane32_swap_b32 v%d, v%d" % (X(m) + 1, X(m) + 3))
            a("buffer_store_dwordx4 v[%d:%d], v3, s[%d:%d], s30 offen%s" % (X(m), X(m) + 3, sV, sV + 3, st_flags))
    a("s_cmp_ge_u32 s%d, 4" % sWave)
    a("s_cbranch_scc1 %s_odd" % name)
    for n, k in enumerate((0, 2, 1, 3)):
        a("s_waitcnt lgkmcnt(%d)" % (6 - 2 * n))
        for c in range(4): pk(Z(k) + c, Z(k) + c, Z(k + 4) + c)
    dft4_store(lambda m: 2 * m, [((Z(k), 0), (Z(k) + 2, 0)) for k in range(4)])
    a("s_cmp_lg_u32 s%d, 0" % sWave)
    a("s_cbranch_scc1 %s_done" % name)
    a("v_mov_b32 v16, %d" % LX0)
    a("ds_read_b128 v[20:23], v16")
    a("ds_read_b128 v[24:27], v16 offset:16")
    a("v_and_b32 v17, 7, v0")
    a("v_cvt_f32_u32 v18, v17")
    a("v_mul_f32 v18, 0x%x, v18" % f2u(0.125))
    a("v_bfe_u32 v19, v0, 3, 1")
    a("v_cvt_f32_u32 v28, v19")
    a("v_mul_f32 v28, 0x%x, v28" % f2u(-0.25))
    a("v_mov_b32 v29, 0")
    for k in range(8):
        a("v_mov_b32 v31, 0x%x" % f2u(float(k)))
        a("v_fma_f32 v%d, v18, v31, v28" % (32 + k))
        a("v_fract_f32 v%d, v%d" % (32 + k, 32 + k))
        a("v_cos_f32 v%d, v%d" % (32 + k, 32 + k))
    a("s_waitcnt lgkmcnt(0)")
    for k in range(8):
        a("v_fmac_f32 v29, v%d, v%d" % (32 + k, 20 + k))
    a("v_cvt_pk_f16_f32 v29, v29, v29")
    a("s_lshr_b32 s26, s2, 5")
    a("s_lshl_b32 s26, s26, 6")
    a("s_bfe_u32 s%d, s2, 0x20002" % sT)
    a("s_lshl_b32 s%d, s%d, 4" % (sT, sT))
    a("s_add_u32 s26, s26, s%d" % sT)
    a("s_bfe_u32 s%d, s2, 0x10004" % sT)
    a("s_lshl_b32 s%d, s%d, 3" % (sT, sT))
    a("s_add_u32 s26, s26, s%d" % sT)
    a("s_and_b32 s%d, s2, 3" % sT)
    a("s_lshl_b32 s%d, s%d, 1" % (sT, sT))
    a("s_add_u32 s26, s26, s%d" % sT)
    a("v_lshlrev_b32 v17, 10, v17")
    a("v_lshl_add_u32 v17, v19, 9, v17")
    a("buffer_store_short v29, v17, s[%d:%d], s26 offen" % (sVM, sVM + 3))
    a("s_branch %s_done" % name)
    a.label("%s_odd" % name)
    import numpy as np
    isq = int(np.float16(math.sqrt(0.5)).view(np.uint16))
    a("s_mov_b32 s29, 0x%x" % (isq | (isq << 16)))
    for n, k in enumerate((0, 2, 1, 3)):
        a("s_waitcnt lgkmcnt(%d)" % (6 - 2 * n))
        for c in range(4): pk(Z(k) + c, Z(k) + c, Z(k + 4) + c, 0, 1)
        if k in (1, 3):
            for h in range(2):
                dr, di = Z(k) + h, Z(k) + 2 + h
                pk(Z(k + 4) + h, dr, di)
                pk(Z(k + 4) + 2 + h, di, dr, 0, 1)
            for c in range(4):
                a("v_pk_mul_f16 v%d, v%d, s29" % (Z(k + 4) + c, Z(k + 4) + c))
    b = [((Z(0), 0), (Z(0) + 2, 0)), ((Z(5), 0), (Z(5) + 2, 0)), ((Z(2) + 2, 0), (Z(2), 1)), ((Z(7) + 2, 0), (Z(7), 1))]
    dft4_store(lambda m: 2 * m + 1, b)
    a.label("%s_done" % name)
    if stamp is not None:
        stamp_mid(a, 2); stamp_end(a, 40, stamp, sWave)
    a.label("%s_end" % name)
    a.end_kernel(name, 164, 0, 102)
    a.launch(name, 256, 512, LDS)
```

```python
from common import *

class Gemm2:
    def __init__(s, name, NRB, NF, SUB, NST, STB, R, AR, PD, ndma, VACC, stamp=None, skip=(), npro=0, rate=1, st_flags="", LA=None, selfpf=True):
        s.name, s.NRB, s.NF, s.SUB, s.NST, s.STB, s.R, s.AR, s.PD, s.ndma, s.VACC = name, NRB, NF, SUB, NST, STB, R, AR, PD, ndma, VACC
        s.stamp, s.skip, s.npro, s.rate, s.st_flags = stamp, skip, npro, rate, st_flags
        s.LA = LA
        s.selfpf = selfpf
        s.vJunk = 31
        s.dt = 'bf16'
        s.vCode, s.sCode, s.retouch = 28, 4, ()
        s.xbar_after = ()
        s.NB = PD + 1
        s.NACC = NF * NRB * 4
        s.vA = [2 + i for i in range(NRB)]
        s.vD = [6 + i for i in range(ndma)]
        s.spb = 65536 // STB
        s.nbase = -(-R // s.spb)
        s.vB = [13 + k for k in range(s.nbase)]
        assert s.nbase <= 3
        s.aBbase = AR * SUB * NRB * 4
        s.aX = s.aBbase + s.NB * 4
        s.sA, s.sW, s.sO, s.sS = 8, 12, 16, 20
        s.sWave, s.sDoff, s.sAoff, s.sLdsW, s.sT = 24, 25, 26, 28, 31
        s.vpm = 2
    def acc(s, j, i): return s.VACC + (j * s.NRB + i) * 4
    def aA(s, q, i): return ((q % (s.AR * s.SUB)) * s.NRB + i) * 4
    def unit_order(s): return [(st, sub, j) for st in range(s.NST) for sub in range(s.SUB) for j in range(s.NF)]
    def extra_unit(s, p, q): pass
    def post_sync0(s, p): pass
    def is_late(s, st, n): return False
    def late_steps(s, units): return {}
    def valu_ready(s, units): return {}
    def extra_vm(s): return []
    def dma_ops(s, st):
        ops = []
        for n in range(s.ndma):
            pre, t = s.dma_text(st, n)
            ops.append([pre, t, ("D", st, n), []])
        if st + 1 < s.NST and s.dma_step(st) is not None:
            ops[-1][3] = ["s_add_u32 s%d, s%d, %d" % (s.sDoff, s.sDoff, s.dma_step(st))]
        return ops
    def a_ops(s, q):
        ops = []
        for i in range(s.NRB):
            r = s.aA(q, i)
            t = "buffer_load_dwordx4 a[%d:%d], v%d, s[%d:%d], s%d offen offset:%d" % (r, r + 3, s.vA[i], s.sA, s.sA + 3, s.sAoff, (q % 4) * 1024)
            ops.append([[], t, ("A", q, i), []])
        if q % 4 == 3:
            ops[-1][3] = ["s_add_u32 s%d, s%d, 4096" % (s.sAoff, s.sAoff)]
        return ops
    def put(s, p, op):
        pre, t, tag, post = op
        for x in pre: p.i(x)
        if pre: p.i("s_nop 0")
        p.vm(t, tag)
        for x in post: p.i(x)
    def base_setup(s, a):
        for k in range(1, s.nbase):
            a("v_add_u32 v%d, %d, v%d" % (s.vB[k], k * s.spb * s.STB, s.vB[0]))
    def emit_main(s, a, early, late):
        units = s.unit_order()
        N = len(units)
        PD = s.PD
        first_st, last_st, first_q, last_q = {}, {}, {}, {}
        for n, (st, sub, j) in enumerate(units):
            q = st * s.SUB + sub
            first_st.setdefault(st, n); last_st[st] = n
            first_q.setdefault(q, n); last_q[q] = n
        sync_step = {st: first_st[st] - PD for st in range(s.NST)}
        sync_at = {}
        for st, n in sync_step.items(): sync_at.setdefault(n, []).append(st)
        xbar = [last_st[st] + 1 for st in s.xbar_after]
        bsteps = sorted(list(sync_step.values()) + xbar)
        qd, qa, qd2 = [], [], []
        late_steps = {st: n - PD for st, n in s.late_steps(units).items()}
        late_at = {}
        for st, n in late_steps.items(): late_at.setdefault(n, []).append(st)
        for st in range(s.NST):
            if st < s.R: e = -10**9
            else:
                L = last_st[st - s.R]
                c = [b for b in bsteps if b > L]
                e = c[0]
                assert e < sync_step[st], ("dma cannot be issued before its sync", st)
            if s.LA is not None: e = max(e, sync_step[st] - s.LA)
            for op in s.dma_ops(st):
                late_ = s.is_late(st, op[2][2])
                (qd2 if late_ else qd).append((e, late_steps[st] if late_ else sync_step[st], op))
        qd += qd2
        nq = s.NST * s.SUB
        for q in range(nq):
            e = -10**9 if q < s.AR * s.SUB else last_q[q - s.AR * s.SUB] + 1
            assert e <= first_q[q], ("A ring too small", q)
            if s.LA is not None: e = max(e, first_q[q] - s.LA)
            for op in s.a_ops(q): qa.append((e, first_q[q], op))
        qx = list(s.extra_vm())
        if s.selfpf:
            for k, n in enumerate(s.retouch):
                qx.append((n, n, [[], "global_load_dword v%d, v%d, s[%d:%d]" % (s.vJunk, s.vCode, s.sCode, s.sCode + 1), ("C", k), []]))
        qx = sorted(qx, key=lambda x: x[0])
        def next_vm(step):
            c = []
            for qq in (qd, qa, qx):
                if qq and qq[0][0] <= step: c.append((qq[0][1], id(qq), qq))
            if not c: return None
            c.sort(key=lambda x: x[0])
            return c[0][2].pop(0)[2]
        p = Stream()
        p.i("s_mov_b32 s%d, 0" % s.sAoff)
        early(p)
        while (qd and qd[0][1] < 0) or (qa and qa[0][1] <= 0):
            s.put(p, next_vm(-1))
        for _ in range(s.npro):
            op = next_vm(-1)
            if op: s.put(p, op)
        late(p)
        def sync(st):
            p.wv(("D", st), [("D", st, n) for n in range(s.ndma) if not s.is_late(st, n)])
            p.i("s_barrier")
        def rd(n, h):
            if n >= N: return
            st, sub, j = units[n]
            slot = st % s.R
            r = s.aBbase + (n % s.NB) * 4 + 2 * h
            p.ds("ds_read_b64_tr_b16 a[%d:%d], v%d offset:%d" % (r, r + 1, s.vB[slot // s.spb], (slot % s.spb) * s.STB + s.rd_off(sub, j, h)), ("B", n, h))
        for n in range(-PD, 0):
            for st in sync_at.get(n, []):
                sync(st)
                if st == 0: s.post_sync0(p)
            rd(n + PD, 0); rd(n + PD, 1)
        if s.stamp is not None: p.i("s_memtime s[%d:%d]" % (SB + 8, SB + 9))
        vr = s.valu_ready(units)
        vq = []
        seen_q = set()
        seen_j = set()
        credit = 0.0
        for n, (st, sub, j) in enumerate(units):
            q = st * s.SUB + sub
            vq += vr.get(n, [])
            if s.stamp is not None and n in s.prof(N): p.i("s_memtime s[%d:%d]" % (SB + 16 + 2 * s.prof(N).index(n), SB + 17 + 2 * s.prof(N).index(n)))
            if q not in seen_q:
                seen_q.add(q)
                p.wv(("A", q), [("A", q, i) for i in range(s.NRB)])
                s.extra_unit(p, q)
            p.wl(("B", n), [("B", n, 0), ("B", n, 1)])
            b = s.aBbase + (n % s.NB) * 4
            for i in range(s.NRB):
                c = s.acc(j, i)
                p.i("v_mfma_f32_16x16x32_%s v[%d:%d], a[%d:%d], a[%d:%d], %s" % (s.dt,
                    c, c + 3, b, b + 3, s.aA(q, i), s.aA(q, i) + 3, ("v[%d:%d]" % (c, c + 3)) if j in seen_j else "0"))
                if i == 0:
                    for st2 in sync_at.get(n, []): sync(st2)
                    if n in xbar: p.i("s_barrier")
                    if n in late_at:
                        p.wv(("Dlate", n), [("D", st2, k) for st2 in late_at[n] for k in range(s.ndma) if s.is_late(st2, k)])
                        p.i("s_barrier")
                    rd(n + PD, 0)
                    if s.NRB == 1: rd(n + PD, 1)
                elif i == 1:
                    rd(n + PD, 1)
                if i == s.NRB - 1:
                    seen_j.add(j)
                    credit = min(credit + s.rate, max(s.rate, 1.0) + 0.99)
                    if qx and qx[0][0] <= n and qx[0][1] <= n:
                        s.put(p, qx.pop(0)[2])
                    while credit >= 1.0:
                        op = next_vm(n)
                        if not op: break
                        s.put(p, op); credit -= 1.0
                for _ in range(s.vpm):
                    if vq:
                        x = vq.pop(0)
                        if isinstance(x, tuple): p.wv(x[1], x[2])
                        elif x.startswith("buffer_"): p.vm(x, None)
                        else: p.i(x)
        assert not qd and not qa and not qx
        if s.stamp is not None: p.i("s_memtime s[%d:%d]" % (SB + 10, SB + 11))
        p.i("s_nop 7")
        for k in sorted(vr):
            if k >= N: vq += vr[k]
        for x in vq:
            if x.startswith("buffer_"): p.vm(x, None)
            else: p.i(x)
        s.tail(p)
        res = resolve([p])
        emit(a, p, res, s.skip)
    def tail(s, p): pass
    def prof(s, N): return [N * k // 8 for k in range(1, 8)]
    def header(s, a):
        a.begin_kernel(s.name)
        a("s_cmp_ge_u32 s2, 256")
        a("s_cbranch_scc1 %s_end" % s.name)
        if s.stamp is not None: stamp_begin(a)
        if s.selfpf: self_code_touch(a, s.name, "%s_end" % s.name, s.vCode, s.vJunk, s.sCode, 2)
    def footer(s, a, nagpr, lds):
        if s.stamp is not None:
            stamp_mid(a, 2); stamp_end(a, 40, s.stamp, s.sWave)
        a.label("%s_end" % s.name)
        a.end_kernel(s.name, s.VACC + s.NACC, nagpr, 102)
        a.launch(s.name, 256, 256, lds)

def touch_ops(g, skarg, vtmp, vdst, ssrd=64, soff=68):
    L = []
    srd_off(L.append, ssrd, skarg, 0, 1024 * 7168)
    L.append("s_lshl_b32 s%d, s2, 2" % soff)
    L.append("s_add_u32 s%d, s%d, s%d" % (soff, soff, g.sWave))
    L.append("s_mul_i32 s%d, s%d, 7168" % (soff, soff))
    L.append("v_lshlrev_b32 v%d, 6, v0" % vtmp)
    ops = [[[], "buffer_load_dword v%d, v%d, s[%d:%d], s%d offen" % (vdst, vtmp, ssrd, ssrd + 3, soff), ("T", 0), []],
           [[], "buffer_load_dword v%d, v%d, s[%d:%d], s%d offen offset:3072" % (vdst, vtmp, ssrd, ssrd + 3, soff), ("T", 1), []]]
    return L, ops

class G3(Gemm2):
    def __init__(s, AR=4, PD=3, R=5, pf=(30, 24, 364, 1), retouch=(150, 300), tfl='', dfl='', xbar=(), pk=False, pf0=8, TS=3, vpm=2, fill=12, fill_flags="", **kw):
        s.fill = fill; s.fill_flags = fill_flags
        kw.setdefault("npro", 7); kw.setdefault("rate", 0.66); kw.setdefault("st_flags", " sc1")
        super().__init__("g3_kernel", NRB=4, NF=14, SUB=2, NST=16, STB=28672, R=R, AR=AR, PD=PD, ndma=7, VACC=32, **kw)
        s.pf, s.TS, s.vpm = pf, TS, vpm
        s.sCode, s.retouch = 56, retouch
        s.tfl, s.dfl = tfl, dfl
        s.xbar_after = xbar
        s.pk = pk
        s.pf0 = pf0
        s.pair_order = [0, 1, 2, 3, 4, 5, 6]
        s.vC1 = [16, 17, 18, 19]; s.vT = 20
    def dma_text(s, st, n):
        pre = ["s_add_u32 m0, s%d, %d" % (s.sLdsW, (st % s.R) * s.STB + (n // 4) * 4096)] if n % 4 == 0 else []
        return pre, "buffer_load_dwordx4 v%d, s[%d:%d], s%d offen offset:%d%s lds" % (s.vD[n], s.sW, s.sW + 3, s.sDoff, (n % 4) * 1024, s.dfl)
    def dma_step(s, st): return 64 * 7168
    def rd_off(s, sub, j, h):
        mat, jj = divmod(j, 7)
        return (sub * 2 + mat) * 7168 + h * 16 * 224 + jj * 32
    def unit_order(s):
        u = [(st, sub, j) for st in range(s.NST - s.TS) for sub in range(s.SUB) for j in range(s.NF)]
        for p_ in s.pair_order:
            for st in range(s.NST - s.TS, s.NST):
                for sub in range(s.SUB):
                    u += [(st, sub, p_), (st, sub, p_ + 7)]
        return u
    def epi_pair(s, j):
        L = []
        if j % 2 == 1: L.append("s_add_u32 s45, s44, %d" % ((j // 2) * 1024))
        if j == 6: L.append("s_mov_b32 s45, s46")
        for i in range(s.NRB):
            g, u = s.acc(j, i), s.acc(j + 7, i)
            t = s.vT + 4 * (i % 2)
            o = g if j % 2 == 0 else s.acc(j - 1, i) + 2
            c = s.vC1[i]
            if s.pk:
                sel = "op_sel:[0,%d] op_sel_hi:[1,%d]" % (c % 2, c % 2)
                for r in (0, 2): L.append("v_pk_mul_f32 v[%d:%d], v[%d:%d], v[%d:%d] %s" % (t + r, t + r + 1, g + r, g + r + 1, c & ~1, (c & ~1) + 1, sel))
                for r in range(4):
                    L.append("v_exp_f32 v%d, v%d" % (t + r, t + r))
                    if r % 2 == 1: L.append("v_pk_mul_f32 v[%d:%d], v[%d:%d], v[%d:%d]" % (g + r - 1, g + r, g + r - 1, g + r, u + r - 1, u + r))
                for r in (0, 2): L.append("v_pk_add_f32 v[%d:%d], v[%d:%d], 1.0 op_sel_hi:[1,0]" % (t + r, t + r + 1, t + r, t + r + 1))
                for r in range(4): L.append("v_rcp_f32 v%d, v%d" % (t + r, t + r))
                if i and (j % 2 == 1 or j == 6): L.append("s_add_u32 s45, s45, %d" % (112 * 1024))
                for r in (0, 2): L.append("v_pk_mul_f32 v[%d:%d], v[%d:%d], v[%d:%d]" % (g + r, g + r + 1, g + r, g + r + 1, t + r, t + r + 1))
            else:
                for r in range(4): L.append("v_mul_f32 v%d, v%d, v%d" % (t + r, g + r, c))
                for r in range(4):
                    L.append("v_exp_f32 v%d, v%d" % (t + r, t + r))
                    L.append("v_mul_f32 v%d, v%d, v%d" % (g + r, g + r, u + r))
                for r in range(4): L.append("v_add_f32 v%d, 1.0, v%d" % (t + r, t + r))
                for r in range(4): L.append("v_rcp_f32 v%d, v%d" % (t + r, t + r))
                if i and (j % 2 == 1 or j == 6): L.append("s_add_u32 s45, s45, %d" % (112 * 1024))
                for r in range(4): L.append("v_mul_f32 v%d, v%d, v%d" % (g + r, g + r, t + r))
            L.append("v_cvt_pk_bf16_f32 v%d, v%d, v%d" % (o, g, g + 1))
            L.append("v_cvt_pk_bf16_f32 v%d, v%d, v%d" % (o + 1, g + 2, g + 3))
            if j == 6:
                L.append("buffer_store_dwordx2 v[%d:%d], v1, s[%d:%d], s45 offen" % (o, o + 1, s.sO, s.sO + 3))
            elif j % 2 == 1:
                L.append("buffer_store_dwordx4 v[%d:%d], v1, s[%d:%d], s45 offen%s" % (o - 2, o + 1, s.sO, s.sO + 3, s.st_flags))
        return L
    def valu_ready(s, units):
        last = {}
        for n, (st, sub, j) in enumerate(units): last[j % 7] = n
        out = {last[j] + 3: s.epi_pair(j) for j in range(7)}
        L = [("wv", "ssw", [("ss", i) for i in range(s.NRB)])]
        for i in range(s.NRB):
            b = s.vT
            for r in range(4): L.append("v_accvgpr_read_b32 v%d, a%d" % (b + r, s.aX + 4 * i + r))
            L.append("v_add_f32 v%d, v%d, v%d" % (b, b, b + 1))
            L.append("v_add_f32 v%d, v%d, v%d" % (b + 2, b + 2, b + 3))
            L.append("v_add_f32 v%d, v%d, v%d" % (b, b, b + 2))
            reduce_g4(L.append, b, b + 1)
            L.append("v_mov_b32 v%d, 0x%x" % (b + 1, f2u(1e-5)))
            L.append("v_fmac_f32 v%d, 0x%x, v%d" % (b + 1, f2u(1.0 / 1024), b))
            L.append("v_rsq_f32 v%d, v%d" % (b + 1, b + 1))
            L.append("s_nop 0")
            L.append("v_mul_f32 v%d, 0x%x, v%d" % (s.vC1[i], f2u(-LOG2E), b + 1))
        out[28 * 9] = L
        return out
    def extra_vm(s):
        L = []
        for i in range(s.NRB):
            L.append((28 * 6 + 5 * i, 28 * 7, [[], "buffer_load_dwordx4 a[%d:%d], v29, s[%d:%d], s47 offen offset:%d" % (s.aX + 4 * i, s.aX + 4 * i + 3, s.sS, s.sS + 3, i * 1024), ("ss", i), []]))
        if s.fill:
            for k in range(s.fill):
                post = ["s_add_u32 s69, s69, 4096"] if k % 4 == 3 else []
                L.append((28 * 4 + 9 * k, 28 * 5 + 9 * k, [[], "buffer_store_dwordx4 a[%d:%d], v29, s[52:55], s69 offen offset:%d%s" % (s.aF, s.aF + 3, (k % 4) * 1024, s.fill_flags), ("F", k), post]))
        if s.pf:
            n0, dn, m0_, dm = s.pf
            for k in range(16 - s.pf0):
                n = n0 + k * dn
                L.append((n, n, [[], "buffer_load_dword v31, v30, s[4:7], s70 offen" + s.tfl, ("T2", k), ["s_add_u32 s70, s70, %d" % (64 * 7168)]]))
            for k in range(2):
                n = m0_ + k * dm
                L.append((n, n, [["v_lshrrev_b32 v30, 3, v0", "v_lshlrev_b32 v30, 10, v30", "v_lshl_add_u32 v30, v0, 7, v30"] if k == 0 else [], "buffer_load_dword v31, v30, s[64:67], s68 offen", ("T3", k), ["s_add_u32 s68, s68, %d" % (7 * 2048)]]))
        return L
    def gen(s, a):
        NRB, sT, sWave, vT = s.NRB, s.sT, s.sWave, s.vT
        sNt, sMt = 33, 34
        s.header(a)
        a("s_load_dwordx4 s[36:39], s[0:1], 48")
        a("s_load_dwordx2 s[40:41], s[0:1], 88")
        a("s_load_dwordx2 s[48:49], s[0:1], 64")
        a("v_lshrrev_b32 v1, 6, v0")
        a("v_and_b32 v0, 63, v0")
        a("v_readfirstlane_b32 s%d, v1" % sWave)
        a("s_and_b32 s%d, s2, 7" % sT)
        a("s_lshl_b32 s%d, s%d, 2" % (sNt, sT))
        a("s_lshr_b32 s%d, s2, 3" % sT)
        a("s_and_b32 s%d, s%d, 3" % (sMt, sT))
        a("s_add_u32 s%d, s%d, s%d" % (sNt, sNt, sMt))
        a("s_lshr_b32 s%d, s%d, 2" % (sMt, sT))
        a("s_lshl_b32 s%d, s%d, 4" % (sT, sMt))
        a("s_mul_i32 s42, s%d, %d" % (sWave, NRB))
        a("s_add_u32 s42, s42, s%d" % sT)
        a("s_lshl_b32 s43, s42, 15")
        a("v_lshlrev_b32 v1, 4, v0")
        for i in range(NRB):
            a("s_add_u32 s%d, s43, %d" % (sT, i * 32768))
            a("v_add_u32 v%d, s%d, v1" % (s.vA[i], sT))
        a("s_lshl_b32 s47, s42, 10")
        for i in range(7):
            a("v_add_u32 v%d, %d, v0" % (vT, 64 * i))
            a("v_mul_u32_u24 v%d, 4682, v%d" % (vT + 1, vT))
            a("v_lshrrev_b32 v%d, 16, v%d" % (vT + 1, vT + 1))
            a("v_mul_u32_u24 v%d, %d, v%d" % (vT + 1, 7168 - 14 * 16, vT + 1))
            a("v_lshl_add_u32 v%d, v%d, 4, v%d" % (s.vD[i], vT, vT + 1))
            if i % 4:
                a("v_subrev_u32 v%d, %d, v%d" % (s.vD[i], (i % 4) * 1024, s.vD[i]))
        a("s_and_b32 s%d, s%d, 1" % (sT, sWave))
        a("s_mul_i32 s%d, s%d, %d" % (s.sDoff, sT, 32 * 7168))
        a("s_mul_i32 s32, s%d, 224" % sNt)
        a("s_add_u32 s%d, s%d, s32" % (s.sDoff, s.sDoff))
        a("s_lshl_b32 s%d, s%d, 1" % (sT, sT))
        a("s_bfe_u32 s32, s%d, 0x10001" % sWave)
        a("s_add_u32 s32, s32, s%d" % sT)
        a("s_mul_i32 s%d, s32, 7168" % s.sLdsW)
        a("s_waitcnt lgkmcnt(0)")
        a("s_bitcmp1_b32 s%d, 1" % sWave)
        a("s_cselect_b32 s%d, s38, s36" % s.sW)
        a("s_cselect_b32 s%d, s39, s37" % (s.sW + 1))
        a("s_and_b32 s%d, s%d, 0xffff" % (s.sW + 1, s.sW + 1))
        a("s_mov_b32 s%d, %d" % (s.sW + 2, 1024 * 7168))
        a("s_mov_b32 s%d, 0x00020000" % (s.sW + 3))
        srd_off(a, s.sA, 40, WS_HC, 4 * MB)
        if s.stamp is not None: stamp_mid(a, 3)
        aSS = s.aX
        tl, s.tops = touch_ops(s, 48, 30, 31)
        def early(p): pass
        def late(p):
            srd_off(p.i, s.sS, 40, WS_SS, 2048 * 64)
            srd_off(p.i, s.sO, 40, WS_ACT, 2048 * 3584 * 2)
            p.i("v_lshrrev_b32 v%d, 2, v0" % vT)
            p.i("v_mul_u32_u24 v%d, 224, v%d" % (vT, vT))
            p.i("v_and_b32 v%d, 3, v0" % (vT + 1))
            p.i("v_lshl_add_u32 v%d, v%d, 3, v%d" % (s.vB[0], vT + 1, vT))
            s.base_setup(p.i)
            p.i("v_mov_b32 v29, v1")
            p.i("s_mul_i32 s43, s42, %d" % (112 * 1024))
            p.i("v_add_u32 v1, s43, v1")
            p.i("s_lshr_b32 s%d, s%d, 4" % (sT, sNt))
            p.i("s_mul_i32 s46, s%d, %d" % (sT, 56 * 1024))
            p.i("s_and_b32 s%d, s%d, 15" % (sT, sNt))
            p.i("s_mul_i32 s44, s%d, 3072" % sT)
            p.i("s_add_u32 s44, s44, s46")
            p.i("s_lshr_b32 s%d, s%d, 1" % (sT, sT))
            p.i("s_lshl_b32 s%d, s%d, 10" % (sT, sT))
            p.i("s_add_u32 s46, s46, s%d" % sT)
            p.i("s_and_b32 s%d, s%d, 1" % (sT, sNt))
            p.i("s_lshl_b32 s%d, s%d, 3" % (sT, sT))
            p.i("s_add_u32 s46, s46, s%d" % sT)
            p.i("s_add_u32 s46, s46, %d" % (48 * 1024))
            if s.pf:
                srd_off(p.i, 64, 48, 0, 1024 * 7168)
                p.i("v_lshlrev_b32 v30, 7, v0")
                p.i("v_cmp_lt_u32 vcc, 6, v0")
                p.i("v_mov_b32 v%d, 0x40000000" % vT)
                p.i("s_lshr_b32 s70, s2, 3")
                p.i("v_cndmask_b32 v30, v30, v%d, vcc" % vT)
                p.i("s_lshl_b32 s70, s70, 2")
                p.i("s_add_u32 s70, s70, s%d" % sWave)
                p.i("s_mul_i32 s68, s70, %d" % (14 * 2048))
                p.i("s_bfe_u32 s71, s2, 0x10002")
                p.i("s_mul_i32 s71, s71, %d" % (1792 * 2048))
                p.i("s_add_u32 s68, s68, s71")
                p.i("s_and_b32 s71, s2, 1")
                p.i("s_lshl_b32 s71, s71, 10")
                p.i("s_add_u32 s68, s68, s71")
                p.i("s_bitcmp1_b32 s70, 6")
                p.i("s_cselect_b32 s4, s38, s36")
                p.i("s_cselect_b32 s5, s39, s37")
                p.i("s_and_b32 s5, s5, 0xffff")
                p.i("s_mov_b32 s6, %d" % (1024 * 7168))
                p.i("s_mov_b32 s7, 0x00020000")
                p.i("s_and_b32 s70, s70, 63")
                p.i("s_mul_i32 s70, s70, 7168")
                p.i("s_and_b32 s71, s2, 7")
                p.i("s_mul_i32 s71, s71, 896")
                p.i("s_add_u32 s70, s70, s71")
                p.i("s_add_u32 s70, s70, %d" % (s.pf0 * 64 * 7168))
            if s.fill:
                srd_off(p.i, 52, 40, WS_XB, s.fill * MB)
                p.i("s_lshl_b32 s69, s2, 2")
                p.i("s_add_u32 s69, s69, s%d" % sWave)
                p.i("s_mul_i32 s69, s69, %d" % (s.fill * 1024))
                for r in range(4): p.i("v_accvgpr_write_b32 a%d, -1" % (s.aF + r))
        s.aF = aSS + 4 * NRB
        s.emit_main(a, early, late)
        s.footer(a, aSS + 4 * NRB + 4, s.R * s.STB)

class G4(Gemm2):
    def __init__(s, AR=4, PD=3, R=6, name="g4_kernel", NST=28, **kw):
        kw.setdefault("npro", 12)
        super().__init__(name, NRB=2, NF=4, SUB=4, NST=NST, STB=16896, R=R, AR=AR, PD=PD, ndma=4, VACC=64, **kw)
    def dma_text(s, st, n):
        pre = ["s_add_u32 m0, s%d, %d" % (s.sLdsW, (st % s.R) * s.STB)] if n == 0 else []
        return pre, "buffer_load_dwordx4 v%d, s[%d:%d], s%d offen offset:%d lds" % (s.vD[n], s.sW, s.sW + 3, s.sDoff, n * 1056)
    def dma_step(s, st): return 128 * 2048
    def rd_off(s, sub, j, h):
        return (sub // 2) * 8448 + (sub % 2) * 512 + h * 256 + j * 32
    def lane_addrs(s, a, vT):
        a("v_bfe_u32 v%d, v0, 2, 3" % vT)
        a("v_mul_u32_u24 v%d, 1056, v%d" % (vT, vT))
        a("v_lshrrev_b32 v%d, 5, v0" % (vT + 1))
        a("v_lshl_add_u32 v%d, v%d, 7, v%d" % (vT, vT + 1, vT))
        a("v_and_b32 v%d, 3, v0" % (vT + 1))
        a("v_lshl_add_u32 v%d, v%d, 3, v%d" % (s.vB[0], vT + 1, vT))
        s.base_setup(a)
    def extra_vm(s): return s.xops
    def gen(s, a):
        NRB, sT, sWave = s.NRB, s.sT, s.sWave
        vT = 20; vR2 = [16, 17]; vM = [18, 19]; vH = 32
        sNt, sMt, sH, sM = 33, 34, 48, 52
        s.header(a)
        a("s_load_dwordx4 s[36:39], s[0:1], 64")
        a("s_load_dwordx2 s[40:41], s[0:1], 88")
        a("v_lshrrev_b32 v1, 6, v0")
        a("v_and_b32 v0, 63, v0")
        a("v_readfirstlane_b32 s%d, v1" % sWave)
        a("s_bfe_u32 s%d, s2, 0x20001" % sT)
        a("s_lshl_b32 s%d, s%d, 2" % (sMt, sT))
        a("s_lshr_b32 s%d, s2, 6" % sT)
        a("s_add_u32 s%d, s%d, s%d" % (sMt, sMt, sT))
        a("s_and_b32 s%d, s2, 1" % sT)
        a("s_lshl_b32 s%d, s%d, 3" % (sNt, sT))
        a("s_bfe_u32 s%d, s2, 0x30003" % sT)
        a("s_add_u32 s%d, s%d, s%d" % (sNt, sNt, sT))
        a("s_lshl_b32 s42, s%d, 3" % sMt)
        a("s_lshl_b32 s%d, s%d, 1" % (sT, sWave))
        a("s_add_u32 s42, s42, s%d" % sT)
        a("s_mul_i32 s43, s42, %d" % (112 * 1024))
        a("v_lshlrev_b32 v1, 4, v0")
        for i in range(NRB):
            a("s_add_u32 s%d, s43, %d" % (sT, i * 112 * 1024))
            a("v_add_u32 v%d, s%d, v1" % (s.vA[i], sT))
        a("v_lshrrev_b32 v%d, 3, v0" % vT)
        a("v_lshlrev_b32 v%d, 14, v%d" % (vT, vT))
        a("v_and_b32 v%d, 7, v0" % (vT + 1))
        a("v_lshl_add_u32 v%d, v%d, 4, v%d" % (s.vD[0], vT + 1, vT))
        for n in range(1, 4):
            a("v_add_u32 v%d, %d, v%d" % (s.vD[n], n * (2048 - 1056), s.vD[0]))
        a("s_mul_i32 s%d, s%d, 4224" % (s.sLdsW, sWave))
        a("s_lshr_b32 s%d, s%d, 1" % (sT, sWave))
        a("s_lshl_b32 s%d, s%d, 17" % (s.sDoff, sT))
        a("s_and_b32 s%d, s%d, 1" % (sT, sWave))
        a("s_lshl_b32 s%d, s%d, 13" % (sT, sT))
        a("s_add_u32 s%d, s%d, s%d" % (s.sDoff, s.sDoff, sT))
        a("s_lshl_b32 s%d, s%d, 7" % (sT, sNt))
        a("s_add_u32 s%d, s%d, s%d" % (s.sDoff, s.sDoff, sT))
        a("s_waitcnt lgkmcnt(0)")
        srd_off(a, s.sW, 36, 0, 3584 * 2048)
        srd_off(a, s.sA, 40, WS_ACT, 2048 * 3584 * 2)
        if s.stamp is not None: stamp_mid(a, 3)
        n0 = (s.NST - 4) * s.NF * s.SUB
        s.xops = []
        for i in range(NRB):
            s.xops.append((n0, 10**9, [[], "buffer_load_dwordx4 v[%d:%d], v1, s[%d:%d], s47 offen offset:%d" % (48 + 4 * i, 51 + 4 * i, s.sS, s.sS + 3, i * 1024), ("ss", i), []]))
            for q in range(2):
                r = vH + (i * 2 + q) * 4
                s.xops.append((n0, 10**9, [[], "buffer_load_dwordx4 v[%d:%d], v1, s[%d:%d], s%d offen offset:%d" % (r, r + 3, sH, sH + 3, 45 + i, q * 1024), ("h", i, q), []]))
            s.xops.append((n0, 10**9, [[], "buffer_load_dword v%d, v%d, s[%d:%d], 0 offen offset:%d" % (vM[i], vT + 10, sM, sM + 3, i * 64), ("m", i), []]))
        def early(p): pass
        def late(p):
            s.lane_addrs(p.i, vT)
            srd_off(p.i, s.sS, 40, WS_SS, 2048 * 64)
            srd_off(p.i, s.sO, 38, 0, 2048 * 2048)
            srd_off(p.i, sH, 40, WS_HC, 4 * MB)
            srd_off(p.i, sM, 40, WS_MT, 8192)
            p.i("s_lshl_b32 s47, s42, 10")
            p.i("s_lshl_b32 s%d, s42, 15" % sT)
            p.i("s_lshl_b32 s45, s%d, 11" % sNt)
            p.i("s_add_u32 s45, s45, s%d" % sT)
            p.i("s_add_u32 s46, s45, 0x8000")
            p.i("v_and_b32 v%d, 15, v0" % vT)
            p.i("s_lshl_b32 s%d, s42, 4" % sT)
            p.i("v_add_u32 v%d, s%d, v%d" % (vT, sT, vT))
            p.i("v_lshlrev_b32 v%d, 2, v%d" % (vT + 10, vT))
            p.i("v_lshrrev_b32 v%d, 8, v%d" % (vT + 1, vT))
            p.i("v_and_b32 v%d, 255, v%d" % (vT, vT))
            p.i("v_lshl_add_u32 v%d, v%d, 3, v%d" % (vT, vT, vT + 1))
            p.i("v_lshlrev_b32 v%d, 11, v%d" % (vT, vT))
            p.i("v_lshrrev_b32 v%d, 4, v0" % (vT + 1))
            p.i("v_lshl_add_u32 v%d, v%d, 3, v%d" % (vT, vT + 1, vT))
            p.i("s_lshl_b32 s44, s%d, 7" % sNt)
        def tail(e):
            e.wv("side", [("ss", i) for i in range(NRB)] + [("h", i, q) for i in range(NRB) for q in range(2)] + [("m", i) for i in range(NRB)])
            for i in range(NRB):
                b = 48 + 4 * i
                e.i("v_add_f32 v%d, v%d, v%d" % (b, b, b + 1))
                e.i("v_add_f32 v%d, v%d, v%d" % (b + 2, b + 2, b + 3))
                e.i("v_add_f32 v%d, v%d, v%d" % (b, b, b + 2))
                reduce_g4(e.i, b, b + 1)
                e.i("v_mov_b32 v%d, 0x%x" % (b + 1, f2u(1e-5)))
                e.i("v_fmac_f32 v%d, 0x%x, v%d" % (b + 1, f2u(1.0 / 1024), b))
                e.i("v_rcp_f32 v%d, v%d" % (vR2[i], b + 1))
            for i in range(NRB):
                for j in range(4):
                    c = s.acc(j, i)
                    h = vH + (i * 2 + j // 2) * 4 + (j % 2) * 2
                    t = vT + 2 + 4 * (j % 2)
                    e.i("v_lshlrev_b32 v%d, 16, v%d" % (t, h))
                    e.i("v_and_b32 v%d, 0xffff0000, v%d" % (t + 1, h))
                    e.i("v_lshlrev_b32 v%d, 16, v%d" % (t + 2, h + 1))
                    e.i("v_and_b32 v%d, 0xffff0000, v%d" % (t + 3, h + 1))
                    for r in range(4): e.i("v_add_f32 v%d, v%d, v%d" % (t + r, t + r, vM[i]))
                    for r in range(4): e.i("v_fmac_f32 v%d, v%d, v%d" % (t + r, c + r, vR2[i]))
                    e.i("v_cvt_pk_bf16_f32 v%d, v%d, v%d" % (c, t, t + 1))
                    e.i("v_cvt_pk_bf16_f32 v%d, v%d, v%d" % (c + 1, t + 2, t + 3))
                    e.vm("buffer_store_dwordx2 v[%d:%d], v%d, s[%d:%d], s44 offen offset:%d" % (c, c + 1, vT, s.sO, s.sO + 3, j * 32))
                e.i("s_add_u32 s44, s44, %d" % (16 * 8 * 2048))
        s.tail = tail
        s.emit_main(a, early, late)
        s.footer(a, s.aX, s.R * s.STB)

class K2(G4):
    def __init__(s, PD=3, pf=False, xneed=12, **kw):
        kw.setdefault("npro", 14)
        kw.setdefault("rate", 0.7)
        super().__init__(AR=4, PD=PD, R=4, name="k2_kernel", NST=4, **kw)
        s.pf, s.xneed = pf, xneed
        s.aM = s.aX
        s.vAccM = 56
        s.vMl = 31
        s.vJunk = 30
        s.dt = 'f16'
        s.LM = s.R * s.STB
        s.LX = s.LM + 4096
    def dma_text(s, st, n):
        pre = ["s_add_u32 m0, s%d, %d" % (s.sLdsW, (st % s.R) * s.STB + 32 * n)]
        return pre, "buffer_load_dwordx4 v1, s[%d:%d], s%d offen offset:%d lds" % (s.sW, s.sW + 3, s.sDoff, n * 1024)
    def dma_step(s, st): return 16384
    def rdm(s, p, q):
        if q < 16:
            r = s.aM + 4 * (q % 4)
            p.ds("ds_read_b128 a[%d:%d], v%d offset:%d" % (r, r + 3, s.vMl, q * 64), ("M", q))
    def post_sync0(s, p):
        p.wv("vmw", [("vm",)])
        for q in range(3): s.rdm(p, q)
    def extra_unit(s, p, q):
        p.wl(("M", q), [("M", q)])
        r = s.aM + 4 * (q % 4)
        for i in range(s.NRB):
            c = s.vAccM + 4 * i
            src = "0" if q == 0 else "v[%d:%d]" % (c, c + 3)
            p.i("v_mfma_f32_16x16x32_f16 v[%d:%d], a[%d:%d], a[%d:%d], %s" % (c, c + 3, r, r + 3, s.aA(q, i), s.aA(q, i) + 3, src))
        s.rdm(p, q + 3)
    def gen(s, a):
        NRB, sT, sWave = s.NRB, s.sT, s.sWave
        vT = 20; vXM = [18, 19]; vX = 32; vXa = 16; vXr = 8
        sNt, sT1, sX, sM, sXM, sVM = 33, 34, 48, 52, 56, 60
        s.header(a)
        a("s_load_dwordx2 s[36:37], s[0:1], 0")
        a("s_load_dwordx2 s[38:39], s[0:1], 56")
        a("s_load_dwordx2 s[40:41], s[0:1], 88")
        a("v_lshrrev_b32 v1, 6, v0")
        a("v_and_b32 v0, 63, v0")
        a("v_readfirstlane_b32 s%d, v1" % sWave)
        a("s_and_b32 s%d, s2, 7" % sT1)
        a("s_bfe_u32 s%d, s2, 0x40003" % sNt)
        if s.pf:
            a("s_cmp_eq_u32 s%d, 4" % sWave)
            a("s_cbranch_scc1 k2_helper")
        a("s_lshr_b32 s%d, s2, 7" % sT)
        a("s_lshl_b32 s42, s%d, 4" % sT1)
        a("s_lshl_b32 s%d, s%d, 3" % (sT, sT))
        a("s_add_u32 s42, s42, s%d" % sT)
        a("s_lshl_b32 s%d, s%d, 1" % (sT, sWave))
        a("s_add_u32 s42, s42, s%d" % sT)
        a("s_lshl_b32 s43, s42, 14")
        a("v_lshlrev_b32 v1, 4, v0")
        for i in range(NRB):
            a("s_add_u32 s%d, s43, %d" % (sT, i * 16384))
            a("v_add_u32 v%d, s%d, v1" % (s.vA[i], sT))
        a("s_mul_i32 s%d, s%d, 4224" % (s.sLdsW, sWave))
        a("s_lshl_b32 s%d, s%d, 4" % (sT, sT1))
        a("s_add_u32 s%d, s%d, s%d" % (sT, sT, sNt))
        a("s_lshl_b32 s%d, s%d, 16" % (s.sDoff, sT))
        a("s_lshl_b32 s%d, s%d, 12" % (sT, sWave))
        a("s_add_u32 s%d, s%d, s%d" % (s.sDoff, s.sDoff, sT))
        a("s_lshl_b32 s45, s%d, 10" % sWave)
        a("s_add_u32 s45, s45, %d" % s.LM)
        a("s_lshl_b32 s46, s%d, 10" % sT1)
        a("s_waitcnt lgkmcnt(0)")
        srd_off(a, s.sW, 40, WS_V, 8 * MB)
        srd_off(a, s.sA, 40, WS_WSF, 2 * MB)
        srd_off(a, sVM, 40, WS_VM, 8192)
        if s.stamp is not None: stamp_mid(a, 3)
        s.xops = []
        for k in range(4):
            s.xops.append((0, s.xneed, [["s_add_u32 m0, s64, %d" % (k * 1024)],
                           "buffer_load_dwordx4 v%d, s[%d:%d], s47 offen lds" % (vXa + (k % 2), sX, sX + 3), ("x", k),
                           ["s_add_u32 s47, s47, %d" % (8 * 16384)]]))
        for i in range(NRB):
            s.xops.append((0, s.xneed, [[], "buffer_load_dword v%d, v%d, s[%d:%d], 0 offen offset:%d" % (vXM[i], vT + 3, sXM, sXM + 3, i * 64), ("xm", i), []]))
        def early(p):
            p.i("s_mov_b32 m0, s45")
            p.i("s_nop 0")
            p.vm("buffer_load_dwordx4 v1, s[%d:%d], s46 offen lds" % (sVM, sVM + 3), ("vm",))
        def late(p):
            s.lane_addrs(p.i, vT)
            p.i("v_lshrrev_b32 v%d, 4, v0" % vT)
            p.i("v_lshlrev_b32 v%d, 4, v%d" % (vT, vT))
            p.i("v_add_u32 v%d, s45, v%d" % (s.vMl, vT))
            p.i("v_and_b32 v%d, 15, v0" % vT)
            p.i("v_lshlrev_b32 v%d, 4, v%d" % (vT + 2, vT))
            p.i("s_lshl_b32 s%d, s42, 4" % sT)
            p.i("v_add_u32 v%d, s%d, v%d" % (vT + 3, sT, vT))
            p.i("v_lshlrev_b32 v%d, 2, v%d" % (vT + 3, vT + 3))
            p.i("v_lshrrev_b32 v%d, 3, v0" % (vT + 1))
            p.i("v_lshrrev_b32 v%d, 4, v0" % (vT + 4))
            p.i("v_and_b32 v%d, 7, v0" % (vT + 5))
            p.i("v_xor_b32 v%d, v%d, v%d" % (vT + 4, vT + 4, vT + 5))
            p.i("v_lshlrev_b32 v%d, 14, v%d" % (vT + 1, vT + 1))
            p.i("v_lshl_add_u32 v%d, v%d, 4, v%d" % (vXa, vT + 4, vT + 1))
            p.i("v_xor_b32 v%d, 64, v%d" % (vXa + 1, vXa))
            p.i("s_lshl_b32 s64, s%d, 12" % sWave)
            p.i("s_add_u32 s64, s64, %d" % s.LX)
            p.i("v_lshlrev_b32 v%d, 7, v%d" % (vT + 1, vT))
            p.i("v_add_u32 v%d, s64, v%d" % (vT + 1, vT + 1))
            p.i("v_bfe_u32 v%d, v0, 4, 1" % (vT + 4))
            p.i("v_lshl_add_u32 v%d, v%d, 3, v%d" % (vT + 1, vT + 4, vT + 1))
            p.i("v_lshrrev_b32 v%d, 5, v0" % (vT + 4))
            p.i("v_lshrrev_b32 v%d, 1, v%d" % (vT + 5, vT))
            p.i("v_xor_b32 v%d, v%d, v%d" % (vT + 4, vT + 4, vT + 5))
            for j in range(4):
                p.i("v_xor_b32 v%d, %d, v%d" % (vT + 5, 2 * j, vT + 4))
                p.i("v_lshl_add_u32 v%d, v%d, 4, v%d" % (vXr + j, vT + 5, vT + 1))
            p.i("s_lshr_b32 s47, s42, 4")
            p.i("s_and_b32 s%d, s42, 15" % sT)
            p.i("s_lshl_b32 s%d, s%d, 7" % (sT, sT))
            p.i("s_add_u32 s47, s47, s%d" % sT)
            p.i("s_lshl_b32 s47, s47, 11")
            p.i("s_lshl_b32 s%d, s%d, 7" % (sT, sNt))
            p.i("s_add_u32 s47, s47, s%d" % sT)
            srd_off(p.i, s.sS, 40, WS_SS, 2048 * 64)
            srd_off(p.i, s.sO, 40, WS_HC, 4 * MB)
            srd_off(p.i, sX, 36, 0, 2048 * 2048)
            srd_off(p.i, sM, 40, WS_MT, 8192)
            srd_off(p.i, sXM, 40, WS_XM, 8192)
            p.i("s_lshl_b32 s44, s42, 15")
            p.i("s_lshl_b32 s%d, s%d, 11" % (sT, sNt))
            p.i("s_add_u32 s44, s44, s%d" % sT)
            p.i("s_lshl_b32 s45, s42, 10")
            p.i("s_lshr_b32 s%d, s%d, 2" % (sT, sNt))
            p.i("s_lshl_b32 s%d, s%d, 8" % (sT, sT))
            p.i("s_add_u32 s45, s45, s%d" % sT)
            p.i("s_and_b32 s%d, s%d, 3" % (sT, sNt))
            p.i("s_lshl_b32 s%d, s%d, 2" % (sT, sT))
            p.i("s_add_u32 s45, s45, s%d" % sT)
        def tail(e):
            e.wv("side", [("x", k) for k in range(4)] + [("xm", i) for i in range(NRB)])
            for i in range(NRB):
                for j in range(4):
                    x = vX + (i * 4 + j) * 2
                    e.ds("ds_read_b64 v[%d:%d], v%d offset:%d" % (x, x + 1, vXr + j, i * 2048), ("xr", i, j))
            for i in range(NRB):
                m = vXM[i]
                e.i("v_add_f32 v%d, v%d, v%d" % (m, m, s.vAccM + 4 * i))
                ssr = 48 + 2 * i
                for j in range(4):
                    c = s.acc(j, i)
                    x = vX + (i * 4 + j) * 2
                    t = vT + 4
                    for r in range(4): e.i("v_sub_f32 v%d, v%d, v%d" % (c + r, c + r, m))
                    e.wl(("xr", i, j), [("xr", i, j)])
                    e.i("v_lshlrev_b32 v%d, 16, v%d" % (t, x))
                    e.i("v_and_b32 v%d, 0xffff0000, v%d" % (t + 1, x))
                    e.i("v_lshlrev_b32 v%d, 16, v%d" % (t + 2, x + 1))
                    e.i("v_and_b32 v%d, 0xffff0000, v%d" % (t + 3, x + 1))
                    for r in range(4): e.i("v_add_f32 v%d, v%d, v%d" % (t + r, t + r, c + r))
                    e.i("v_cvt_pk_bf16_f32 v%d, v%d, v%d" % (x, t, t + 1))
                    e.i("v_cvt_pk_bf16_f32 v%d, v%d, v%d" % (x + 1, t + 2, t + 3))
                    if j % 2 == 1:
                        e.vm("buffer_store_dwordx4 v[%d:%d], v1, s[%d:%d], s44 offen offset:%d%s" % (x - 2, x + 1, s.sO, s.sO + 3, (j // 2) * 1024, s.st_flags))
                    for r in range(4):
                        if j == 0 and r == 0: e.i("v_mul_f32 v%d, v%d, v%d" % (ssr, t, t))
                        else: e.i("v_fmac_f32 v%d, v%d, v%d" % (ssr, t + r, t + r))
                e.i("s_add_u32 s44, s44, 0x8000")
                reduce_g4(e.i, ssr, ssr + 1)
                e.vm("buffer_store_dword v%d, v%d, s[%d:%d], s45 offen offset:%d" % (ssr, vT + 2, s.sS, s.sS + 3, i * 1024))
            e.i("s_cmp_lg_u32 s%d, 0" % sNt)
            e.i("s_cbranch_scc1 %s_nomt" % s.name)
            for i in range(NRB):
                e.vm("buffer_store_dword v%d, v%d, s[%d:%d], 0 offen offset:%d" % (vXM[i], vT + 3, sM, sM + 3, i * 64))
            e.label("%s_nomt" % s.name)
        s.tail = tail
        s.emit_main(a, early, late)
        if s.stamp is not None:
            stamp_mid(a, 2); stamp_end(a, 40, s.stamp, s.sWave)
        if s.pf:
            a("s_branch %s_end" % s.name)
            a.label("k2_helper")
            a("s_waitcnt lgkmcnt(0)")
            srd_off(a, 64, 38, 0, 1024 * 7168)
            a("s_mul_i32 s68, s2, 28672")
            a("v_lshlrev_b32 v6, 6, v0")
            for k in range(7):
                a("buffer_load_dword v7, v6, s[64:67], s68 offen")
                a("s_add_u32 s68, s68, 4096")
            for k in range(s.NST): a("s_barrier")
        a.label("%s_end" % s.name)
        a.end_kernel(s.name, s.VACC + s.NACC, s.aM + 16, 102)
        a.launch(s.name, 256, 320 if s.pf else 256, s.LX + 16384)

class G4S(Gemm2):
    def __init__(s, SK=2, AR=None, PD=3, R=8, TS=1, LK=None, xfl=" sc1", l2pf=0, l2d=2, retouch=(200,), defer=True, lgrp=2, rc_ahead=28, **kw):
        kw.setdefault("npro", 8); kw.setdefault("rate", 0.6)
        s.l2pf, s.l2d = l2pf, l2d
        s.SK = SK
        NRB = SK
        AR = AR or (7 if SK == 4 else 10)
        s.LK = LK or (7 if SK == 4 else 8)
        s.KF = 8 // SK
        s.xfl = xfl
        super().__init__("g4_kernel", NRB=NRB, NF=8, SUB=2, NST=56 // SK, STB=16896, R=R, AR=AR, PD=PD, ndma=4, VACC=128, **kw)
        s.TS = TS
        s.retouch = retouch
        s.vCode = 10
        s.defer = defer
        s.lgrp, s.rc_ahead = lgrp, rc_ahead
        s.vD2 = [116, 117, 118, 119]
        s.vpm = 1
    def crow(s, kb):
        return (kb // 3) * 112 + (kb % 3) * 32 if kb < 48 else (kb - 48) * 224 + 96
    def is_late(s, st, n): return s.defer and st >= s.NST - s.LK and n >= 2
    def late_steps(s, units):
        if not s.defer: return {}
        first = {}
        for n, (st, sub, j) in enumerate(units):
            if st >= s.NST - s.LK and j < s.KF: first.setdefault(st, n)
        out = {}
        for st in first:
            g0 = s.NST - s.LK + (st - (s.NST - s.LK)) // s.lgrp * s.lgrp
            out[st] = first[g0]
        return out
    def dma_text(s, st, n):
        pre = []
        if n % 2 == 0:
            d = s.crow(2 * st + 1) - s.crow(2 * st)
            if n == 0 or s.is_late(st, n):
                pre.append("s_add_u32 s%d, s%d, %d" % (s.sDoff, {32: 27, 48: 29, 224: 30}[d], s.crow(2 * st) * 2048))
            pre.append("s_add_u32 m0, s%d, %d" % (s.sLdsW, (st % s.R) * s.STB + (0 if n else 4224)))
        v = (s.vD2 if st >= 24 else s.vD)[n]
        return pre, "buffer_load_dwordx4 v%d, s[%d:%d], s%d offen offset:%d lds" % (v, s.sW, s.sW + 3, s.sDoff, (n % 2) * 1056)
    def dma_step(s, st): return None
    def rd_off(s, sub, j, h): return sub * 8448 + (j // 4) * 4224 + h * 512 + (j % 4) * 32
    def unit_order(s):
        KF = s.KF
        u = [(st, sub, j) for st in range(s.NST - s.LK) for sub in range(s.SUB) for j in range(s.NF)]
        u += [(st, sub, j) for st in range(s.NST - s.LK, s.NST - s.TS) for sub in range(s.SUB) for j in range(KF, s.NF)]
        for pr in range(KF // 2, 4):
            for st in range(s.NST - s.TS, s.NST):
                for sub in range(s.SUB):
                    u += [(st, sub, 2 * pr), (st, sub, 2 * pr + 1)]
        u += [(st, sub, j) for st in range(s.NST - s.LK, s.NST) for sub in range(s.SUB) for j in range(KF)]
        return u
    def valu_ready(s, units):
        last = {}
        for n, (st, sub, j) in enumerate(units): last[j // 2] = n
        out = {}
        ppg = s.KF // 2
        for pr in range(ppg, 4):
            g, pi = divmod(pr, ppg)
            L = []
            for i in range(s.NRB):
                c0, c1 = s.acc(2 * pr, i), s.acc(2 * pr + 1, i)
                L.append("v_cvt_pk_bf16_f32 v%d, v%d, v%d" % (c0, c0, c0 + 1))
                L.append("v_cvt_pk_bf16_f32 v%d, v%d, v%d" % (c0 + 1, c0 + 2, c0 + 3))
                L.append("v_cvt_pk_bf16_f32 v%d, v%d, v%d" % (c0 + 2, c1, c1 + 1))
                L.append("v_cvt_pk_bf16_f32 v%d, v%d, v%d" % (c0 + 3, c1 + 2, c1 + 3))
                L.append("buffer_store_dwordx4 v[%d:%d], v1, s[%d:%d], s%d offen offset:%d%s" % (c0, c0 + 3, s.sX, s.sX + 3, s.sXo + g - 1, (i * ppg + pi) * 1024, s.xfl))
            out[last[pr] + (3 if s.NRB == 4 else 5)] = L
        k = s.side_fill[0]
        while k in out: k += 1
        out[k] = s.side_fill[1]
        return out
    def extra_vm(s): return s.xops
    def gen(s, a):
        NRB, sT, sWave, SK, KF = s.NRB, s.sT, s.sWave, s.SK, s.KF
        ppg = KF // 2
        vT = 20; vR2 = 16; vM = 32; vH = 36; vS = 52; vRc = 68
        NRC = (SK - 1) * 16
        sNt, sMt, sKk, sH, sM = 33, 34, 35, 48, 52
        s.sX, s.sXo = 56, 60
        KQ = 3584 // SK
        s.header(a)
        a("s_load_dwordx4 s[36:39], s[0:1], 64")
        a("s_load_dwordx2 s[40:41], s[0:1], 88")
        a("v_lshrrev_b32 v1, 6, v0")
        a("v_and_b32 v0, 63, v0")
        a("v_readfirstlane_b32 s%d, v1" % sWave)
        if SK == 4:
            a("s_bfe_u32 s%d, s2, 0x20001" % sKk)
            a("s_and_b32 s%d, s2, 1" % sT)
        else:
            a("s_bfe_u32 s%d, s2, 0x10002" % sKk)
            a("s_bfe_u32 s%d, s2, 0x10001" % sT)
            a("s_lshl_b32 s%d, s%d, 3" % (sMt, sT))
            a("s_lshr_b32 s%d, s2, 5" % sT)
            a("s_add_u32 s%d, s%d, s%d" % (sMt, sMt, sT))
            a("s_and_b32 s%d, s2, 1" % sT)
            a("s_lshl_b32 s%d, s%d, 2" % (sNt, sT))
            a("s_bfe_u32 s%d, s2, 0x20003" % sT)
            a("s_add_u32 s%d, s%d, s%d" % (sNt, sNt, sT))
        a("s_mul_i32 s42, s%d, %d" % (sMt, 4 * NRB))
        a("s_mul_i32 s%d, s%d, %d" % (sT, sWave, NRB))
        a("s_add_u32 s42, s42, s%d" % sT)
        a("s_mul_i32 s43, s42, %d" % (112 * 1024))
        a("s_mul_i32 s%d, s%d, %d" % (sT, sKk, KQ // 32 * 1024))
        a("s_add_u32 s43, s43, s%d" % sT)
        a("v_lshlrev_b32 v1, 4, v0")
        for i in range(NRB):
            a("s_add_u32 s%d, s43, %d" % (sT, i * 112 * 1024))
            a("v_add_u32 v%d, s%d, v1" % (s.vA[i], sT))
        assert SK == 2
        a("v_lshrrev_b32 v%d, 3, v0" % vT)
        a("v_lshlrev_b32 v%d, 13, v%d" % (vT, vT))
        a("v_and_b32 v%d, 7, v0" % (vT + 1))
        a("v_lshl_add_u32 v%d, v%d, 4, v%d" % (vT, vT + 1, vT))
        a("s_lshl_b32 s%d, s%d, 7" % (sT, sKk))
        a("v_add_u32 v%d, s%d, v%d" % (s.vD[2], sT, vT))
        a("v_xor_b32 v%d, 128, v%d" % (s.vD[0], s.vD[2]))
        a("v_add_u32 v%d, %d, v%d" % (s.vD[1], 2048 - 1056, s.vD[0]))
        a("v_add_u32 v%d, %d, v%d" % (s.vD[3], 2048 - 1056, s.vD[2]))
        a("s_lshr_b32 s%d, s%d, 1" % (sT, sWave))
        a("s_mul_i32 s%d, s%d, 8448" % (s.sLdsW, sT))
        a("s_and_b32 s32, s%d, 1" % sWave)
        a("s_mul_i32 s%d, s32, 2112" % s.sDoff)
        a("s_add_u32 s%d, s%d, s%d" % (s.sLdsW, s.sLdsW, s.sDoff))
        a("s_mul_i32 s%d, s%d, %d" % (s.sDoff, sKk, KQ * 2048))
        a("s_lshl_b32 s32, s32, 12")
        a("s_add_u32 s%d, s%d, s32" % (s.sDoff, s.sDoff))
        a("s_lshl_b32 s32, s%d, 8" % sNt)
        a("s_add_u32 s%d, s%d, s32" % (s.sDoff, s.sDoff))
        for reg, d in ((27, 32), (29, 48), (30, 224)):
            a("s_mul_i32 s%d, s%d, %d" % (reg, sT, d * 2048))
            a("s_add_u32 s%d, s%d, s%d" % (reg, reg, s.sDoff))
        a("s_waitcnt lgkmcnt(0)")
        srd_off(a, s.sW, 36, 0, 3584 * 2048)
        srd_off(a, s.sA, 40, WS_ACT, 2048 * 3584 * 2)
        if s.stamp is not None: stamp_mid(a, 3)
        n0 = (s.NST * 2 // 3) * s.NF * s.SUB
        big = n0 + 40
        s.xops = []
        for i in range(NRB):
            s.xops.append((n0, big, [[], "buffer_load_dwordx4 v[%d:%d], v1, s[%d:%d], s47 offen offset:%d" % (vS + 4 * i, vS + 4 * i + 3, s.sS, s.sS + 3, i * 1024), ("ss", i), []]))
            for pi in range(ppg):
                r = vH + (i * ppg + pi) * 4
                s.xops.append((n0, big, [[], "buffer_load_dwordx4 v[%d:%d], v1, s[%d:%d], s45 offen offset:%d" % (r, r + 3, sH, sH + 3, pi * 1024), ("h", i, pi),
                                         ["s_add_u32 s45, s45, 0x8000"] if pi == ppg - 1 else []]))
            s.xops.append((n0, big, [[], "buffer_load_dword v%d, v%d, s[%d:%d], 0 offen offset:%d" % (vM + i, vT + 10, sM, sM + 3, i * 64), ("m", i), []]))
        if s.l2pf:
            assert SK == 2
            upc = 4 * s.NF * s.SUB
            for c in range(1, 7):
                for hh in range(s.l2pf):
                    s.xops.append((max(0, (c - s.l2d) * upc), -1, [[], "buffer_load_dword v31, v12, s[4:7], s70 offen offset:%d" % (hh * 64), ("L2", c, hh),
                                   ["s_add_u32 s70, s70, s71"] if hh == s.l2pf - 1 else []]))
        def early(p): pass
        def late(p):
            if s.l2pf:
                p.i("s_lshr_b32 s67, s2, 3")
                p.i("s_lshl_b32 s67, s67, 2")
                p.i("s_add_u32 s67, s67, s%d" % sWave)
                p.i("v_lshlrev_b32 v12, 7, v0")
                p.i("s_and_b32 s70, s2, 3")
                p.i("s_lshl_b32 s70, s70, 5")
                p.i("s_add_u32 s70, s70, s67")
                p.i("s_mul_i32 s70, s70, %d" % (112 * 1024))
                p.i("s_mul_i32 s%d, s%d, %d" % (sT, sKk, 56 * 1024))
                p.i("s_add_u32 s70, s70, s%d" % sT)
                p.i("s_add_u32 s70, s70, 8192")
                p.i("s_mul_i32 s68, s%d, %d" % (sKk, 1792 * 2048))
                p.i("s_lshl_b32 s%d, s67, 13" % sT)
                p.i("s_add_u32 s68, s68, s%d" % sT)
                p.i("s_add_u32 s68, s68, %d" % (524288 - 32 * 8192))
                p.i("s_mov_b32 s71, 524288")
                p.i("s_cmp_lt_u32 s67, 32")
                p.i("s_cselect_b32 s70, s70, s68")
                p.i("s_cselect_b32 s71, 8192, s71")
                p.i("s_cselect_b32 s4, s%d, s%d" % (s.sA, s.sW))
                p.i("s_cselect_b32 s5, s%d, s%d" % (s.sA + 1, s.sW + 1))
                p.i("s_cselect_b32 s6, s%d, s%d" % (s.sA + 2, s.sW + 2))
                p.i("s_mov_b32 s7, 0x00020000")
                p.i("s_cmp_lt_u32 s67, 96")
                p.i("s_cselect_b32 s6, s6, 0")
            p.i("v_bfe_u32 v%d, v0, 2, 2" % vT)
            p.i("v_mul_u32_u24 v%d, 1056, v%d" % (vT, vT))
            p.i("v_lshrrev_b32 v%d, 4, v0" % (vT + 1))
            p.i("v_lshl_add_u32 v%d, v%d, 7, v%d" % (vT, vT + 1, vT))
            p.i("v_and_b32 v%d, 3, v0" % (vT + 1))
            p.i("v_lshl_add_u32 v%d, v%d, 3, v%d" % (s.vB[0], vT + 1, vT))
            p.i("v_lshrrev_b32 v11, 5, v0")
            p.i("v_mul_u32_u24 v11, %d, v11" % (96 * 2048))
            for k in range(4): p.i("v_add_u32 v%d, v%d, v11" % (s.vD2[k], s.vD[k]))
            s.base_setup(p.i)
            srd_off(p.i, s.sS, 40, WS_SS, 2048 * 64)
            srd_off(p.i, s.sO, 38, 0, 2048 * 2048)
            srd_off(p.i, sH, 40, WS_HC, 4 * MB)
            srd_off(p.i, sM, 40, WS_MT, 8192)
            srd_off(p.i, s.sX, 40, WS_XB, (SK - 1) * 4 * MB)
            p.i("s_lshl_b32 s47, s42, 10")
            p.i("s_lshl_b32 s45, s42, 5")
            p.i("s_lshl_b32 s%d, s%d, 2" % (sT, sNt))
            p.i("s_add_u32 s45, s45, s%d" % sT)
            p.i("s_mul_i32 s%d, s%d, %d" % (sT, sKk, ppg))
            p.i("s_add_u32 s45, s45, s%d" % sT)
            p.i("s_lshl_b32 s45, s45, 10")
            p.i("s_lshl_b32 s46, s%d, 3" % sMt)
            p.i("s_add_u32 s46, s46, s%d" % sNt)
            p.i("s_mul_i32 s46, s46, %d" % SK)
            p.i("s_lshl_b32 s44, s%d, 12" % sWave)
            for g in range(1, SK):
                d = s.sXo + g - 1
                p.i("s_add_u32 s%d, s%d, %d" % (sT, sKk, g))
                p.i("s_and_b32 s%d, s%d, %d" % (sT, sT, SK - 1))
                p.i("s_add_u32 s%d, s%d, s46" % (sT, sT))
                p.i("s_mul_i32 s%d, s%d, %d" % (d, sT, (SK - 1) * 16384))
                p.i("s_add_u32 s%d, s%d, %d" % (d, d, (g - 1) * 16384))
                p.i("s_add_u32 s%d, s%d, s44" % (d, d))
            p.i("s_add_u32 s%d, s%d, s46" % (sT, sKk))
            p.i("s_mul_i32 s63, s%d, %d" % (sT, (SK - 1) * 16384))
            p.i("s_add_u32 s63, s63, s44")
            p.i("v_and_b32 v%d, 15, v0" % vT)
            p.i("s_lshl_b32 s%d, s42, 4" % sT)
            p.i("v_add_u32 v%d, s%d, v%d" % (vT + 10, sT, vT))
            p.i("v_lshlrev_b32 v%d, 2, v%d" % (vT + 10, vT + 10))
            p.i("s_lshl_b32 s64, s%d, 12" % sWave)
            p.i("s_add_u32 s64, s64, %d" % (s.R * s.STB))
            p.i("v_lshlrev_b32 v%d, 7, v%d" % (vT + 1, vT))
            p.i("v_add_u32 v%d, s64, v%d" % (vT + 1, vT + 1))
            p.i("v_bfe_u32 v%d, v0, 4, 1" % (vT + 2))
            p.i("v_lshl_add_u32 v%d, v%d, 3, v%d" % (vT + 1, vT + 2, vT + 1))
            p.i("v_lshrrev_b32 v%d, 5, v0" % (vT + 2))
            p.i("v_and_b32 v%d, 7, v0" % (vT + 3))
            p.i("v_xor_b32 v%d, v%d, v%d" % (vT + 2, vT + 2, vT + 3))
            for j in range(4):
                p.i("v_xor_b32 v%d, %d, v%d" % (vT + 3, 2 * j, vT + 2))
                p.i("v_lshl_add_u32 v%d, v%d, 4, v%d" % (vT + 4 + j, vT + 3, vT + 1))
            p.i("v_add_u32 v%d, s64, v1" % (vT + 8))
            p.i("v_lshrrev_b32 v%d, 3, v0" % (vT + 1))
            p.i("v_and_b32 v%d, 7, v0" % (vT + 2))
            p.i("v_xor_b32 v%d, v%d, v%d" % (vT + 2, vT + 2, vT + 1))
            p.i("v_lshlrev_b32 v%d, 14, v%d" % (vT + 1, vT + 1))
            p.i("v_lshl_add_u32 v%d, v%d, 4, v%d" % (vT, vT + 2, vT + 1))
            p.i("s_lshr_b32 s44, s42, 4")
            p.i("s_and_b32 s%d, s42, 15" % sT)
            p.i("s_lshl_b32 s%d, s%d, 7" % (sT, sT))
            p.i("s_add_u32 s44, s44, s%d" % sT)
            p.i("s_lshl_b32 s44, s44, 11")
            p.i("s_lshl_b32 s%d, s%d, 8" % (sT, sNt))
            p.i("s_add_u32 s44, s44, s%d" % sT)
            p.i("s_mul_i32 s%d, s%d, %d" % (sT, sKk, KF * 32))
            p.i("s_add_u32 s44, s44, s%d" % sT)
            p.i("s_mov_b32 s66, 0")
        vP = 84
        NU = s.NST * s.SUB * s.NF
        def rc_text(k):
            r = vRc + k * 4
            return "buffer_load_dwordx4 v[%d:%d], v1, s[%d:%d], s63 offen offset:%d%s" % (r, r + 3, s.sX, s.sX + 3, k * 1024, s.xfl)
        for k in range(4):
            n = NU - s.rc_ahead + k
            s.xops.append((n, n, [[], rc_text(k), ("rc", k), []]))
        F = [("wv", "side", [("ss", i) for i in range(NRB)] + [("h", i, pi) for i in range(NRB) for pi in range(ppg)] + [("m", i) for i in range(NRB)])]
        for i in range(NRB):
            b = vS + 4 * i
            F.append("v_add_f32 v%d, v%d, v%d" % (b, b, b + 1))
            F.append("v_add_f32 v%d, v%d, v%d" % (b + 2, b + 2, b + 3))
            F.append("v_add_f32 v%d, v%d, v%d" % (b, b, b + 2))
            reduce_g4(F.append, b, b + 1)
            F.append("v_mov_b32 v%d, 0x%x" % (b + 1, f2u(1e-5)))
            F.append("v_fmac_f32 v%d, 0x%x, v%d" % (b + 1, f2u(1.0 / 1024), b))
            F.append("v_rcp_f32 v%d, v%d" % (vR2 + i, b + 1))
        for i in range(NRB):
            for j in range(KF):
                h = vH + (i * ppg + j // 2) * 4 + 2 * (j % 2)
                t = vP + (i * KF + j) * 4
                F.append("v_lshlrev_b32 v%d, 16, v%d" % (t, h))
                F.append("v_and_b32 v%d, 0xffff0000, v%d" % (t + 1, h))
                F.append("v_lshlrev_b32 v%d, 16, v%d" % (t + 2, h + 1))
                F.append("v_and_b32 v%d, 0xffff0000, v%d" % (t + 3, h + 1))
                for r in range(4): F.append("v_add_f32 v%d, v%d, v%d" % (t + r, t + r, vM + i))
        s.side_fill = (NU - 56, F)
        def tail(e):
            def recv():
                for k in range(4): e.vm(rc_text(k), ("rc2", k))
            for i in range(NRB):
                for j in range(KF):
                    c = s.acc(j, i)
                    t = vP + (i * KF + j) * 4
                    for r in range(4): e.i("v_fmac_f32 v%d, v%d, v%d" % (t + r, c + r, vR2 + i))
            e.i("s_branch %s_chk" % s.name)
            e.label("%s_retry" % s.name)
            recv()
            e.label("%s_chk" % s.name)
            e.i("s_waitcnt vmcnt(0)")
            e.i("v_max_u32 v%d, v%d, v%d" % (vT + 2, vRc, vRc + 1))
            e.i("v_max_u32 v%d, v%d, v%d" % (vT + 3, vRc + 2, vRc + 3))
            for k in range(4, NRC, 4):
                e.i("v_max3_u32 v%d, v%d, v%d, v%d" % (vT + 2, vT + 2, vRc + k, vRc + k + 1))
                e.i("v_max3_u32 v%d, v%d, v%d, v%d" % (vT + 3, vT + 3, vRc + k + 2, vRc + k + 3))
            e.i("v_max_u32 v%d, v%d, v%d" % (vT + 2, vT + 2, vT + 3))
            e.i("v_cmp_eq_u32 vcc, -1, v%d" % (vT + 2))
            e.i("s_add_u32 s66, s66, 1")
            e.i("s_cmp_lt_u32 s66, 0x20000")
            e.i("s_cselect_b64 s[68:69], vcc, 0")
            e.i("s_cmp_lg_u64 s[68:69], 0")
            e.i("s_cbranch_scc1 %s_retry" % s.name)
            if s.stamp is not None: e.i("s_memtime s[%d:%d]" % (SB + 28, SB + 29))
            for i in range(NRB):
                for j in range(KF):
                    r = vRc + (i * ppg + j // 2) * 4 + 2 * (j % 2)
                    t = vP + (i * KF + j) * 4
                    u = vH + 4 * (j % 2)
                    e.i("v_lshlrev_b32 v%d, 16, v%d" % (u, r))
                    e.i("v_and_b32 v%d, 0xffff0000, v%d" % (u + 1, r))
                    e.i("v_lshlrev_b32 v%d, 16, v%d" % (u + 2, r + 1))
                    e.i("v_and_b32 v%d, 0xffff0000, v%d" % (u + 3, r + 1))
                    for q in range(4): e.i("v_fmac_f32 v%d, v%d, v%d" % (t + q, u + q, vR2 + i))
                    e.i("v_cvt_pk_bf16_f32 v%d, v%d, v%d" % (t, t, t + 1))
                    e.i("v_cvt_pk_bf16_f32 v%d, v%d, v%d" % (t + 1, t + 2, t + 3))
                    e.i("ds_write_b64 v%d, v[%d:%d] offset:%d" % (vT + 4 + j, t, t + 1, i * 2048))
            e.i("s_waitcnt lgkmcnt(0)")
            for k in range(4):
                e.i("ds_read_b128 v[%d:%d], v%d offset:%d" % (vRc + 4 * k, vRc + 4 * k + 3, vT + 8, k * 1024))
            for k in range(4):
                e.i("s_waitcnt lgkmcnt(%d)" % (3 - k))
                e.vm("buffer_store_dwordx4 v[%d:%d], v%d, s[%d:%d], s44 offen" % (vRc + 4 * k, vRc + 4 * k + 3, vT, s.sO, s.sO + 3))
                if k < 3: e.i("s_add_u32 s44, s44, %d" % (8 * 16384))
        s.tail = tail
        s.emit_main(a, early, late)
        s.footer(a, s.aX, s.R * s.STB + 16384)
    def prof(s, N): return [N * k // 7 for k in range(1, 7)]

class K2H(Gemm2):
    def __init__(s, PD=3, xneed=12, **kw):
        kw.setdefault("npro", 12)
        kw.setdefault("rate", 0.7)
        super().__init__("k2_kernel", NRB=1, NF=4, SUB=4, NST=4, STB=16896, R=4, AR=4, PD=PD, ndma=4, VACC=64, **kw)
        s.xneed = xneed
        s.aM = s.aX
        s.vAccM = 56
        s.vMl = 31
        s.vJunk = 30
        s.dt = 'f16'
        s.LM = s.R * s.STB
        s.LX = s.LM + 8192
    def rd_off(s, sub, j, h):
        return (sub // 2) * 8448 + (sub % 2) * 512 + h * 256 + j * 32
    def dma_text(s, st, n):
        pre = ["s_add_u32 m0, s%d, %d" % (s.sLdsW, (st % s.R) * s.STB + 32 * n)]
        return pre, "buffer_load_dwordx4 v1, s[%d:%d], s%d offen offset:%d lds" % (s.sW, s.sW + 3, s.sDoff, n * 1024)
    def dma_step(s, st): return 16384
    def rdm(s, p, q):
        if q < 16:
            r = s.aM + 4 * (q % 4)
            p.ds("ds_read_b128 a[%d:%d], v%d offset:%d" % (r, r + 3, s.vMl, q * 64), ("M", q))
    def post_sync0(s, p):
        p.wv("vmw", [("vm", 0), ("vm", 1)])
        for q in range(3): s.rdm(p, q)
    def extra_unit(s, p, q):
        p.wl(("M", q), [("M", q)])
        r = s.aM + 4 * (q % 4)
        c = s.vAccM
        src = "0" if q == 0 else "v[%d:%d]" % (c, c + 3)
        p.i("v_mfma_f32_16x16x32_f16 v[%d:%d], a[%d:%d], a[%d:%d], %s" % (c, c + 3, r, r + 3, s.aA(q, 0), s.aA(q, 0) + 3, src))
        s.rdm(p, q + 3)
    def extra_vm(s): return s.xops
    def gen(s, a):
        sT, sWave = s.sT, s.sWave
        vT = 20; vXM = [18, 19]; vX = 32; vXa = 4; vXr = 8
        vHo, vSo, vRo = 16, 17, 3
        sNt, sT1, sX, sM, sXM, sVM = 33, 34, 48, 52, 56, 60
        s.header(a)
        a("s_load_dwordx2 s[36:37], s[0:1], 0")
        a("s_load_dwordx2 s[40:41], s[0:1], 88")
        a("v_lshrrev_b32 v1, 6, v0")
        a("v_and_b32 v0, 63, v0")
        a("v_readfirstlane_b32 s%d, v1" % sWave)
        a("s_and_b32 s%d, s2, 7" % sT1)
        a("s_bfe_u32 s%d, s2, 0x30003" % sNt)
        a("s_lshr_b32 s%d, s2, 6" % sT)
        a("s_lshl_b32 s42, s%d, 4" % sT1)
        a("s_lshl_b32 s%d, s%d, 2" % (sT, sT))
        a("s_add_u32 s42, s42, s%d" % sT)
        a("s_add_u32 s42, s42, s%d" % sWave)
        a("s_lshl_b32 s43, s42, 14")
        a("v_lshlrev_b32 v1, 4, v0")
        a("v_add_u32 v%d, s43, v1" % s.vA[0])
        a("s_mul_i32 s%d, s%d, 4224" % (s.sLdsW, sWave))
        a("s_lshl_b32 s%d, s%d, 3" % (sT, sT1))
        a("s_add_u32 s%d, s%d, s%d" % (sT, sT, sNt))
        a("s_lshl_b32 s%d, s%d, 16" % (s.sDoff, sT))
        a("s_lshl_b32 s47, s%d, 10" % sT)
        a("s_add_u32 s47, s47, %d" % (8192 - 1024))
        a("s_lshl_b32 s%d, s%d, 12" % (sT, sWave))
        a("s_add_u32 s%d, s%d, s%d" % (s.sDoff, s.sDoff, sT))
        a("s_lshl_b32 s45, s%d, 11" % sWave)
        a("s_add_u32 s45, s45, %d" % s.LM)
        a("s_lshl_b32 s46, s%d, 10" % sT1)
        a("s_waitcnt lgkmcnt(0)")
        srd_off(a, s.sW, 40, WS_V, 4 * MB)
        srd_off(a, s.sA, 40, WS_WSF, 2 * MB)
        srd_off(a, sVM, 40, WS_VM, 8192 + 65536)
        if s.stamp is not None: stamp_mid(a, 3)
        s.xops = []
        for k in range(4):
            s.xops.append((0, s.xneed, [["s_add_u32 m0, s64, %d" % (k * 1024)],
                           "buffer_load_dwordx4 v%d, s[%d:%d], 0 offen lds" % (vXa + k, sX, sX + 3), ("x", k), []]))
        s.xops.append((0, s.xneed, [[], "buffer_load_dword v%d, v%d, s[%d:%d], 0 offen" % (vXM[0], vT + 3, sXM, sXM + 3), ("xm", 0), []]))
        s.xops.append((0, s.xneed, [[], "buffer_load_dword v%d, v%d, s[%d:%d], 0 offen" % (vXM[1], vRo, sXM, sXM + 3), ("xm", 1), []]))
        def early(p):
            p.i("s_mov_b32 m0, s45")
            p.i("s_nop 0")
            p.vm("buffer_load_dwordx4 v1, s[%d:%d], s46 offen lds" % (sVM, sVM + 3), ("vm", 0))
            p.vm("buffer_load_dwordx4 v1, s[%d:%d], s47 offen offset:1024 lds" % (sVM, sVM + 3), ("vm", 1))
        def late(p):
            I = p.i
            I("v_bfe_u32 v%d, v0, 2, 3" % vT)
            I("v_mul_u32_u24 v%d, 1056, v%d" % (vT, vT))
            I("v_lshrrev_b32 v%d, 5, v0" % (vT + 1))
            I("v_lshl_add_u32 v%d, v%d, 7, v%d" % (vT, vT + 1, vT))
            I("v_and_b32 v%d, 3, v0" % (vT + 1))
            I("v_lshl_add_u32 v%d, v%d, 3, v%d" % (s.vB[0], vT + 1, vT))
            s.base_setup(I)
            I("v_lshrrev_b32 v%d, 4, v0" % vT)
            I("v_lshlrev_b32 v%d, 4, v%d" % (vT, vT))
            I("v_and_b32 v%d, 1, v0" % (vT + 1))
            I("v_lshl_add_u32 v%d, v%d, 10, v%d" % (vT, vT + 1, vT))
            I("v_add_u32 v%d, s45, v%d" % (s.vMl, vT))
            I("v_and_b32 v%d, 15, v0" % vT)
            I("v_lshlrev_b32 v%d, 4, v%d" % (vT + 2, vT))
            I("s_lshl_b32 s%d, s42, 4" % sT)
            I("v_add_u32 v%d, s%d, v%d" % (vT + 3, sT, vT))
            I("v_lshlrev_b32 v%d, 2, v%d" % (vT + 3, vT + 3))
            I("s_and_b32 s65, s42, 15")
            I("s_lshl_b32 s65, s65, 7")
            I("s_add_u32 s65, s65, s%d" % sT1)
            I("s_sub_u32 s66, 2048, s65")
            I("v_lshlrev_b32 v%d, 3, v%d" % (vT + 4, vT))
            I("v_sub_u32 v%d, s66, v%d" % (vT + 4, vT + 4))
            I("v_and_b32 v%d, 0x7ff, v%d" % (vT + 4, vT + 4))
            I("v_and_b32 v%d, 7, v%d" % (vT + 5, vT + 4))
            I("v_lshrrev_b32 v%d, 3, v%d" % (vT + 4, vT + 4))
            I("v_lshl_add_u32 v%d, v%d, 8, v%d" % (vT + 4, vT + 5, vT + 4))
            I("v_lshlrev_b32 v%d, 2, v%d" % (vRo, vT + 4))
            I("v_lshrrev_b32 v%d, 4, v%d" % (vT + 5, vT + 4))
            I("v_and_b32 v%d, 15, v%d" % (vT + 4, vT + 4))
            I("v_lshlrev_b32 v%d, 4, v%d" % (vT + 4, vT + 4))
            I("v_lshl_add_u32 v%d, v%d, 10, v%d" % (vSo, vT + 5, vT + 4))
            I("v_lshl_add_u32 v%d, v%d, 15, v%d" % (vHo, vT + 5, vT + 4))
            I("v_lshrrev_b32 v%d, 4, v0" % (vT + 5))
            I("v_xor_b32 v%d, 3, v%d" % (vT + 5, vT + 5))
            I("v_lshl_add_u32 v%d, v%d, 8, v%d" % (vHo, vT + 5, vHo))
            I("v_lshrrev_b32 v%d, 4, v0" % (vT + 4))
            I("v_and_b32 v%d, 7, v0" % (vT + 5))
            I("v_xor_b32 v%d, v%d, v%d" % (vT + 4, vT + 4, vT + 5))
            I("v_lshlrev_b32 v%d, 4, v%d" % (vT + 4, vT + 4))
            I("v_and_b32 v%d, 0x38, v0" % (vT + 5))
            I("s_lshl_b32 s67, s%d, 7" % sNt)
            I("s_sub_u32 s68, %d, s67" % (15 * 128))
            for k in range(4):
                if k < 2: I("v_add_u32 v%d, s65, v%d" % (vT + 6, vT + 5))
                else: I("v_sub_u32 v%d, s66, v%d" % (vT + 6, vT + 5))
                if k % 2:
                    I("v_add_u32 v%d, %d, v%d" % (vT + 6, 64 if k < 2 else -64, vT + 6))
                I("v_and_b32 v%d, 0x7ff, v%d" % (vT + 6, vT + 6))
                I("v_lshl_add_u32 v%d, v%d, 11, v%d" % (vT + 6, vT + 6, vT + 4))
                if k % 2: I("v_xor_b32 v%d, 64, v%d" % (vT + 6, vT + 6))
                I("v_add_u32 v%d, s%d, v%d" % (vXa + k, 67 if k < 2 else 68, vT + 6))
            I("s_lshl_b32 s64, s%d, 12" % sWave)
            I("s_add_u32 s64, s64, %d" % s.LX)
            I("v_lshlrev_b32 v%d, 7, v%d" % (vT + 1, vT))
            I("v_add_u32 v%d, s64, v%d" % (vT + 1, vT + 1))
            I("v_bfe_u32 v%d, v0, 4, 1" % (vT + 4))
            I("v_lshl_add_u32 v%d, v%d, 3, v%d" % (vT + 1, vT + 4, vT + 1))
            I("v_lshrrev_b32 v%d, 5, v0" % (vT + 4))
            I("v_lshrrev_b32 v%d, 1, v%d" % (vT + 5, vT))
            I("v_xor_b32 v%d, v%d, v%d" % (vT + 4, vT + 4, vT + 5))
            for j in range(4):
                I("v_xor_b32 v%d, %d, v%d" % (vT + 5, 2 * j, vT + 4))
                I("v_lshl_add_u32 v%d, v%d, 4, v%d" % (vXr + j, vT + 5, vT + 1))
            I("v_add_u32 v12, 16, v0")
            I("v_and_b32 v12, 63, v12")
            I("v_lshlrev_b32 v12, 2, v12")
            srd_off(I, s.sS, 40, WS_SS, 2048 * 64)
            srd_off(I, s.sO, 40, WS_HC, 4 * MB)
            srd_off(I, sX, 36, 0, 2048 * 2048)
            srd_off(I, sM, 40, WS_MT, 8192)
            srd_off(I, sXM, 40, WS_XM, 8192)
            I("s_lshl_b32 s44, s42, 15")
            I("s_lshl_b32 s%d, s%d, 11" % (sT, sNt))
            I("s_add_u32 s44, s44, s%d" % sT)
            I("s_sub_u32 s69, %d, s%d" % (15 * 2048, sT))
            for dst, src in ((45, sNt), (70, 71)):
                if dst == 70: I("s_sub_u32 s71, 15, s%d" % sNt)
                I("s_lshr_b32 s%d, s%d, 2" % (sT, src))
                I("s_lshl_b32 s%d, s%d, 8" % (dst, sT))
                I("s_and_b32 s%d, s%d, 3" % (sT, src))
                I("s_lshl_b32 s%d, s%d, 2" % (sT, sT))
                I("s_add_u32 s%d, s%d, s%d" % (dst, dst, sT))
            I("s_lshl_b32 s%d, s42, 10" % sT)
            I("s_add_u32 s45, s45, s%d" % sT)
            I("v_cmp_lt_u32 s[38:39], 47, v0")
        def tail(e):
            R_ = 48
            for j in range(4):
                e.ds("ds_bpermute_b32 v%d, v12, v%d" % (R_ + j, s.acc(j, 0)), ("bp", j))
            e.wv("side", [("x", k) for k in range(4)] + [("xm", i) for i in range(2)])
            for j in range(4):
                e.ds("ds_read_b64 v[%d:%d], v%d" % (vX + 2 * j, vX + 2 * j + 1, vXr + j), ("xr", 0, j))
            for j in range(4):
                e.i("v_xor_b32 v%d, 24, v%d" % (vXr + j, vXr + j))
                e.ds("ds_read_b64 v[%d:%d], v%d offset:2048" % (vX + 8 + 2 * j, vX + 8 + 2 * j + 1, vXr + j), ("xr", 1, j))
            for i in range(2):
                e.i("v_add_f32 v%d, v%d, v%d" % (vXM[i], vXM[i], s.vAccM))
            e.i("v_mov_b32 v%d, v%d" % (R_ + 4, s.vAccM + 1))
            e.wl("bpw", [("bp", j) for j in range(4)])
            for j in range(4):
                e.i("v_cndmask_b32 v%d, v%d, v%d, s[38:39]" % (R_ + j, R_ + j, R_ + j + 1))
            for i in range(2):
                m = vXM[i]
                ssr = 60 + 2 * i
                for j in range(4):
                    c = s.acc(j, 0) if i == 0 else s.acc(3 - j, 0)
                    src = [c, c + 1, c + 2, c + 3] if i == 0 else [R_ + 3 - j, c + 3, c + 2, c + 1]
                    x = vX + (i * 4 + j) * 2
                    t = vT + 4
                    e.wl(("xr", i, j), [("xr", i, j)])
                    e.i("v_lshlrev_b32 v%d, 16, v%d" % (t, x))
                    e.i("v_and_b32 v%d, 0xffff0000, v%d" % (t + 1, x))
                    e.i("v_lshlrev_b32 v%d, 16, v%d" % (t + 2, x + 1))
                    e.i("v_and_b32 v%d, 0xffff0000, v%d" % (t + 3, x + 1))
                    for r in range(4): e.i("v_sub_f32 v%d, v%d, v%d" % (t + r, t + r, m))
                    for r in range(4): e.i("v_add_f32 v%d, v%d, v%d" % (t + r, t + r, src[r]))
                    e.i("v_cvt_pk_bf16_f32 v%d, v%d, v%d" % (x, t, t + 1))
                    e.i("v_cvt_pk_bf16_f32 v%d, v%d, v%d" % (x + 1, t + 2, t + 3))
                    if j % 2 == 1:
                        e.vm("buffer_store_dwordx4 v[%d:%d], v%d, s[%d:%d], s%d offen offset:%d%s" % (x - 2, x + 1, 1 if i == 0 else vHo, s.sO, s.sO + 3, 44 if i == 0 else 69, (j // 2) * 1024, s.st_flags))
                    for r in range(4):
                        if j == 0 and r == 0: e.i("v_mul_f32 v%d, v%d, v%d" % (ssr, t, t))
                        else: e.i("v_fmac_f32 v%d, v%d, v%d" % (ssr, t + r, t + r))
                reduce_g4(e.i, ssr, ssr + 1)
                e.vm("buffer_store_dword v%d, v%d, s[%d:%d], s%d offen" % (ssr, vT + 2 if i == 0 else vSo, s.sS, s.sS + 3, 45 if i == 0 else 70))
            e.i("s_cmp_lg_u32 s%d, 0" % sNt)
            e.i("s_cbranch_scc1 %s_nomt" % s.name)
            e.vm("buffer_store_dword v%d, v%d, s[%d:%d], 0 offen" % (vXM[0], vT + 3, sM, sM + 3))
            e.label("%s_nomt" % s.name)
        s.tail = tail
        s.emit_main(a, early, late)
        s.footer(a, s.aM + 16, s.LX + 16384)
```

```python
import sys
from common import *
from gemm2 import *
import k1b, k1c
HEADER = """pre-LN FNet mixing + pre-LN SwiGLU FFN, gfx950. 4 launches:
k1: LayerNorm(x) + 1024-pt DFT along hidden (2-stage 32x32 MFMA factorisation) + radix-8 step of the sequence DFT
k2: remaining 256-pt part of the sequence DFT as GEMM with the input DFT matrices, residual, row-centering, row sum-of-squares
g3: gate/up GEMM + SiLU*up (LayerNorm scale folded in)
g4: down GEMM + residual"""
def build(stamp=False, c3={}, c4={}, c2={}, c1={}, split=True, herm=True):
    a = Asm()
    (k1c if herm else k1b).gen_k1(a, stamp=0 if stamp else None, **c1)
    (K2H if herm else K2)(stamp=1 if stamp else None, **c2).gen(a)
    c3 = dict(c3); c3.setdefault('fill', 4 * (c4.get('SK', 2) - 1) if split else 0)
    G3(stamp=2 if stamp else None, **c3).gen(a)
    (G4S if split else G4)(stamp=3 if stamp else None, **c4).gen(a)
    a.label('code_end')
    return a.text(HEADER)
if __name__ == "__main__":
    out = sys.argv[1] if len(sys.argv) > 1 else "sequential_preLN__spectral_fnet__swiglu_ffn__prompt.s"
    open(out, "w").write(build())
```

```python
from common import *
import math

def gen_k1(a, stamp=None, prefetch=1, codepf=True, selfpf=True, st_flags=" sc1", early_touch=True, wsf_flags='', wsload=False):
    name = "k1_kernel"
    ZROW = 4608
    LX = 8 * ZROW
    LX0 = LX + 8 * 2048
    LDS = LX0 + 64
    sWave, sT = 24, 31
    sX, sV, sVM, sXM, sWs, sWF = 8, 12, 16, 20, 44, 48
    vRaw, vF, vWr, vWi, vWn, vTr, vTi, vXop, vD, vU = 4, 16, 32, 40, 48, 56, 72, 88, 96, 128
    vT = 144
    vJ = 160
    a.begin_kernel(name)
    a("s_cmp_ge_u32 s2, 256")
    a("s_cbranch_scc1 %s_end" % name)
    if stamp is not None: stamp_begin(a)
    a("s_load_dwordx2 s[36:37], s[0:1], 0")
    a("s_load_dwordx4 s[52:55], s[0:1], 8")
    a("s_load_dwordx2 s[40:41], s[0:1], 88")
    a("s_load_dwordx4 s[56:59], s[0:1], 48")
    if selfpf: self_code_touch(a, name, "%s_end" % name, vJ + 1, vJ, 4, 3)
    a("v_lshrrev_b32 v1, 6, v0")
    a("v_and_b32 v0, 63, v0")
    a("v_readfirstlane_b32 s%d, v1" % sWave)
    a("v_lshlrev_b32 v1, 4, v0")
    a("s_lshl_b32 s25, s%d, 8" % sWave)
    a("s_add_u32 s25, s25, s2")
    a("s_lshl_b32 s26, s25, 11")
    a("s_and_b32 s27, s2, 7")
    a("s_lshl_b32 s27, s27, 8")
    a("s_and_b32 s28, s2, 0xf8")
    a("s_add_u32 s27, s27, s28")
    a("s_add_u32 s27, s27, s%d" % sWave)
    a("s_lshr_b32 s28, s27, 4")
    a("s_lshl_b32 s28, s28, 4")
    a("v_and_b32 v2, 15, v0")
    a("v_add_u32 v%d, s28, v2" % vT)
    a("v_lshrrev_b32 v%d, 8, v%d" % (vT + 1, vT))
    a("v_and_b32 v%d, 255, v%d" % (vT, vT))
    a("v_lshl_add_u32 v%d, v%d, 3, v%d" % (vT, vT, vT + 1))
    a("v_lshrrev_b32 v%d, 4, v0" % (vT + 1))
    if wsload:
        a("v_lshlrev_b32 v%d, 12, v%d" % (vT, vT))
        a("v_lshl_add_u32 v%d, v%d, 3, v%d" % (vT, vT + 1, vT))
        a("s_and_b32 s28, s27, 7")
        a("s_lshl_b32 s28, s28, 6")
    a("s_waitcnt lgkmcnt(0)")
    srd_off(a, sX, 36, 0, 2048 * 2048)
    a("buffer_load_dwordx4 v[%d:%d], v1, s[%d:%d], s26 offen" % (vRaw, vRaw + 3, sX, sX + 3))
    a("buffer_load_dwordx4 v[%d:%d], v1, s[%d:%d], s26 offen offset:1024" % (vRaw + 4, vRaw + 7, sX, sX + 3))
    if wsload:
        a("s_bitcmp1_b32 s27, 3")
        a("s_cselect_b32 s%d, s54, s52" % sWs)
        a("s_cselect_b32 s%d, s55, s53" % (sWs + 1))
        a("s_and_b32 s%d, s%d, 0xffff" % (sWs + 1, sWs + 1))
        a("s_mov_b32 s%d, %d" % (sWs + 2, 2048 * 4096))
        a("s_mov_b32 s%d, 0x00020000" % (sWs + 3))
        a("buffer_load_dwordx2 v[12:13], v%d, s[%d:%d], s28 offen" % (vT, sWs, sWs + 3))
        a("buffer_load_dwordx2 v[14:15], v%d, s[%d:%d], s28 offen offset:32" % (vT, sWs, sWs + 3))
    srd_off(a, sV, 40, WS_V, 8 * MB)
    srd_off(a, sVM, 40, WS_VM, 8192)
    srd_off(a, sXM, 40, WS_XM, 8192)
    srd_off(a, sWF, 40, WS_WSF, 2 * MB)
    if not wsload:
        a("v_cvt_f32_u32 v%d, v%d" % (vT, vT))
        a("v_mul_f32 v%d, 0x%x, v%d" % (vT, f2u(1.0 / 2048), vT))
        a("s_and_b32 s28, s27, 7")
        a("s_lshl_b32 s28, s28, 5")
        a("v_lshl_add_u32 v%d, v%d, 2, s28" % (vT + 2, vT + 1))
        a("v_cvt_f32_u32 v%d, v%d" % (vT + 2, vT + 2))
        a("s_bitcmp1_b32 s27, 3")
        a("s_cselect_b32 s28, 0x%x, 0" % f2u(0.25))
        for h in range(2):
            for r in range(4):
                a("v_add_f32 v%d, 0x%x, v%d" % (vT + 3, f2u(16.0 * h + r), vT + 2))
                a("v_fma_f32 v%d, v%d, v%d, s28" % (vT + 3, vT + 3, vT))
                a("v_fract_f32 v%d, v%d" % (vT + 3, vT + 3))
                a("v_cos_f32 v%d, v%d" % (vT + 4 + r, vT + 3))
            a("s_nop 0")
            a("v_cvt_pk_f16_f32 v%d, v%d, v%d" % (12 + 2 * h, vT + 4, vT + 5))
            a("v_cvt_pk_f16_f32 v%d, v%d, v%d" % (13 + 2 * h, vT + 6, vT + 7))
        a("s_lshl_b32 s28, s27, 10")
        a("buffer_store_dwordx4 v[12:15], v1, s[%d:%d], s28 offen%s" % (sWF, sWF + 3, wsf_flags))
    a("v_cvt_f32_u32 v%d, v2" % (vT + 2))
    a("v_lshlrev_b32 v%d, 2, v%d" % (vT + 1, vT + 1))
    a("v_cvt_f32_u32 v%d, v%d" % (vT + 3, vT + 1))
    for blk in range(2):
        a("v_add_f32 v%d, 0x%x, v%d" % (vT + 4, f2u(16.0 * blk), vT + 2))
        a("v_mul_f32 v%d, 0x%x, v%d" % (vT + 5, f2u(1.0 / 1024), vT + 4))
        a("v_mul_f32 v%d, 0x%x, v%d" % (vT + 4, f2u(1.0 / 32), vT + 4))
        for half in range(2):
            for rp in range(2):
                for q in range(2):
                    r = 2 * rp + q
                    a("v_add_f32 v%d, 0x%x, v%d" % (vT + 6, f2u(16.0 * half + r), vT + 3))
                    a("v_mul_f32 v%d, v%d, v%d" % (vT + 7, vT + 6, vT + 4))
                    a("v_mul_f32 v%d, v%d, v%d" % (vT + 6, vT + 6, vT + 5))
                    a("v_fract_f32 v%d, v%d" % (vT + 7, vT + 7))
                    a("v_cos_f32 v%d, v%d" % (vT + 8 + q, vT + 7))
                    a("v_sin_f32 v%d, v%d" % (vT + 10 + q, vT + 7))
                    a("v_cos_f32 v%d, v%d" % (vTr + (half * 2 + blk) * 4 + r, vT + 6))
                    a("v_sin_f32 v%d, v%d" % (vTi + (half * 2 + blk) * 4 + r, vT + 6))
                d = blk * 4 + half * 2 + rp
                a("v_cvt_pk_f16_f32 v%d, v%d, v%d" % (vWr + d, vT + 8, vT + 9))
                a("v_cvt_pk_f16_f32 v%d, v%d, v%d" % (vWn + d, vT + 10, vT + 11))
                a("v_xor_b32 v%d, 0x80008000, v%d" % (vWi + d, vWn + d))
    a("s_lshl_b32 s29, s%d, 11" % sWave)
    a("s_add_u32 s29, s29, %d" % LX)
    a("v_add_u32 v%d, s29, v1" % (vT + 12))
    a("v_lshrrev_b32 v%d, 2, v0" % (vT + 13))
    a("v_lshlrev_b32 v%d, 6, v%d" % (vT + 13, vT + 13))
    a("v_and_b32 v%d, 3, v0" % (vT + 14))
    a("v_lshl_add_u32 v%d, v%d, 3, v%d" % (vT + 13, vT + 14, vT + 13))
    a("v_add_u32 v%d, s29, v%d" % (vT + 13, vT + 13))
    a("v_mul_u32_u24 v%d, 144, v2" % (vT + 14))
    a("v_lshl_add_u32 v%d, v%d, 2, v%d" % (vT + 14, vT + 1, vT + 14))
    a("s_mul_i32 s30, s%d, %d" % (sWave, ZROW))
    a("v_add_u32 v%d, s30, v%d" % (vT + 14, vT + 14))
    a("s_and_b32 s30, s%d, 3" % sWave)
    a("s_lshl_b32 s%d, s30, 6" % sT)
    a("v_and_b32 v%d, 31, v0" % (vT + 8))
    a("v_lshrrev_b32 v%d, 5, v0" % (vT + 9))
    a("v_lshl_add_u32 v%d, v%d, 1, v%d" % (vT + 10, vT + 8, vT + 9))
    a("v_add_u32 v%d, s%d, v%d" % (vT + 10, sT, vT + 10))
    a("v_lshrrev_b32 v%d, 3, v%d" % (vT + 11, vT + 10))
    a("v_add_u32 v%d, v%d, v%d" % (vT + 10, vT + 10, vT + 11))
    a("v_lshlrev_b32 v%d, 4, v%d" % (vT + 15, vT + 10))
    a("v_lshrrev_b32 v%d, 3, v%d" % (vT + 10, vT + 8))
    a("v_lshlrev_b32 v%d, 16, v%d" % (vT + 10, vT + 10))
    a("v_and_b32 v%d, 7, v0" % (vT + 11))
    a("v_lshl_add_u32 v%d, v%d, 4, v%d" % (vT + 10, vT + 11, vT + 10))
    a("v_lshl_add_u32 v%d, v%d, 15, v%d" % (vT + 10, vT + 9, vT + 10))
    a("s_lshl_b32 s30, s30, 18")
    a("v_add_u32 v3, s30, v%d" % (vT + 10))
    a("s_and_b32 s26, s2, 0xc0")
    a("s_and_b32 s%d, s2, 7" % sT)
    a("s_lshl_b32 s%d, s%d, 3" % (sT, sT))
    a("s_add_u32 s26, s26, s%d" % sT)
    a("s_bfe_u32 s%d, s2, 0x30003" % sT)
    a("s_add_u32 s26, s26, s%d" % sT)
    a("s_lshl_b32 s26, s26, 7")
    a("s_and_b32 s%d, s25, 7" % sT)
    a("s_lshl_b32 s%d, s%d, 8" % (sT, sT))
    a("s_lshr_b32 s33, s25, 3")
    a("s_add_u32 s33, s33, s%d" % sT)
    a("s_lshl_b32 s33, s33, 2")
    a("s_lshr_b32 s35, s2, 3")
    a("s_lshl_b32 s35, s35, 3")
    a("s_add_u32 s35, s35, s%d" % sWave)
    if prefetch:
        a("s_bitcmp1_b32 s35, 7")
        a("s_cselect_b32 s64, s58, s56")
        a("s_cselect_b32 s65, s59, s57")
        a("s_and_b32 s65, s65, 0xffff")
        a("s_mov_b32 s66, %d" % (1024 * 7168))
        a("s_mov_b32 s67, 0x00020000")
        a("s_and_b32 s29, s35, 127")
        a("s_mul_i32 s29, s29, %d" % (4 * 7168))
        a("s_and_b32 s34, s2, 7")
        a("s_mul_i32 s34, s34, 896")
        a("s_add_u32 s29, s29, s34")
        a("v_mul_u32_u24 v%d, 9363, v0" % (vJ + 2))
        a("v_lshrrev_b32 v%d, 16, v%d" % (vJ + 2, vJ + 2))
        a("v_mul_u32_u24 v%d, %d, v%d" % (vJ + 2, 7168 - 7 * 128, vJ + 2))
        a("v_lshl_add_u32 v%d, v0, 7, v%d" % (vJ + 2, vJ + 2))
        a("v_cmp_lt_u32 vcc, 27, v0")
        a("v_mov_b32 v%d, 0x40000000" % (vJ + 3))
        a("s_nop 0")
        a("v_cndmask_b32 v%d, v%d, v%d, vcc" % (vJ + 2, vJ + 2, vJ + 3))
    if codepf:
        a("s_getpc_b64 s[62:63]")
        a.label("k1_pc2")
        a("s_add_u32 s62, s62, k2_kernel - k1_pc2")
        a("s_addc_u32 s63, s63, 0")
        a("s_min_u32 s34, s35, (code_end - k2_kernel) / 8192 - 1")
        a("s_lshl_b32 s34, s34, 13")
        a("v_lshlrev_b32 v%d, 7, v0" % (vJ + 3))
        a("v_add_u32 v%d, s34, v%d" % (vJ + 3, vJ + 3))
    if stamp is not None: stamp_mid(a, 3)
    npf = 0
    def touches():
        n = 0
        if codepf:
            a("global_load_dword v%d, v%d, s[62:63]" % (vJ, vJ + 3)); n += 1
        if prefetch:
            a("buffer_load_dword v%d, v%d, s[64:67], s29 offen" % (vJ, vJ + 2)); n += 1
        return n
    if early_touch: npf = touches()
    a("s_waitcnt vmcnt(%d)" % ((2 if wsload else 1) + npf))
    if not early_touch: npf = touches()
    a("v_readfirstlane_b32 s30, v%d" % vRaw)
    for k in range(8):
        a("v_lshlrev_b32 v%d, 16, v%d" % (vF + 2 * k, vRaw + k))
        a("v_and_b32 v%d, 0xffff0000, v%d" % (vF + 2 * k + 1, vRaw + k))
    a("s_lshl_b32 s30, s30, 16")
    for k in range(16):
        a("v_subrev_f32 v%d, s30, v%d" % (vF + k, vF + k))
    s0 = vT
    a("v_add_f32 v%d, v%d, v%d" % (s0, vF, vF + 1))
    a("v_mul_f32 v%d, v%d, v%d" % (s0 + 2, vF, vF))
    a("v_add_f32 v%d, v%d, v%d" % (s0 + 1, vF + 2, vF + 3))
    a("v_mul_f32 v%d, v%d, v%d" % (s0 + 3, vF + 1, vF + 1))
    for k in range(2, 16, 2):
        if k >= 4:
            a("v_add_f32 v%d, v%d, v%d" % (s0, s0, vF + k))
            a("v_add_f32 v%d, v%d, v%d" % (s0 + 1, s0 + 1, vF + k + 1))
        a("v_fmac_f32 v%d, v%d, v%d" % (s0 + 2, vF + k, vF + k))
        a("v_fmac_f32 v%d, v%d, v%d" % (s0 + 3, vF + k + 1, vF + k + 1))
    a("v_add_f32 v%d, v%d, v%d" % (s0, s0, s0 + 1))
    a("v_add_f32 v%d, v%d, v%d" % (s0 + 2, s0 + 2, s0 + 3))
    for sh in (8, 4, 2, 1):
        a("s_nop 0")
        a("v_add_f32_dpp v%d, v%d, v%d row_ror:%d row_mask:0xf bank_mask:0xf" % (s0, s0, s0, sh))
        a("v_add_f32_dpp v%d, v%d, v%d row_ror:%d row_mask:0xf bank_mask:0xf" % (s0 + 2, s0 + 2, s0 + 2, sh))
    for op in ("v_permlane32_swap_b32", "v_permlane16_swap_b32"):
        a("v_mov_b32 v%d, v%d" % (s0 + 1, s0))
        a("v_mov_b32 v%d, v%d" % (s0 + 3, s0 + 2))
        a("s_nop 0")
        a("%s v%d, v%d" % (op, s0, s0 + 1))
        a("%s v%d, v%d" % (op, s0 + 2, s0 + 3))
        a("v_add_f32 v%d, v%d, v%d" % (s0, s0, s0 + 1))
        a("v_add_f32 v%d, v%d, v%d" % (s0 + 2, s0 + 2, s0 + 3))
    a("v_mul_f32 v%d, 0x%x, v%d" % (s0, f2u(1.0 / 1024), s0))
    a("v_mul_f32 v%d, 0x%x, v%d" % (s0 + 2, f2u(1.0 / 1024), s0 + 2))
    a("v_fma_f32 v%d, -v%d, v%d, v%d" % (s0 + 2, s0, s0, s0 + 2))
    a("v_max_f32 v%d, 0, v%d" % (s0 + 2, s0 + 2))
    a("v_add_f32 v%d, 0x%x, v%d" % (s0 + 2, f2u(1e-5), s0 + 2))
    a("v_rsq_f32 v%d, v%d" % (s0 + 3, s0 + 2))
    a("v_add_f32 v%d, s30, v%d" % (s0 + 4, s0))
    a("v_mul_f32 v%d, v%d, v%d" % (s0 + 1, s0, s0 + 3))
    for k in range(16):
        a("v_fma_f32 v%d, v%d, v%d, -v%d" % (vF + k, vF + k, s0 + 3, s0 + 1))
    for k in range(8):
        a("v_cvt_pk_f16_f32 v%d, v%d, v%d" % (vRaw + k, vF + 2 * k, vF + 2 * k + 1))
    a("ds_write_b128 v%d, v[%d:%d]" % (vT + 12, vRaw, vRaw + 3))
    a("ds_write_b128 v%d, v[%d:%d] offset:1024" % (vT + 12, vRaw + 4, vRaw + 7))
    a("v_mov_b32 v%d, 0" % (s0 + 5))
    a("buffer_store_dword v%d, v%d, s[%d:%d], s33 offen" % (s0 + 4, s0 + 5, sXM, sXM + 3))
    a("v_readfirstlane_b32 s30, v%d" % vF)
    a("s_lshl_b32 s%d, s%d, 2" % (sT, sWave))
    a("s_add_u32 s%d, s%d, %d" % (sT, sT, LX0))
    a("s_waitcnt lgkmcnt(0)")
    for ib in range(2):
        for h in range(2):
            a("ds_read_b64_tr_b16 v[%d:%d], v%d offset:%d" % (vXop + ib * 4 + 2 * h, vXop + ib * 4 + 2 * h + 1, vT + 13, h * 1024 + ib * 32))
    a("v_mov_b32 v%d, s%d" % (s0 + 6, sT))
    a("v_mov_b32 v%d, s30" % (s0 + 7))
    a("ds_write_b32 v%d, v%d" % (s0 + 6, s0 + 7))
    if wsload:
        a("s_waitcnt vmcnt(%d)" % (1 + npf))
        for k in range(4):
            a("v_lshlrev_b32 v%d, 16, v%d" % (vF + 2 * k, 12 + k))
            a("v_and_b32 v%d, 0xffff0000, v%d" % (vF + 2 * k + 1, 12 + k))
        for k in range(4):
            a("v_cvt_pk_f16_f32 v%d, v%d, v%d" % (12 + k, vF + 2 * k, vF + 2 * k + 1))
        a("s_lshl_b32 s27, s27, 10")
        a("buffer_store_dwordx4 v[12:15], v1, s[%d:%d], s27 offen%s" % (sWF, sWF + 3, wsf_flags))
    if stamp is not None: stamp_mid(a, 0)
    a("s_waitcnt lgkmcnt(0)")
    D1 = lambda ib, jb, p: vD + ((ib * 2 + jb) * 2 + p) * 4
    for jb in range(2):
        for ib in range(2):
            for p in range(2):
                w = (vWr if p == 0 else vWi) + jb * 4
                a("v_mfma_f32_16x16x32_f16 v[%d:%d], v[%d:%d], v[%d:%d], 0" % (D1(ib, jb, p), D1(ib, jb, p) + 3, vXop + ib * 4, vXop + ib * 4 + 3, w, w + 3))
    a("s_nop 3")
    D2 = lambda jb, fb, p: 16 + ((fb) * 2 + p) * 4 if jb == 0 else vD + ((fb) * 2 + p) * 4 * 0 + (0)
    U_ = lambda jb, p: vU + (jb * 2 + p) * 4
    def D2(jb, fb, p):
        if jb == 0: return 16 + (fb * 2 + p) * 4
        return D1(fb, 0, p)
    for jb in range(2):
        for ib in range(2):
            for r in range(4):
                ur, ui = D1(ib, jb, 0) + r, D1(ib, jb, 1) + r
                c, s_ = vTr + (ib * 2 + jb) * 4 + r, vTi + (ib * 2 + jb) * 4 + r
                a("v_mul_f32 v%d, v%d, v%d" % (vT + r, ur, c))
                a("v_mul_f32 v%d, v%d, v%d" % (vT + 4 + r, ui, c))
                a("v_fmac_f32 v%d, v%d, v%d" % (vT + r, ui, s_))
                a("v_fma_f32 v%d, -v%d, v%d, v%d" % (vT + 4 + r, ur, s_, vT + 4 + r))
            for p in range(2):
                u = U_(jb, p) + ib * 2
                a("v_cvt_pk_f16_f32 v%d, v%d, v%d" % (u, vT + 4 * p, vT + 4 * p + 1))
                a("v_cvt_pk_f16_f32 v%d, v%d, v%d" % (u + 1, vT + 4 * p + 2, vT + 4 * p + 3))
        a("s_nop 1")
        for fb in range(2):
            d = D2(jb, fb, 0)
            a("v_mfma_f32_16x16x32_f16 v[%d:%d], v[%d:%d], v[%d:%d], 0" % (d, d + 3, U_(jb, 0), U_(jb, 0) + 3, vWr + fb * 4, vWr + fb * 4 + 3))
            a("v_mfma_f32_16x16x32_f16 v[%d:%d], v[%d:%d], v[%d:%d], v[%d:%d]" % (d, d + 3, U_(jb, 1), U_(jb, 1) + 3, vWn + fb * 4, vWn + fb * 4 + 3, d, d + 3))
            d = D2(jb, fb, 1)
            a("v_mfma_f32_16x16x32_f16 v[%d:%d], v[%d:%d], v[%d:%d], 0" % (d, d + 3, U_(jb, 0), U_(jb, 0) + 3, vWi + fb * 4, vWi + fb * 4 + 3))
            a("v_mfma_f32_16x16x32_f16 v[%d:%d], v[%d:%d], v[%d:%d], v[%d:%d]" % (d, d + 3, U_(jb, 1), U_(jb, 1) + 3, vWr + fb * 4, vWr + fb * 4 + 3, d, d + 3))
    for jb in range(2):
        if jb == 1: a("s_nop 1")
        for fb in range(2):
            o = vRaw + fb * 4 if jb == 0 else vXop + fb * 4
            for p in range(2):
                d = D2(jb, fb, p)
                a("v_cvt_pk_f16_f32 v%d, v%d, v%d" % (o + 2 * p, d, d + 1))
                a("v_cvt_pk_f16_f32 v%d, v%d, v%d" % (o + 2 * p + 1, d + 2, d + 3))
            a("ds_write_b128 v%d, v[%d:%d] offset:%d" % (vT + 14, o, o + 3, fb * 16 * 144 + jb * 64))
    a("s_waitcnt lgkmcnt(0)")
    a("s_barrier")
    if stamp is not None: stamp_mid(a, 1)
    Z = lambda k: 16 + k * 4
    for k in (0, 4, 2, 6, 1, 5, 3, 7):
        a("ds_read_b128 v[%d:%d], v%d offset:%d" % (Z(k), Z(k) + 3, vT + 15, k * ZROW))
    def pk(d, x, y, nx=0, ny=0):
        m = " neg_lo:[%d,%d] neg_hi:[%d,%d]" % (nx, ny, nx, ny) if (nx or ny) else ""
        a("v_pk_add_f16 v%d, v%d, v%d%s" % (d, x, y, m))
    P = lambda k: 48 + k * 4
    X = lambda m: 64 + m * 4
    def dft4_store(t1_of_m, b):
        for h in range(2):
            for p in range(2):
                (r0, n0), (r2, n2) = b[0][p], b[2][p]
                (r1, n1), (r3, n3) = b[1][p], b[3][p]
                pk(P(0) + 2 * p + h, r0 + h, r2 + h, n0, n2)
                pk(P(1) + 2 * p + h, r0 + h, r2 + h, n0, 1 - n2)
                pk(P(2) + 2 * p + h, r1 + h, r3 + h, n1, n3)
                pk(P(3) + 2 * p + h, r1 + h, r3 + h, n1, 1 - n3)
        for m in range(4):
            for h in range(2):
                re, im = 0 + h, 2 + h
                if m == 0:
                    pk(X(0) + re, P(0) + re, P(2) + re); pk(X(0) + im, P(0) + im, P(2) + im, 1, 1)
                elif m == 2:
                    pk(X(2) + re, P(0) + re, P(2) + re, 0, 1); pk(X(2) + im, P(2) + im, P(0) + im, 0, 1)
                elif m == 1:
                    pk(X(1) + re, P(1) + re, P(3) + im); pk(X(1) + im, P(3) + re, P(1) + im, 0, 1)
                else:
                    pk(X(3) + re, P(1) + re, P(3) + im, 0, 1); pk(X(3) + im, P(1) + im, P(3) + re, 1, 1)
            a("s_add_u32 s30, s26, 0x%x" % (t1_of_m(m) * MB))
            a("s_nop 0")
            a("v_permlane32_swap_b32 v%d, v%d" % (X(m), X(m) + 2))
            a("v_permlane32_swap_b32 v%d, v%d" % (X(m) + 1, X(m) + 3))
            a("buffer_store_dwordx4 v[%d:%d], v3, s[%d:%d], s30 offen%s" % (X(m), X(m) + 3, sV, sV + 3, st_flags))
    a("s_cmp_ge_u32 s%d, 4" % sWave)
    a("s_cbranch_scc1 %s_odd" % name)
    for n, k in enumerate((0, 2, 1, 3)):
        a("s_waitcnt lgkmcnt(%d)" % (6 - 2 * n))
        for c in range(4): pk(Z(k) + c, Z(k) + c, Z(k + 4) + c)
    dft4_store(lambda m: 2 * m, [((Z(k), 0), (Z(k) + 2, 0)) for k in range(4)])
    a("s_cmp_lg_u32 s%d, 0" % sWave)
    a("s_cbranch_scc1 %s_done" % name)
    a("v_mov_b32 v16, %d" % LX0)
    a("ds_read_b128 v[20:23], v16")
    a("ds_read_b128 v[24:27], v16 offset:16")
    a("v_and_b32 v17, 7, v0")
    a("v_cvt_f32_u32 v18, v17")
    a("v_mul_f32 v18, 0x%x, v18" % f2u(0.125))
    a("v_bfe_u32 v19, v0, 3, 1")
    a("v_cvt_f32_u32 v28, v19")
    a("v_mul_f32 v28, 0x%x, v28" % f2u(-0.25))
    a("v_mov_b32 v29, 0")
    for k in range(8):
        a("v_mov_b32 v31, 0x%x" % f2u(float(k)))
        a("v_fma_f32 v%d, v18, v31, v28" % (32 + k))
        a("v_fract_f32 v%d, v%d" % (32 + k, 32 + k))
        a("v_cos_f32 v%d, v%d" % (32 + k, 32 + k))
    a("s_waitcnt lgkmcnt(0)")
    for k in range(8):
        a("v_fmac_f32 v29, v%d, v%d" % (32 + k, 20 + k))
    a("v_cvt_pk_f16_f32 v29, v29, v29")
    a("s_lshr_b32 s26, s2, 5")
    a("s_lshl_b32 s26, s26, 6")
    a("s_bfe_u32 s%d, s2, 0x20002" % sT)
    a("s_lshl_b32 s%d, s%d, 4" % (sT, sT))
    a("s_add_u32 s26, s26, s%d" % sT)
    a("s_bfe_u32 s%d, s2, 0x10004" % sT)
    a("s_lshl_b32 s%d, s%d, 3" % (sT, sT))
    a("s_add_u32 s26, s26, s%d" % sT)
    a("s_and_b32 s%d, s2, 3" % sT)
    a("s_lshl_b32 s%d, s%d, 1" % (sT, sT))
    a("s_add_u32 s26, s26, s%d" % sT)
    a("v_lshlrev_b32 v17, 10, v17")
    a("v_lshl_add_u32 v17, v19, 9, v17")
    a("buffer_store_short v29, v17, s[%d:%d], s26 offen" % (sVM, sVM + 3))
    a("s_branch %s_done" % name)
    a.label("%s_odd" % name)
    import numpy as np
    isq = int(np.float16(math.sqrt(0.5)).view(np.uint16))
    a("s_mov_b32 s29, 0x%x" % (isq | (isq << 16)))
    for n, k in enumerate((0, 2, 1, 3)):
        a("s_waitcnt lgkmcnt(%d)" % (6 - 2 * n))
        for c in range(4): pk(Z(k) + c, Z(k) + c, Z(k + 4) + c, 0, 1)
        if k in (1, 3):
            for h in range(2):
                dr, di = Z(k) + h, Z(k) + 2 + h
                pk(Z(k + 4) + h, dr, di)
                pk(Z(k + 4) + 2 + h, di, dr, 0, 1)
            for c in range(4):
                a("v_pk_mul_f16 v%d, v%d, s29" % (Z(k + 4) + c, Z(k + 4) + c))
    b = [((Z(0), 0), (Z(0) + 2, 0)), ((Z(5), 0), (Z(5) + 2, 0)), ((Z(2) + 2, 0), (Z(2), 1)), ((Z(7) + 2, 0), (Z(7), 1))]
    dft4_store(lambda m: 2 * m + 1, b)
    a.label("%s_done" % name)
    if stamp is not None:
        stamp_mid(a, 2); stamp_end(a, 40, stamp, sWave)
    a.label("%s_end" % name)
    a.end_kernel(name, 164, 0, 102)
    a.launch(name, 256, 512, LDS)
```

```python
from common import *
import math

def gen_k1(a, stamp=None, prefetch=1, codepf=True, selfpf=True, st_flags=" sc1", early_touch=True, wsf_flags='', wsload=False, tpos=3, prows=4):
    name = "k1_kernel"
    ZROW = 2304
    LX = 8 * ZROW
    LX0 = LX + 8 * 2048
    LDS = LX0 + 64
    sWave, sT = 24, 31
    sX, sV, sVM, sXM, sWs, sWF = 8, 12, 16, 20, 44, 48
    vRaw, vF, vWr, vWi, vWn, vTr, vTi, vXop, vD, vU = 4, 16, 32, 40, 48, 56, 72, 88, 96, 128
    vT = 144
    vJ = 160
    vB_ = 164
    a.begin_kernel(name)
    a("s_cmp_ge_u32 s2, 256")
    a("s_cbranch_scc1 %s_end" % name)
    if stamp is not None: stamp_begin(a)
    a("s_load_dwordx2 s[36:37], s[0:1], 0")
    a("s_load_dwordx4 s[52:55], s[0:1], 8")
    a("s_load_dwordx2 s[40:41], s[0:1], 88")
    a("s_load_dwordx4 s[56:59], s[0:1], 48")
    if selfpf: self_code_touch(a, name, "%s_end" % name, vJ + 1, vJ, 4, 3)
    a("v_lshrrev_b32 v1, 6, v0")
    a("v_and_b32 v0, 63, v0")
    a("v_readfirstlane_b32 s%d, v1" % sWave)
    a("v_lshlrev_b32 v1, 4, v0")
    a("s_lshl_b32 s25, s%d, 8" % sWave)
    a("s_add_u32 s25, s25, s2")
    a("s_lshl_b32 s26, s25, 11")
    a("s_and_b32 s27, s2, 7")
    a("s_lshl_b32 s27, s27, 8")
    a("s_and_b32 s28, s2, 0xf8")
    a("s_add_u32 s27, s27, s28")
    a("s_add_u32 s27, s27, s%d" % sWave)
    a("s_lshr_b32 s28, s27, 4")
    a("s_lshl_b32 s28, s28, 4")
    a("v_and_b32 v2, 15, v0")
    a("v_add_u32 v%d, s28, v2" % vT)
    a("v_lshrrev_b32 v%d, 8, v%d" % (vT + 1, vT))
    a("v_and_b32 v%d, 255, v%d" % (vT, vT))
    a("v_lshl_add_u32 v%d, v%d, 3, v%d" % (vT, vT, vT + 1))
    a("v_lshrrev_b32 v%d, 4, v0" % (vT + 1))
    if wsload:
        a("v_lshlrev_b32 v%d, 12, v%d" % (vT, vT))
        a("v_lshl_add_u32 v%d, v%d, 3, v%d" % (vT, vT + 1, vT))
        a("s_and_b32 s28, s27, 7")
        a("s_lshl_b32 s28, s28, 6")
    a("s_waitcnt lgkmcnt(0)")
    srd_off(a, sX, 36, 0, 2048 * 2048)
    a("buffer_load_dwordx4 v[%d:%d], v1, s[%d:%d], s26 offen" % (vRaw, vRaw + 3, sX, sX + 3))
    a("buffer_load_dwordx4 v[%d:%d], v1, s[%d:%d], s26 offen offset:1024" % (vRaw + 4, vRaw + 7, sX, sX + 3))
    if wsload:
        a("s_bitcmp1_b32 s27, 3")
        a("s_cselect_b32 s%d, s54, s52" % sWs)
        a("s_cselect_b32 s%d, s55, s53" % (sWs + 1))
        a("s_and_b32 s%d, s%d, 0xffff" % (sWs + 1, sWs + 1))
        a("s_mov_b32 s%d, %d" % (sWs + 2, 2048 * 4096))
        a("s_mov_b32 s%d, 0x00020000" % (sWs + 3))
        a("buffer_load_dwordx2 v[12:13], v%d, s[%d:%d], s28 offen" % (vT, sWs, sWs + 3))
        a("buffer_load_dwordx2 v[14:15], v%d, s[%d:%d], s28 offen offset:32" % (vT, sWs, sWs + 3))
    def touches():
        a("s_lshr_b32 s35, s2, 3")
        a("s_lshl_b32 s35, s35, 3")
        a("s_add_u32 s35, s35, s%d" % sWave)
        if prefetch:
            a("s_bitcmp1_b32 s35, 7")
            a("s_cselect_b32 s64, s58, s56")
            a("s_cselect_b32 s65, s59, s57")
            a("s_and_b32 s65, s65, 0xffff")
            a("s_mov_b32 s66, %d" % (1024 * 7168))
            a("s_mov_b32 s67, 0x00020000")
            a("s_and_b32 s60, s35, 127")
            a("s_mul_i32 s60, s60, %d" % (prows * 7168))
            a("s_and_b32 s61, s2, 7")
            a("s_mul_i32 s61, s61, 896")
            a("s_add_u32 s60, s60, s61")
            a("v_mul_u32_u24 v%d, 9363, v0" % (vJ + 2))
            a("v_lshrrev_b32 v%d, 16, v%d" % (vJ + 2, vJ + 2))
            a("v_mul_u32_u24 v%d, %d, v%d" % (vJ + 2, 7168 - 7 * 128, vJ + 2))
            a("v_lshl_add_u32 v%d, v0, 7, v%d" % (vJ + 2, vJ + 2))
            a("v_cmp_lt_u32 vcc, %d, v0" % (7 * prows - 1))
            a("v_mov_b32 v%d, 0x40000000" % (vJ + 3))
            a("s_nop 0")
            a("v_cndmask_b32 v%d, v%d, v%d, vcc" % (vJ + 2, vJ + 2, vJ + 3))
        if codepf:
            a("s_getpc_b64 s[62:63]")
            a.label("k1_pc2")
            a("s_add_u32 s62, s62, k2_kernel - k1_pc2")
            a("s_addc_u32 s63, s63, 0")
            a("s_min_u32 s61, s35, (code_end - k2_kernel) / 8192 - 1")
            a("s_lshl_b32 s61, s61, 13")
            a("v_lshlrev_b32 v%d, 7, v0" % (vJ + 3))
            a("v_add_u32 v%d, s61, v%d" % (vJ + 3, vJ + 3))
        n = 0
        if codepf:
            a("global_load_dword v%d, v%d, s[62:63]" % (vJ, vJ + 3)); n += 1
        if prefetch:
            a("buffer_load_dword v%d, v%d, s[64:67], s60 offen" % (vJ, vJ + 2)); n += 1
        return n
    nt_ = [0, 0]
    if tpos == 0: nt_[0] = touches()
    srd_off(a, sV, 40, WS_V, 4 * MB)
    srd_off(a, sVM, 40, WS_VM, 8192 + 65536)
    srd_off(a, sXM, 40, WS_XM, 8192)
    srd_off(a, sWF, 40, WS_WSF, 2 * MB)
    if not wsload:
        a("v_cvt_f32_u32 v%d, v%d" % (vT, vT))
        a("v_mul_f32 v%d, 0x%x, v%d" % (vT, f2u(1.0 / 2048), vT))
        a("s_and_b32 s28, s27, 7")
        a("s_lshl_b32 s28, s28, 5")
        a("v_lshl_add_u32 v%d, v%d, 2, s28" % (vT + 2, vT + 1))
        a("v_cvt_f32_u32 v%d, v%d" % (vT + 2, vT + 2))
        a("s_bitcmp1_b32 s27, 3")
        a("s_cselect_b32 s28, 0x%x, 0" % f2u(0.25))
        for h in range(2):
            for r in range(4):
                a("v_add_f32 v%d, 0x%x, v%d" % (vT + 3, f2u(16.0 * h + r), vT + 2))
                a("v_fma_f32 v%d, v%d, v%d, s28" % (vT + 3, vT + 3, vT))
                a("v_fract_f32 v%d, v%d" % (vT + 3, vT + 3))
                a("v_cos_f32 v%d, v%d" % (vT + 4 + r, vT + 3))
            a("s_nop 0")
            a("v_cvt_pk_f16_f32 v%d, v%d, v%d" % (12 + 2 * h, vT + 4, vT + 5))
            a("v_cvt_pk_f16_f32 v%d, v%d, v%d" % (13 + 2 * h, vT + 6, vT + 7))
        a("s_lshl_b32 s28, s27, 10")
        a("buffer_store_dwordx4 v[12:15], v1, s[%d:%d], s28 offen%s" % (sWF, sWF + 3, wsf_flags))
    if tpos == 1: nt_[1] = touches()
    a("v_cvt_f32_u32 v%d, v2" % (vT + 2))
    a("v_lshlrev_b32 v%d, 2, v%d" % (vT + 1, vT + 1))
    a("v_cvt_f32_u32 v%d, v%d" % (vT + 3, vT + 1))
    for blk in range(2):
        if tpos == 2 and blk == 1: nt_[1] = touches()
        a("v_add_f32 v%d, 0x%x, v%d" % (vT + 4, f2u(16.0 * blk), vT + 2))
        a("v_mul_f32 v%d, 0x%x, v%d" % (vT + 5, f2u(1.0 / 1024), vT + 4))
        a("v_mul_f32 v%d, 0x%x, v%d" % (vT + 4, f2u(1.0 / 32), vT + 4))
        for half in range(2):
            for rp in range(2):
                for q in range(2):
                    r = 2 * rp + q
                    a("v_add_f32 v%d, 0x%x, v%d" % (vT + 6, f2u(16.0 * half + r), vT + 3))
                    a("v_mul_f32 v%d, v%d, v%d" % (vT + 7, vT + 6, vT + 4))
                    a("v_mul_f32 v%d, v%d, v%d" % (vT + 6, vT + 6, vT + 5))
                    a("v_fract_f32 v%d, v%d" % (vT + 7, vT + 7))
                    a("v_cos_f32 v%d, v%d" % (vT + 8 + q, vT + 7))
                    a("v_sin_f32 v%d, v%d" % (vT + 10 + q, vT + 7))
                    a("v_cos_f32 v%d, v%d" % (vTr + (half * 2 + blk) * 4 + r, vT + 6))
                    a("v_sin_f32 v%d, v%d" % (vTi + (half * 2 + blk) * 4 + r, vT + 6))
                d = blk * 4 + half * 2 + rp
                a("v_cvt_pk_f16_f32 v%d, v%d, v%d" % (vWr + d, vT + 8, vT + 9))
                a("v_cvt_pk_f16_f32 v%d, v%d, v%d" % (vWn + d, vT + 10, vT + 11))
                a("v_xor_b32 v%d, 0x80008000, v%d" % (vWi + d, vWn + d))
    a("s_lshl_b32 s29, s%d, 11" % sWave)
    a("s_add_u32 s29, s29, %d" % LX)
    a("v_add_u32 v%d, s29, v1" % (vT + 12))
    a("v_lshrrev_b32 v%d, 2, v0" % (vT + 13))
    a("v_lshlrev_b32 v%d, 6, v%d" % (vT + 13, vT + 13))
    a("v_and_b32 v%d, 3, v0" % (vT + 14))
    a("v_lshl_add_u32 v%d, v%d, 3, v%d" % (vT + 13, vT + 14, vT + 13))
    a("v_add_u32 v%d, s29, v%d" % (vT + 13, vT + 13))
    a("v_mul_u32_u24 v%d, 144, v2" % (vT + 14))
    a("v_lshl_add_u32 v%d, v%d, 2, v%d" % (vT + 14, vT + 1, vT + 14))
    a("s_mul_i32 s30, s%d, %d" % (sWave, ZROW))
    a("v_add_u32 v%d, s30, v%d" % (vT + 14, vT + 14))
    a("s_and_b32 s30, s%d, 1" % sWave)
    a("s_lshl_b32 s%d, s30, 6" % sT)
    a("v_and_b32 v%d, 31, v0" % (vT + 8))
    a("v_lshrrev_b32 v%d, 5, v0" % (vT + 9))
    a("v_lshl_add_u32 v%d, v%d, 1, v%d" % (vT + 10, vT + 8, vT + 9))
    a("v_add_u32 v%d, s%d, v%d" % (vT + 10, sT, vT + 10))
    a("v_lshrrev_b32 v%d, 3, v%d" % (vT + 11, vT + 10))
    a("v_add_u32 v%d, v%d, v%d" % (vT + 10, vT + 10, vT + 11))
    a("v_lshlrev_b32 v%d, 4, v%d" % (vT + 15, vT + 10))
    a("v_lshrrev_b32 v%d, 3, v%d" % (vT + 10, vT + 8))
    a("v_lshlrev_b32 v%d, 16, v%d" % (vT + 10, vT + 10))
    a("v_and_b32 v%d, 7, v0" % (vT + 11))
    a("v_lshl_add_u32 v%d, v%d, 4, v%d" % (vT + 10, vT + 11, vT + 10))
    a("v_lshl_add_u32 v%d, v%d, 15, v%d" % (vT + 10, vT + 9, vT + 10))
    a("s_lshl_b32 s34, s30, 2")
    a("v_lshrrev_b32 v%d, 3, v%d" % (vB_, vT + 8))
    a("v_add_u32 v%d, s34, v%d" % (vB_, vB_))
    a("v_cmp_eq_u32 vcc, 0, v%d" % vB_)
    a("v_lshlrev_b32 v%d, 10, v%d" % (vB_, vB_))
    a("v_lshl_add_u32 v%d, v%d, 9, v%d" % (vB_, vT + 9, vB_))
    a("v_add_u32 v%d, %d, v%d" % (vB_, 8192 - 1024, vB_))
    a("v_mov_b32 v%d, 0x40000000" % (vT + 7))
    a("v_cndmask_b32 v%d, v%d, v%d, vcc" % (vB_, vB_, vT + 7))
    a("v_cmp_ne_u32 vcc, 0, v%d" % (vT + 11))
    a("s_lshl_b32 s30, s30, 18")
    a("v_add_u32 v3, s30, v%d" % (vT + 10))
    a("v_cndmask_b32 v%d, v%d, v%d, vcc" % (vB_, vB_, vT + 7))
    a("s_lshr_b32 s32, s2, 5")
    a("s_lshl_b32 s32, s32, 6")
    a("s_bfe_u32 s%d, s2, 0x20002" % sT)
    a("s_lshl_b32 s%d, s%d, 4" % (sT, sT))
    a("s_add_u32 s32, s32, s%d" % sT)
    a("s_bfe_u32 s%d, s2, 0x10004" % sT)
    a("s_lshl_b32 s%d, s%d, 3" % (sT, sT))
    a("s_add_u32 s32, s32, s%d" % sT)
    a("s_and_b32 s%d, s2, 3" % sT)
    a("s_lshl_b32 s%d, s%d, 1" % (sT, sT))
    a("s_add_u32 s32, s32, s%d" % sT)
    a("s_and_b32 s26, s2, 0xc0")
    a("s_and_b32 s%d, s2, 7" % sT)
    a("s_lshl_b32 s%d, s%d, 3" % (sT, sT))
    a("s_add_u32 s26, s26, s%d" % sT)
    a("s_bfe_u32 s%d, s2, 0x30003" % sT)
    a("s_add_u32 s26, s26, s%d" % sT)
    a("s_lshl_b32 s26, s26, 7")
    a("s_and_b32 s%d, s25, 7" % sT)
    a("s_lshl_b32 s%d, s%d, 8" % (sT, sT))
    a("s_lshr_b32 s33, s25, 3")
    a("s_add_u32 s33, s33, s%d" % sT)
    a("s_lshl_b32 s33, s33, 2")
    if stamp is not None: stamp_mid(a, 3)
    if tpos == 3: nt_[1] = touches()
    a("s_waitcnt vmcnt(%d)" % (1 + nt_[0] + nt_[1]))
    a("v_readfirstlane_b32 s30, v%d" % vRaw)
    for k in range(8):
        a("v_lshlrev_b32 v%d, 16, v%d" % (vF + 2 * k, vRaw + k))
        a("v_and_b32 v%d, 0xffff0000, v%d" % (vF + 2 * k + 1, vRaw + k))
    a("s_lshl_b32 s30, s30, 16")
    for k in range(16):
        a("v_subrev_f32 v%d, s30, v%d" % (vF + k, vF + k))
    s0 = vT
    a("v_add_f32 v%d, v%d, v%d" % (s0, vF, vF + 2))
    a("v_mul_f32 v%d, v%d, v%d" % (s0 + 2, vF, vF))
    a("v_add_f32 v%d, v%d, v%d" % (s0 + 1, vF + 1, vF + 3))
    a("v_mul_f32 v%d, v%d, v%d" % (s0 + 3, vF + 1, vF + 1))
    for k in range(2, 16, 2):
        if k >= 4:
            a("v_add_f32 v%d, v%d, v%d" % (s0, s0, vF + k))
            a("v_add_f32 v%d, v%d, v%d" % (s0 + 1, s0 + 1, vF + k + 1))
        a("v_fmac_f32 v%d, v%d, v%d" % (s0 + 2, vF + k, vF + k))
        a("v_fmac_f32 v%d, v%d, v%d" % (s0 + 3, vF + k + 1, vF + k + 1))
    a("v_sub_f32 v%d, v%d, v%d" % (s0 + 8, s0, s0 + 1))
    a("v_add_f32 v%d, v%d, v%d" % (s0, s0, s0 + 1))
    a("v_add_f32 v%d, v%d, v%d" % (s0 + 2, s0 + 2, s0 + 3))
    for sh in (8, 4, 2, 1):
        for r in (s0 + 8, s0, s0 + 2):
            a("v_add_f32_dpp v%d, v%d, v%d row_ror:%d row_mask:0xf bank_mask:0xf" % (r, r, r, sh))
    for op in ("v_permlane32_swap_b32", "v_permlane16_swap_b32"):
        for r in (s0 + 8, s0, s0 + 2): a("v_mov_b32 v%d, v%d" % (r + 1, r))
        for r in (s0 + 8, s0, s0 + 2): a("%s v%d, v%d" % (op, r, r + 1))
        for r in (s0 + 8, s0, s0 + 2): a("v_add_f32 v%d, v%d, v%d" % (r, r, r + 1))
    a("v_mul_f32 v%d, 0x%x, v%d" % (s0, f2u(1.0 / 1024), s0))
    a("v_mul_f32 v%d, 0x%x, v%d" % (s0 + 2, f2u(1.0 / 1024), s0 + 2))
    a("v_fma_f32 v%d, -v%d, v%d, v%d" % (s0 + 2, s0, s0, s0 + 2))
    a("v_max_f32 v%d, 0, v%d" % (s0 + 2, s0 + 2))
    a("v_add_f32 v%d, 0x%x, v%d" % (s0 + 2, f2u(1e-5), s0 + 2))
    a("v_rsq_f32 v%d, v%d" % (s0 + 3, s0 + 2))
    a("v_add_f32 v%d, s30, v%d" % (s0 + 4, s0))
    a("v_mul_f32 v%d, v%d, v%d" % (s0 + 1, s0, s0 + 3))
    a("v_mul_f32 v%d, v%d, v%d" % (s0 + 8, s0 + 8, s0 + 3))
    for k in range(16):
        a("v_fma_f32 v%d, v%d, v%d, -v%d" % (vF + k, vF + k, s0 + 3, s0 + 1))
    for k in range(8):
        a("v_cvt_pk_f16_f32 v%d, v%d, v%d" % (vRaw + k, vF + 2 * k, vF + 2 * k + 1))
    a("ds_write_b128 v%d, v[%d:%d]" % (vT + 12, vRaw, vRaw + 3))
    a("ds_write_b128 v%d, v[%d:%d] offset:1024" % (vT + 12, vRaw + 4, vRaw + 7))
    a("v_mov_b32 v%d, 0" % (s0 + 5))
    a("buffer_store_dword v%d, v%d, s[%d:%d], s33 offen" % (s0 + 4, s0 + 5, sXM, sXM + 3))
    a("v_readfirstlane_b32 s30, v%d" % vF)
    a("s_lshl_b32 s%d, s%d, 2" % (sT, sWave))
    a("s_add_u32 s%d, s%d, %d" % (sT, sT, LX0))
    a("s_waitcnt lgkmcnt(0)")
    for ib in range(2):
        for h in range(2):
            a("ds_read_b64_tr_b16 v[%d:%d], v%d offset:%d" % (vXop + ib * 4 + 2 * h, vXop + ib * 4 + 2 * h + 1, vT + 13, h * 1024 + ib * 32))
    a("v_mov_b32 v%d, s%d" % (s0 + 6, sT))
    a("v_mov_b32 v%d, s30" % (s0 + 7))
    a("ds_write_b32 v%d, v%d" % (s0 + 6, s0 + 7))
    a("ds_write_b32 v%d, v%d offset:32" % (s0 + 6, s0 + 8))
    if wsload:
        a("s_waitcnt vmcnt(%d)" % (1 + npf))
        for k in range(4):
            a("v_lshlrev_b32 v%d, 16, v%d" % (vF + 2 * k, 12 + k))
            a("v_and_b32 v%d, 0xffff0000, v%d" % (vF + 2 * k + 1, 12 + k))
        for k in range(4):
            a("v_cvt_pk_f16_f32 v%d, v%d, v%d" % (12 + k, vF + 2 * k, vF + 2 * k + 1))
        a("s_lshl_b32 s27, s27, 10")
        a("buffer_store_dwordx4 v[12:15], v1, s[%d:%d], s27 offen%s" % (sWF, sWF + 3, wsf_flags))
    if stamp is not None: stamp_mid(a, 0)
    a("s_waitcnt lgkmcnt(0)")
    D1 = lambda ib, jb, p: vD + ((ib * 2 + jb) * 2 + p) * 4
    for jb in range(2):
        for ib in range(2):
            for p in range(2):
                w = (vWr if p == 0 else vWi) + jb * 4
                a("v_mfma_f32_16x16x32_f16 v[%d:%d], v[%d:%d], v[%d:%d], 0" % (D1(ib, jb, p), D1(ib, jb, p) + 3, vXop + ib * 4, vXop + ib * 4 + 3, w, w + 3))
    a("s_nop 3")
    D2 = lambda jb, fb, p: 16 + ((fb) * 2 + p) * 4 if jb == 0 else vD + ((fb) * 2 + p) * 4 * 0 + (0)
    U_ = lambda jb, p: vU + (jb * 2 + p) * 4
    def D2(jb, fb, p):
        if jb == 0: return 16 + (fb * 2 + p) * 4
        return D1(fb, 0, p)
    for jb in range(2):
        for ib in range(2):
            for r in range(4):
                ur, ui = D1(ib, jb, 0) + r, D1(ib, jb, 1) + r
                c, s_ = vTr + (ib * 2 + jb) * 4 + r, vTi + (ib * 2 + jb) * 4 + r
                a("v_mul_f32 v%d, v%d, v%d" % (vT + r, ur, c))
                a("v_mul_f32 v%d, v%d, v%d" % (vT + 4 + r, ui, c))
                a("v_fmac_f32 v%d, v%d, v%d" % (vT + r, ui, s_))
                a("v_fma_f32 v%d, -v%d, v%d, v%d" % (vT + 4 + r, ur, s_, vT + 4 + r))
            for p in range(2):
                u = U_(jb, p) + ib * 2
                a("v_cvt_pk_f16_f32 v%d, v%d, v%d" % (u, vT + 4 * p, vT + 4 * p + 1))
                a("v_cvt_pk_f16_f32 v%d, v%d, v%d" % (u + 1, vT + 4 * p + 2, vT + 4 * p + 3))
        a("s_nop 1")
        for fb in range(1):
            d = D2(jb, fb, 0)
            a("v_mfma_f32_16x16x32_f16 v[%d:%d], v[%d:%d], v[%d:%d], 0" % (d, d + 3, U_(jb, 0), U_(jb, 0) + 3, vWr + fb * 4, vWr + fb * 4 + 3))
            a("v_mfma_f32_16x16x32_f16 v[%d:%d], v[%d:%d], v[%d:%d], v[%d:%d]" % (d, d + 3, U_(jb, 1), U_(jb, 1) + 3, vWn + fb * 4, vWn + fb * 4 + 3, d, d + 3))
            d = D2(jb, fb, 1)
            a("v_mfma_f32_16x16x32_f16 v[%d:%d], v[%d:%d], v[%d:%d], 0" % (d, d + 3, U_(jb, 0), U_(jb, 0) + 3, vWi + fb * 4, vWi + fb * 4 + 3))
            a("v_mfma_f32_16x16x32_f16 v[%d:%d], v[%d:%d], v[%d:%d], v[%d:%d]" % (d, d + 3, U_(jb, 1), U_(jb, 1) + 3, vWr + fb * 4, vWr + fb * 4 + 3, d, d + 3))
    for jb in range(2):
        if jb == 1: a("s_nop 5")
        for fb in range(1):
            o = vRaw + fb * 4 if jb == 0 else vXop + fb * 4
            for p in range(2):
                d = D2(jb, fb, p)
                a("v_cvt_pk_f16_f32 v%d, v%d, v%d" % (o + 2 * p, d, d + 1))
                a("v_cvt_pk_f16_f32 v%d, v%d, v%d" % (o + 2 * p + 1, d + 2, d + 3))
            a("ds_write_b128 v%d, v[%d:%d] offset:%d" % (vT + 14, o, o + 3, fb * 16 * 144 + jb * 64))
    a("s_waitcnt lgkmcnt(0)")
    a("s_barrier")
    if stamp is not None: stamp_mid(a, 1)
    a("s_cmp_gt_u32 s%d, 4" % sWave)
    a("s_cbranch_scc1 %s_done" % name)
    a("s_cmp_eq_u32 s%d, 4" % sWave)
    a("s_cbranch_scc1 %s_vec" % name)
    Z = lambda k: 16 + k * 4
    for k in (0, 4, 2, 6, 1, 5, 3, 7):
        a("ds_read_b128 v[%d:%d], v%d offset:%d" % (Z(k), Z(k) + 3, vT + 15, k * ZROW))
    def pk(d, x, y, nx=0, ny=0):
        m = " neg_lo:[%d,%d] neg_hi:[%d,%d]" % (nx, ny, nx, ny) if (nx or ny) else ""
        a("v_pk_add_f16 v%d, v%d, v%d%s" % (d, x, y, m))
    P = lambda k: 48 + k * 4
    X = lambda m: 64 + m * 4
    def dft4_store(t1_of_m, b):
        for h in range(2):
            for p in range(2):
                (r0, n0), (r2, n2) = b[0][p], b[2][p]
                (r1, n1), (r3, n3) = b[1][p], b[3][p]
                pk(P(0) + 2 * p + h, r0 + h, r2 + h, n0, n2)
                pk(P(1) + 2 * p + h, r0 + h, r2 + h, n0, 1 - n2)
                pk(P(2) + 2 * p + h, r1 + h, r3 + h, n1, n3)
                pk(P(3) + 2 * p + h, r1 + h, r3 + h, n1, 1 - n3)
        for m in range(4):
            for h in range(2):
                re, im = 0 + h, 2 + h
                if m == 0:
                    pk(X(0) + re, P(0) + re, P(2) + re); pk(X(0) + im, P(0) + im, P(2) + im, 1, 1)
                elif m == 2:
                    pk(X(2) + re, P(0) + re, P(2) + re, 0, 1); pk(X(2) + im, P(2) + im, P(0) + im, 0, 1)
                elif m == 1:
                    pk(X(1) + re, P(1) + re, P(3) + im); pk(X(1) + im, P(3) + re, P(1) + im, 0, 1)
                else:
                    pk(X(3) + re, P(1) + re, P(3) + im, 0, 1); pk(X(3) + im, P(1) + im, P(3) + re, 1, 1)
            a("s_add_u32 s30, s26, 0x%x" % (t1_of_m(m) * MB // 2))
            a("s_add_u32 s33, s32, 0x%x" % (t1_of_m(m) * 8192))
            a("v_permlane32_swap_b32 v%d, v%d" % (X(m), X(m) + 2))
            a("v_permlane32_swap_b32 v%d, v%d" % (X(m) + 1, X(m) + 3))
            a("buffer_store_dwordx4 v[%d:%d], v3, s[%d:%d], s30 offen%s" % (X(m), X(m) + 3, sV, sV + 3, st_flags))
            a("buffer_store_short v%d, v%d, s[%d:%d], s33 offen" % (X(m), vB_, sVM, sVM + 3))
    a("s_cmp_ge_u32 s%d, 2" % sWave)
    a("s_cbranch_scc1 %s_odd" % name)
    for n, k in enumerate((0, 2, 1, 3)):
        a("s_waitcnt lgkmcnt(%d)" % (6 - 2 * n))
        for c in range(4): pk(Z(k) + c, Z(k) + c, Z(k + 4) + c)
    dft4_store(lambda m: 2 * m, [((Z(k), 0), (Z(k) + 2, 0)) for k in range(4)])
    a("s_branch %s_done" % name)
    a.label("%s_vec" % name)
    a("v_bfe_u32 v30, v0, 4, 1")
    a("v_lshlrev_b32 v16, 5, v30")
    a("v_add_u32 v16, %d, v16" % LX0)
    a("ds_read_b128 v[20:23], v16")
    a("ds_read_b128 v[24:27], v16 offset:16")
    a("v_and_b32 v17, 7, v0")
    a("v_cvt_f32_u32 v18, v17")
    a("v_mul_f32 v18, 0x%x, v18" % f2u(0.125))
    a("v_bfe_u32 v19, v0, 3, 1")
    a("v_cvt_f32_u32 v28, v19")
    a("v_mul_f32 v28, 0x%x, v28" % f2u(-0.25))
    a("v_mov_b32 v29, 0")
    for k in range(8):
        a("v_mov_b32 v31, 0x%x" % f2u(float(k)))
        a("v_fma_f32 v%d, v18, v31, v28" % (32 + k))
        a("v_fract_f32 v%d, v%d" % (32 + k, 32 + k))
        a("v_cos_f32 v%d, v%d" % (32 + k, 32 + k))
    a("s_waitcnt lgkmcnt(0)")
    for k in range(8):
        a("v_fmac_f32 v29, v%d, v%d" % (32 + k, 20 + k))
    a("v_cvt_pk_f16_f32 v29, v29, v29")
    a("v_lshlrev_b32 v16, 10, v17")
    a("v_lshlrev_b32 v17, 13, v17")
    a("v_add_u32 v17, %d, v17" % (8192 + 7 * 1024))
    a("v_cmp_eq_u32 vcc, 0, v30")
    a("s_nop 1")
    a("v_cndmask_b32 v17, v17, v16, vcc")
    a("v_lshl_add_u32 v17, v19, 9, v17")
    a("buffer_store_short v29, v17, s[%d:%d], s32 offen" % (sVM, sVM + 3))
    a("s_branch %s_done" % name)
    a.label("%s_odd" % name)
    import numpy as np
    isq = int(np.float16(math.sqrt(0.5)).view(np.uint16))
    a("s_mov_b32 s29, 0x%x" % (isq | (isq << 16)))
    for n, k in enumerate((0, 2, 1, 3)):
        a("s_waitcnt lgkmcnt(%d)" % (6 - 2 * n))
        for c in range(4): pk(Z(k) + c, Z(k) + c, Z(k + 4) + c, 0, 1)
        if k in (1, 3):
            for h in range(2):
                dr, di = Z(k) + h, Z(k) + 2 + h
                pk(Z(k + 4) + h, dr, di)
                pk(Z(k + 4) + 2 + h, di, dr, 0, 1)
            for c in range(4):
                a("v_pk_mul_f16 v%d, v%d, s29" % (Z(k + 4) + c, Z(k + 4) + c))
    b = [((Z(0), 0), (Z(0) + 2, 0)), ((Z(5), 0), (Z(5) + 2, 0)), ((Z(2) + 2, 0), (Z(2), 1)), ((Z(7) + 2, 0), (Z(7), 1))]
    dft4_store(lambda m: 2 * m + 1, b)
    a.label("%s_done" % name)
    if stamp is not None:
        stamp_mid(a, 2); stamp_end(a, 40, stamp, sWave)
    a.label("%s_end" % name)
    a.end_kernel(name, 168, 0, 102)
    a.launch(name, 256, 512, LDS)
```

```python
import re, sys
import gen
s = gen.build(**(eval(sys.argv[1]) if len(sys.argv) > 1 else {}))
res = []
cur = None
idx = {"k1": 0, "k2": 1, "g3": 2, "g4": 3}
for l in s.split("\n"):
    m = re.match(r"^(k1|k2|g3|g4)_kernel:$", l)
    if m:
        cur = m.group(1); res.append(l)
        res.append("    s_memrealtime s[96:97]")
        continue
    m = re.match(r"^(k1|k2|g3|g4)_kernel_end:$", l)
    if m:
        res += ["    s_cmp_gt_u32 s2, 1", "    s_cbranch_scc1 %s_kernel_end" % cur,
                "    s_cmp_lg_u32 s24, 0", "    s_cbranch_scc1 %s_kernel_end" % cur,
                "    s_waitcnt vmcnt(0) lgkmcnt(0)",
                "    s_memrealtime s[98:99]", "    s_load_dwordx4 s[92:95], s[0:1], 80", "    s_waitcnt lgkmcnt(0)",
                "    s_add_u32 s12, s94, 0x%x" % (200 << 20), "    s_addc_u32 s13, s95, 0", "    s_and_b32 s13, s13, 0xffff", "    s_mov_b32 s14, 4096", "    s_mov_b32 s15, 0x20000",
                "    v_mov_b32 v2, s96", "    v_mov_b32 v3, s98", "    v_mov_b32 v1, 0", "    s_lshl_b32 s16, s2, 5"]
        if cur != "g4":
            res += ["    buffer_store_dwordx2 v[2:3], v1, s[12:15], s16 offen offset:%d" % (8 * idx[cur])]
        else:
            res += ["    s_mov_b32 s8, s92", "    s_and_b32 s9, s93, 0xffff", "    s_mov_b32 s10, 256", "    s_mov_b32 s11, 0x20000",
                    "    buffer_load_dwordx4 v[4:7], v1, s[12:15], s16 offen", "    buffer_load_dwordx2 v[8:9], v1, s[12:15], s16 offen offset:16",
                    "    s_waitcnt vmcnt(0)",
                    "    buffer_store_dwordx4 v[4:7], v1, s[8:11], s16 offen", "    buffer_store_dwordx2 v[8:9], v1, s[8:11], s16 offen offset:16",
                    "    buffer_store_dwordx2 v[2:3], v1, s[8:11], s16 offen offset:24"]
        res.append(l); continue
    res.append(l)
open("v0.s", "w").write("\n".join(res))
```

```python
from asmlib import *
from sched import *
import struct

MB = 1 << 20
import os as _os
if _os.environ.get("OLDWS"):
    WS_V, WS_VM, WS_XM, WS_WSF, WS_HC, WS_MT, WS_SS, WS_ACT, WS_XB = 0, 8 * MB, 9 * MB, 10 * MB, 16 * MB, 20 * MB, 21 * MB, 32 * MB, 64 * MB
else:
    WS_V = 0
    WS_WSF = 4 * MB
    WS_VM = 6 * MB
    WS_XM = 6 * MB + 128 * 1024
    WS_MT = 6 * MB + 136 * 1024
    WS_SS = 6 * MB + 256 * 1024
    WS_HC = 6 * MB + 512 * 1024
    WS_XB = 10 * MB + 512 * 1024
    WS_ACT = 14 * MB + 512 * 1024
WS_STAMP = 200 * MB
LOG2E = 1.4426950408889634

def f2u(x):
    return struct.unpack("<I", struct.pack("<f", x))[0]

def srd_off(a, d, base, off, nbytes):
    if off:
        a("s_add_u32 s%d, s%d, 0x%x" % (d, base, off))
        a("s_addc_u32 s%d, s%d, 0" % (d + 1, base + 1))
        a("s_and_b32 s%d, s%d, 0xffff" % (d + 1, d + 1))
    else:
        a("s_mov_b32 s%d, s%d" % (d, base))
        a("s_and_b32 s%d, s%d, 0xffff" % (d + 1, base + 1))
    a("s_mov_b32 s%d, 0x%x" % (d + 2, nbytes))
    a("s_mov_b32 s%d, 0x00020000" % (d + 3))

SB = 72
NMID = 11
def stamp_begin(a, sb=SB):
    a("s_memtime s[%d:%d]" % (sb, sb + 1))
    a("s_memrealtime s[%d:%d]" % (sb + 2, sb + 3))
    for k in range(NMID): a("s_mov_b64 s[%d:%d], 0" % (sb + 8 + 2 * k, sb + 9 + 2 * k))
def stamp_mid(a, k=0, sb=SB):
    a("s_memtime s[%d:%d]" % (sb + 8 + 2 * k, sb + 9 + 2 * k))
def stamp_end(a, sws, slot, swave, sb=SB):
    a("s_waitcnt vmcnt(0) lgkmcnt(0)")
    a("s_memtime s[%d:%d]" % (sb + 4, sb + 5))
    a("s_memrealtime s[%d:%d]" % (sb + 6, sb + 7))
    a("s_waitcnt lgkmcnt(0)")
    srd_off(a, 8, sws, WS_STAMP + slot * MB, MB)
    a("s_lshl_b32 s12, s2, 4")
    a("s_add_u32 s12, s12, s%d" % swave)
    a("s_lshl_b32 s12, s12, 7")
    a("s_mov_b64 exec, -1")
    for k in range(30):
        a("v_mov_b32 v%d, s%d" % (2 + k, sb + k))
    a("v_mov_b32 v1, 0")
    a("v_cmp_eq_u32 vcc, 0, v0")
    a("s_and_saveexec_b64 s[14:15], vcc")
    for k in range(0, 30, 2):
        a("buffer_store_dwordx2 v[%d:%d], v1, s[8:11], s12 offen offset:%d" % (2 + k, 3 + k, 4 * k))

import os
DETAIL = bool(os.environ.get('DETAIL'))
def read_stamps(c, nw, slot=0, nwg=256):
    import numpy as np
    st = c.read(c.ws, np.uint32, nwg * 16 * 32, WS_STAMP + slot * MB).reshape(nwg, 16, 32)[:, :nw, :].astype(np.uint64)
    q = lambda k: (st[..., k] + (st[..., k + 1] << np.uint64(32))).astype(np.int64)
    t0, r0, t1, r1 = q(0), q(2), q(4), q(6)
    mids = [int(np.median(q(8 + 2 * k) - t0)) if q(8 + 2 * k).max() > 0 else 0 for k in range(NMID)]
    txt = "span %.2f us (spread %.2f); cyc total %d mids %s; rt %.2f us clk %.2f" % (
        (r1.max() - r0.min()) / 100.0, (r0.max() - r0.min()) / 100.0, np.median(t1 - t0), mids, np.median(r1 - r0) / 100.0,
        np.median(t1 - t0) / (np.median(r1 - r0) * 10.0))
    if DETAIL:
        for x in range(8):
            txt += "\n          xcd%d: cyc med %d max %d  rt med %.2f max %.2f end(max) %.2f" % (x, np.median((t1 - t0)[x::8]), (t1 - t0)[x::8].max(), np.median((r1 - r0)[x::8]) / 100., (r1 - r0)[x::8].max() / 100., (r1[x::8].max() - r0.min()) / 100.)
    return txt, int(r0.min()), int(r1.max())

def reduce_g4(s, b, t):
    s("v_mov_b32 v%d, v%d" % (t, b))
    s("s_nop 1")
    s("v_permlane32_swap_b32 v%d, v%d" % (b, t))
    s("v_add_f32 v%d, v%d, v%d" % (b, b, t))
    s("v_mov_b32 v%d, v%d" % (t, b))
    s("s_nop 1")
    s("v_permlane16_swap_b32 v%d, v%d" % (b, t))
    s("v_add_f32 v%d, v%d, v%d" % (b, b, t))

def self_code_touch(a, name, endlabel, vaddr, vdst, s0, nwaves_log2):
    a("s_getpc_b64 s[%d:%d]" % (s0, s0 + 1))
    a.label("%s_pc" % name)
    a("v_lshrrev_b32 v%d, 6, v0" % vdst)
    a("s_lshr_b32 s%d, s2, 3" % (s0 + 2))
    a("s_lshl_b32 s%d, s%d, %d" % (s0 + 2, s0 + 2, nwaves_log2))
    a("v_add_u32 v%d, s%d, v%d" % (vdst, s0 + 2, vdst))
    a("v_and_b32 v%d, 15, v%d" % (vdst, vdst))
    a("v_lshlrev_b32 v%d, 12, v%d" % (vdst, vdst))
    a("v_and_b32 v%d, 63, v0" % vaddr)
    a("v_lshl_add_u32 v%d, v%d, 6, v%d" % (vaddr, vaddr, vdst))
    a("v_min_u32 v%d, ((%s - %s_pc) / 4) * 4 - 4, v%d" % (vaddr, endlabel, name, vaddr))
    a("global_load_dword v%d, v%d, s[%d:%d]" % (vdst, vaddr, s0, s0 + 1))
```

```python
from asmlib import *
from sched import *
import struct

MB = 1 << 20
import os as _os
_L = _os.environ.get("WSL", "old")
_B = int(_os.environ.get("WSB", "0")) * MB
if _L == "old":
    WS_V, WS_VM, WS_XM, WS_WSF, WS_HC, WS_MT, WS_SS, WS_ACT, WS_XB = 0, 8 * MB, 9 * MB, 10 * MB, 16 * MB, 20 * MB, 21 * MB, 32 * MB, 64 * MB
else:
    WS_V = _B
    WS_WSF = _B + 4 * MB
    WS_VM = _B + 6 * MB
    WS_XM = _B + 6 * MB + 128 * 1024
    WS_MT = _B + 6 * MB + 136 * 1024
    WS_SS = _B + 6 * MB + 256 * 1024
    WS_HC = _B + 8 * MB
    WS_XB = _B + 12 * MB
    WS_ACT = _B + 16 * MB
WS_STAMP = 200 * MB
LOG2E = 1.4426950408889634

def f2u(x):
    return struct.unpack("<I", struct.pack("<f", x))[0]

def srd_off(a, d, base, off, nbytes):
    if off:
        a("s_add_u32 s%d, s%d, 0x%x" % (d, base, off))
        a("s_addc_u32 s%d, s%d, 0" % (d + 1, base + 1))
        a("s_and_b32 s%d, s%d, 0xffff" % (d + 1, d + 1))
    else:
        a("s_mov_b32 s%d, s%d" % (d, base))
        a("s_and_b32 s%d, s%d, 0xffff" % (d + 1, base + 1))
    a("s_mov_b32 s%d, 0x%x" % (d + 2, nbytes))
    a("s_mov_b32 s%d, 0x00020000" % (d + 3))

SB = 72
NMID = 11
def stamp_begin(a, sb=SB):
    a("s_memtime s[%d:%d]" % (sb, sb + 1))
    a("s_memrealtime s[%d:%d]" % (sb + 2, sb + 3))
    for k in range(NMID): a("s_mov_b64 s[%d:%d], 0" % (sb + 8 + 2 * k, sb + 9 + 2 * k))
def stamp_mid(a, k=0, sb=SB):
    a("s_memtime s[%d:%d]" % (sb + 8 + 2 * k, sb + 9 + 2 * k))
def stamp_end(a, sws, slot, swave, sb=SB):
    a("s_waitcnt vmcnt(0) lgkmcnt(0)")
    a("s_memtime s[%d:%d]" % (sb + 4, sb + 5))
    a("s_memrealtime s[%d:%d]" % (sb + 6, sb + 7))
    a("s_waitcnt lgkmcnt(0)")
    srd_off(a, 8, sws, WS_STAMP + slot * MB, MB)
    a("s_lshl_b32 s12, s2, 4")
    a("s_add_u32 s12, s12, s%d" % swave)
    a("s_lshl_b32 s12, s12, 7")
    a("s_mov_b64 exec, -1")
    for k in range(30):
        a("v_mov_b32 v%d, s%d" % (2 + k, sb + k))
    a("v_mov_b32 v1, 0")
    a("v_cmp_eq_u32 vcc, 0, v0")
    a("s_and_saveexec_b64 s[14:15], vcc")
    for k in range(0, 30, 2):
        a("buffer_store_dwordx2 v[%d:%d], v1, s[8:11], s12 offen offset:%d" % (2 + k, 3 + k, 4 * k))

import os
DETAIL = bool(os.environ.get('DETAIL'))
def read_stamps(c, nw, slot=0, nwg=256):
    import numpy as np
    st = c.read(c.ws, np.uint32, nwg * 16 * 32, WS_STAMP + slot * MB).reshape(nwg, 16, 32)[:, :nw, :].astype(np.uint64)
    q = lambda k: (st[..., k] + (st[..., k + 1] << np.uint64(32))).astype(np.int64)
    t0, r0, t1, r1 = q(0), q(2), q(4), q(6)
    mids = [int(np.median(q(8 + 2 * k) - t0)) if q(8 + 2 * k).max() > 0 else 0 for k in range(NMID)]
    txt = "span %.2f us (spread %.2f); cyc total %d mids %s; rt %.2f us clk %.2f" % (
        (r1.max() - r0.min()) / 100.0, (r0.max() - r0.min()) / 100.0, np.median(t1 - t0), mids, np.median(r1 - r0) / 100.0,
        np.median(t1 - t0) / (np.median(r1 - r0) * 10.0))
    if DETAIL:
        for x in range(8):
            txt += "\n          xcd%d: cyc med %d max %d  rt med %.2f max %.2f end(max) %.2f" % (x, np.median((t1 - t0)[x::8]), (t1 - t0)[x::8].max(), np.median((r1 - r0)[x::8]) / 100., (r1 - r0)[x::8].max() / 100., (r1[x::8].max() - r0.min()) / 100.)
    return txt, int(r0.min()), int(r1.max())

def reduce_g4(s, b, t):
    s("v_mov_b32 v%d, v%d" % (t, b))
    s("s_nop 1")
    s("v_permlane32_swap_b32 v%d, v%d" % (b, t))
    s("v_add_f32 v%d, v%d, v%d" % (b, b, t))
    s("v_mov_b32 v%d, v%d" % (t, b))
    s("s_nop 1")
    s("v_permlane16_swap_b32 v%d, v%d" % (b, t))
    s("v_add_f32 v%d, v%d, v%d" % (b, b, t))

def self_code_touch(a, name, endlabel, vaddr, vdst, s0, nwaves_log2):
    a("s_getpc_b64 s[%d:%d]" % (s0, s0 + 1))
    a.label("%s_pc" % name)
    a("v_lshrrev_b32 v%d, 6, v0" % vdst)
    a("s_lshr_b32 s%d, s2, 3" % (s0 + 2))
    a("s_lshl_b32 s%d, s%d, %d" % (s0 + 2, s0 + 2, nwaves_log2))
    a("v_add_u32 v%d, s%d, v%d" % (vdst, s0 + 2, vdst))
    a("v_and_b32 v%d, 15, v%d" % (vdst, vdst))
    a("v_lshlrev_b32 v%d, 12, v%d" % (vdst, vdst))
    a("v_and_b32 v%d, 63, v0" % vaddr)
    a("v_lshl_add_u32 v%d, v%d, 6, v%d" % (vaddr, vaddr, vdst))
    a("v_min_u32 v%d, ((%s - %s_pc) / 4) * 4 - 4, v%d" % (vaddr, endlabel, name, vaddr))
    a("global_load_dword v%d, v%d, s[%d:%d]" % (vdst, vaddr, s0, s0 + 1))
```

```python
from asmlib import *
from sched import *
import struct

MB = 1 << 20
import os as _os
_L = _os.environ.get("WSL", "new")
_B = int(_os.environ.get("WSB", "0")) * MB
if _L == "old":
    WS_V, WS_VM, WS_XM, WS_WSF, WS_HC, WS_MT, WS_SS, WS_ACT, WS_XB = 0, 8 * MB, 9 * MB, 10 * MB, 16 * MB, 20 * MB, 21 * MB, 32 * MB, 64 * MB
else:
    WS_V = _B
    WS_WSF = _B + 4 * MB
    WS_VM = _B + 6 * MB
    WS_XM = _B + 6 * MB + 128 * 1024
    WS_MT = _B + 6 * MB + 136 * 1024
    WS_SS = _B + 6 * MB + 256 * 1024
    WS_FL = _B + 6 * MB + 160 * 1024
    WS_HC = _B + 8 * MB
    WS_XB = _B + 12 * MB
    WS_ACT = _B + 16 * MB
WS_STAMP = 200 * MB
LOG2E = 1.4426950408889634

def f2u(x):
    return struct.unpack("<I", struct.pack("<f", x))[0]

def srd_off(a, d, base, off, nbytes):
    if off:
        a("s_add_u32 s%d, s%d, 0x%x" % (d, base, off))
        a("s_addc_u32 s%d, s%d, 0" % (d + 1, base + 1))
        a("s_and_b32 s%d, s%d, 0xffff" % (d + 1, d + 1))
    else:
        a("s_mov_b32 s%d, s%d" % (d, base))
        a("s_and_b32 s%d, s%d, 0xffff" % (d + 1, base + 1))
    a("s_mov_b32 s%d, 0x%x" % (d + 2, nbytes))
    a("s_mov_b32 s%d, 0x00020000" % (d + 3))

SB = 72
NMID = 11
def stamp_begin(a, sb=SB):
    a("s_memtime s[%d:%d]" % (sb, sb + 1))
    a("s_memrealtime s[%d:%d]" % (sb + 2, sb + 3))
    for k in range(NMID): a("s_mov_b64 s[%d:%d], 0" % (sb + 8 + 2 * k, sb + 9 + 2 * k))
def stamp_mid(a, k=0, sb=SB):
    a("s_memtime s[%d:%d]" % (sb + 8 + 2 * k, sb + 9 + 2 * k))
def stamp_end(a, sws, slot, swave, sb=SB):
    a("s_waitcnt vmcnt(0) lgkmcnt(0)")
    a("s_memtime s[%d:%d]" % (sb + 4, sb + 5))
    a("s_memrealtime s[%d:%d]" % (sb + 6, sb + 7))
    a("s_waitcnt lgkmcnt(0)")
    srd_off(a, 8, sws, WS_STAMP + slot * MB, MB)
    a("s_lshl_b32 s12, s2, 4")
    a("s_add_u32 s12, s12, s%d" % swave)
    a("s_lshl_b32 s12, s12, 7")
    a("s_mov_b64 exec, -1")
    for k in range(30):
        a("v_mov_b32 v%d, s%d" % (2 + k, sb + k))
    a("v_mov_b32 v1, 0")
    a("v_cmp_eq_u32 vcc, 0, v0")
    a("s_and_saveexec_b64 s[14:15], vcc")
    for k in range(0, 30, 2):
        a("buffer_store_dwordx2 v[%d:%d], v1, s[8:11], s12 offen offset:%d" % (2 + k, 3 + k, 4 * k))

import os
DETAIL = bool(os.environ.get('DETAIL'))
def read_stamps(c, nw, slot=0, nwg=256):
    import numpy as np
    st = c.read(c.ws, np.uint32, nwg * 16 * 32, WS_STAMP + slot * MB).reshape(nwg, 16, 32)[:, :nw, :].astype(np.uint64)
    q = lambda k: (st[..., k] + (st[..., k + 1] << np.uint64(32))).astype(np.int64)
    t0, r0, t1, r1 = q(0), q(2), q(4), q(6)
    mids = [int(np.median(q(8 + 2 * k) - t0)) if q(8 + 2 * k).max() > 0 else 0 for k in range(NMID)]
    txt = "span %.2f us (spread %.2f); cyc total %d mids %s; rt %.2f us clk %.2f" % (
        (r1.max() - r0.min()) / 100.0, (r0.max() - r0.min()) / 100.0, np.median(t1 - t0), mids, np.median(r1 - r0) / 100.0,
        np.median(t1 - t0) / (np.median(r1 - r0) * 10.0))
    if DETAIL:
        for x in range(8):
            clk = np.median((t1 - t0)[x::8]) / (np.median((r1 - r0)[x::8]) * 10.0)
            mm = [int(np.median((q(8 + 2 * k) - t0)[x::8])) if q(8 + 2 * k).max() > 0 else 0 for k in range(NMID)]
            txt += "\n          xcd%d: clk %.2f cyc %d rt %.2f end %.2f mids %s" % (x, clk, np.median((t1 - t0)[x::8]), np.median((r1 - r0)[x::8]) / 100., (r1[x::8].max() - r0.min()) / 100., mm)
    return txt, int(r0.min()), int(r1.max())

def reduce_g4(s, b, t):
    s("v_mov_b32 v%d, v%d" % (t, b))
    s("s_nop 1")
    s("v_permlane32_swap_b32 v%d, v%d" % (b, t))
    s("v_add_f32 v%d, v%d, v%d" % (b, b, t))
    s("v_mov_b32 v%d, v%d" % (t, b))
    s("s_nop 1")
    s("v_permlane16_swap_b32 v%d, v%d" % (b, t))
    s("v_add_f32 v%d, v%d, v%d" % (b, b, t))

def self_code_touch(a, name, endlabel, vaddr, vdst, s0, nwaves_log2, swave=None, tag="pc"):
    a("s_getpc_b64 s[%d:%d]" % (s0, s0 + 1))
    a.label("%s_%s" % (name, tag))
    a("s_lshr_b32 s%d, s2, 3" % (s0 + 2))
    a("s_lshl_b32 s%d, s%d, %d" % (s0 + 2, s0 + 2, nwaves_log2))
    if swave is None:
        a("v_lshrrev_b32 v%d, 6, v0" % vaddr)
        a("v_add_u32 v%d, s%d, v%d" % (vaddr, s0 + 2, vaddr))
    else:
        a("s_add_u32 s%d, s%d, s%d" % (s0 + 2, s0 + 2, swave))
        a("v_mov_b32 v%d, s%d" % (vaddr, s0 + 2))
    a("v_and_b32 v%d, 15, v%d" % (vaddr, vaddr))
    a("v_lshlrev_b32 v%d, 6, v%d" % (vaddr, vaddr))
    a("v_and_or_b32 v%d, v0, 63, v%d" % (vaddr, vaddr))
    a("v_lshlrev_b32 v%d, 7, v%d" % (vaddr, vaddr))
    a("v_min_u32 v%d, ((%s - %s_%s) / 4) * 4 - 4, v%d" % (vaddr, endlabel, name, tag, vaddr))
    a("global_load_dword v%d, v%d, s[%d:%d]" % (vdst, vaddr, s0, s0 + 1))
```

```python
from common import *

class Gemm2:
    def __init__(s, name, NRB, NF, SUB, NST, STB, R, AR, PD, ndma, VACC, stamp=None, skip=(), npro=0, rate=1, st_flags="", LA=None, selfpf=True):
        s.name, s.NRB, s.NF, s.SUB, s.NST, s.STB, s.R, s.AR, s.PD, s.ndma, s.VACC = name, NRB, NF, SUB, NST, STB, R, AR, PD, ndma, VACC
        s.stamp, s.skip, s.npro, s.rate, s.st_flags = stamp, skip, npro, rate, st_flags
        s.LA = LA
        s.selfpf = selfpf
        s.vJunk = 31
        s.dt = 'bf16'
        s.vCode, s.sCode, s.retouch = 28, 4, ()
        s.xbar_after = ()
        s.m_start, s.m_end, s.m_prof = 0, 1, 4
        s.fused = False
        s.handover, s.inherited, s.prev_streams = False, [], []
        s.late_x = []
        s.gate, s.gate_na, s.after_k2 = None, 8, False
        s.issue_step = {}
        s.alt_path = False
        s.a_flags = ''
        s.NB = PD + 1
        s.NACC = NF * NRB * 4
        s.vA = [2 + i for i in range(NRB)]
        s.vD = [6 + i for i in range(ndma)]
        s.spb = 65536 // STB
        s.nbase = -(-R // s.spb)
        s.vB = [13 + k for k in range(s.nbase)]
        assert s.nbase <= 3
        s.aBbase = AR * SUB * NRB * 4
        s.aX = s.aBbase + s.NB * 4
        s.sA, s.sW, s.sO, s.sS = 8, 12, 16, 20
        s.sWave, s.sDoff, s.sAoff, s.sLdsW, s.sT = 24, 25, 26, 28, 31
        s.vpm = 2
    def acc(s, j, i): return s.VACC + (j * s.NRB + i) * 4
    def aA(s, q, i): return ((q % (s.AR * s.SUB)) * s.NRB + i) * 4
    def unit_order(s): return [(st, sub, j) for st in range(s.NST) for sub in range(s.SUB) for j in range(s.NF)]
    def extra_unit(s, p, q): pass
    def post_sync0(s, p): pass
    def is_late(s, st, n): return False
    def a_pre(s, q): return []
    def late_steps(s, units): return {}
    def valu_ready(s, units): return {}
    def extra_vm(s): return []
    def dma_ops(s, st):
        ops = []
        for n in range(s.ndma):
            pre, t = s.dma_text(st, n)
            ops.append([pre, t, ("D", st, n), []])
        if st + 1 < s.NST and s.dma_step(st) is not None:
            ops[-1][3] = ["s_add_u32 s%d, s%d, %d" % (s.sDoff, s.sDoff, s.dma_step(st))]
        return ops
    def a_ops(s, q):
        ops = []
        for i in range(s.NRB):
            r = s.aA(q, i)
            t = "buffer_load_dwordx4 a[%d:%d], v%d, s[%d:%d], s%d offen offset:%d%s" % (r, r + 3, s.vA[i], s.sA, s.sA + 3, s.sAoff, (q % 4) * 1024, s.a_flags)
            ops.append([s.a_pre(q) if i == 0 else [], t, ("A", q, i), []])
        if q % 4 == 3:
            ops[-1][3] = ["s_add_u32 s%d, s%d, 4096" % (s.sAoff, s.sAoff)]
        return ops
    def put(s, p, op):
        pre, t, tag, post = op
        for x in pre:
            if isinstance(x, tuple):
                if x[0] == "wv": p.wv(x[1], x[2])
                elif x[0] == "label": p.label(x[1])
            else: p.i(x)
        if pre: p.i("s_nop 0")
        p.vm(t, tag)
        for x in post: p.i(x)
    def base_setup(s, a):
        for k in range(1, s.nbase):
            a("v_add_u32 v%d, %d, v%d" % (s.vB[k], k * s.spb * s.STB, s.vB[0]))
    def emit_main(s, a, early, late):
        units = s.unit_order()
        N = len(units)
        PD = s.PD
        first_st, last_st, first_q, last_q = {}, {}, {}, {}
        for n, (st, sub, j) in enumerate(units):
            q = st * s.SUB + sub
            first_st.setdefault(st, n); last_st[st] = n
            first_q.setdefault(q, n); last_q[q] = n
        sync_step = {st: first_st[st] - PD for st in range(s.NST)}
        sync_at = {}
        for st, n in sync_step.items(): sync_at.setdefault(n, []).append(st)
        xbar = [last_st[st] + 1 for st in s.xbar_after]
        bsteps = sorted(list(sync_step.values()) + xbar)
        qd, qa, qd2 = [], [], []
        late_steps = {st: n - PD for st, n in s.late_steps(units).items()}
        late_at = {}
        for st, n in late_steps.items(): late_at.setdefault(n, []).append(st)
        for st in range(s.NST):
            if st < s.R: e = -10**9
            else:
                L = last_st[st - s.R]
                c = [b for b in bsteps if b > L]
                e = c[0]
                assert e < sync_step[st], ("dma cannot be issued before its sync", st)
            if s.LA is not None: e = max(e, sync_step[st] - s.LA)
            for op in s.dma_ops(st):
                late_ = s.is_late(st, op[2][2])
                (qd2 if late_ else qd).append((e, late_steps[st] if late_ else sync_step[st], op))
        qd += qd2
        nq = s.NST * s.SUB
        for q in range(nq):
            e = -10**9 if q < s.AR * s.SUB else last_q[q - s.AR * s.SUB] + 1
            assert e <= first_q[q], ("A ring too small", q)
            if s.LA is not None: e = max(e, first_q[q] - s.LA)
            for op in s.a_ops(q): qa.append((e, first_q[q], op))
        qx = list(s.extra_vm())
        if s.selfpf:
            for k, n in enumerate(s.retouch):
                qx.append((n, n, [[], "global_load_dword v%d, v%d, s[%d:%d]" % (s.vJunk, s.vCode, s.sCode, s.sCode + 1), ("C", k), []]))
        qx += s.late_x
        qx = sorted(qx, key=lambda x: x[0])
        def next_vm(step):
            c = []
            for qq in (qd, qa, qx):
                if qq and qq[0][0] <= step: c.append((qq[0][1], id(qq), qq))
            if not c: return None
            c.sort(key=lambda x: x[0])
            return c[0][2].pop(0)[2]
        p = Stream(type(s).__name__)
        p.i("s_mov_b32 s%d, 0" % s.sAoff)
        early(p)
        if s.gate:
            for _ in range(2 * s.ndma): s.put(p, qd.pop(0)[2])
            late(p)
            s.gate(p)
            for _ in range(s.gate_na): s.put(p, qa.pop(0)[2])
            late = lambda p: None
        else:
          while (qd and qd[0][1] < 0) or (qa and qa[0][1] <= 0):
            s.put(p, next_vm(-1))
          for _ in range(s.npro):
            op = next_vm(-1)
            if op: s.put(p, op)
        if s.inherited and s.stamp is not None and not s.alt_path: p.i("s_memtime s[%d:%d]" % (SB + 12, SB + 13))
        for x in s.inherited: s.fill_emit(p, x)
        if s.inherited and s.stamp is not None and not s.alt_path: p.i("s_memtime s[%d:%d]" % (SB + 16, SB + 17))
        if s.alt_path:
            i0 = [k for k, it in enumerate(p.items) if it[0] == 'label' and it[1] == "g34_cont0"][0]
            ninh = len(s.inherited)
            s.alt_loads = [it[1] for it in p.items[i0 + 1:len(p.items) - ninh]]
            p.label("g34_join0")
        late(p)
        def sync(st):
            p.wv(("D", st), [("D", st, n) for n in range(s.ndma) if not s.is_late(st, n)])
            p.i("s_barrier")
        def rd(n, h):
            if n >= N: return
            st, sub, j = units[n]
            slot = st % s.R
            r = s.aBbase + (n % s.NB) * 4 + 2 * h
            p.ds("ds_read_b64_tr_b16 a[%d:%d], v%d offset:%d" % (r, r + 1, s.vB[slot // s.spb], (slot % s.spb) * s.STB + s.rd_off(sub, j, h)), ("B", n, h))
        for n in range(-PD, 0):
            for st in sync_at.get(n, []):
                sync(st)
                if st == 0: s.post_sync0(p)
            rd(n + PD, 0); rd(n + PD, 1)
        if s.stamp is not None: p.i("s_memtime s[%d:%d]" % (SB + 8 + 2 * s.m_start, SB + 9 + 2 * s.m_start))
        vr = s.valu_ready(units)
        vq = []
        seen_q = set()
        seen_j = set()
        credit = 0.0
        for n, (st, sub, j) in enumerate(units):
            q = st * s.SUB + sub
            vq += vr.get(n, [])
            if s.stamp is not None and n in s.prof(N): p.i("s_memtime s[%d:%d]" % (SB + 8 + 2 * (s.m_prof + s.prof(N).index(n)), SB + 9 + 2 * (s.m_prof + s.prof(N).index(n))))
            if q not in seen_q:
                seen_q.add(q)
                p.wv(("A", q), [("A", q, i) for i in range(s.NRB)])
                s.extra_unit(p, q)
            p.wl(("B", n), [("B", n, 0), ("B", n, 1)])
            b = s.aBbase + (n % s.NB) * 4
            for i in range(s.NRB):
                c = s.acc(j, i)
                p.i("v_mfma_f32_16x16x32_%s v[%d:%d], a[%d:%d], a[%d:%d], %s" % (s.dt,
                    c, c + 3, b, b + 3, s.aA(q, i), s.aA(q, i) + 3, ("v[%d:%d]" % (c, c + 3)) if j in seen_j else "0"))
                if i == 0:
                    for st2 in sync_at.get(n, []): sync(st2)
                    if n in xbar: p.i("s_barrier")
                    if n in late_at:
                        p.wv(("Dlate", n), [("D", st2, k) for st2 in late_at[n] for k in range(s.ndma) if s.is_late(st2, k)])
                        p.i("s_barrier")
                    rd(n + PD, 0)
                    if s.NRB == 1: rd(n + PD, 1)
                elif i == 1:
                    rd(n + PD, 1)
                if i == s.NRB - 1:
                    seen_j.add(j)
                    credit = min(credit + s.rate, max(s.rate, 1.0) + 0.99)
                    if qx and qx[0][0] <= n and qx[0][1] <= n:
                        if qx[0] not in s.late_x: s.last_vm_step = n
                        s.put(p, qx.pop(0)[2])
                    while credit >= 1.0:
                        op = next_vm(n)
                        if not op: break
                        s.put(p, op); credit -= 1.0
                        s.last_vm_step = n
                        s.issue_step[op[2]] = n
                for _ in range(s.vpm):
                    if vq:
                        x = vq.pop(0)
                        s.fill_emit(p, x)
        assert not qd and not qa and not qx
        if s.stamp is not None: p.i("s_memtime s[%d:%d]" % (SB + 8 + 2 * s.m_end, SB + 9 + 2 * s.m_end))
        s.post_loop(p)
        p.i("s_nop 7")
        for k in sorted(vr):
            if k >= N: vq += vr[k]
        if s.handover:
            s.leftover = vq; s.stream = p
            return
        for x in vq: s.fill_emit(p, x)
        s.tail(p)
        res = resolve(s.prev_streams + [p])
        for q_ in s.prev_streams: emit(a, q_, res, ())
        emit(a, p, res, s.skip)
    def tail(s, p): pass
    def post_loop(s, p): pass
    def fill_emit(s, p, x):
        if isinstance(x, tuple):
            if x[0] == "wv": p.wv(x[1], x[2])
            else: p.vm(x[1], x[2])
        elif x.startswith("buffer_"): p.vm(x, None)
        else: p.i(x)
    def prof(s, N): return [N * k // 8 for k in range(1, 8)]
    def header(s, a):
        a.begin_kernel(s.name)
        a("s_cmp_ge_u32 s2, 256")
        a("s_cbranch_scc1 %s_end" % s.name)
        if s.stamp is not None: stamp_begin(a)
        if s.selfpf: self_code_touch(a, s.name, "%s_end" % s.name, s.vCode, s.vJunk, s.sCode, 2)
    def footer(s, a, nagpr, lds):
        if s.stamp is not None:
            stamp_mid(a, 2); stamp_end(a, 40, s.stamp, s.sWave)
        a.label("%s_end" % s.name)
        a.end_kernel(s.name, s.VACC + s.NACC, nagpr, 102)
        a.launch(s.name, 256, 256, lds)

def touch_ops(g, skarg, vtmp, vdst, ssrd=64, soff=68):
    L = []
    srd_off(L.append, ssrd, skarg, 0, 1024 * 7168)
    L.append("s_lshl_b32 s%d, s2, 2" % soff)
    L.append("s_add_u32 s%d, s%d, s%d" % (soff, soff, g.sWave))
    L.append("s_mul_i32 s%d, s%d, 7168" % (soff, soff))
    L.append("v_lshlrev_b32 v%d, 6, v0" % vtmp)
    ops = [[[], "buffer_load_dword v%d, v%d, s[%d:%d], s%d offen" % (vdst, vtmp, ssrd, ssrd + 3, soff), ("T", 0), []],
           [[], "buffer_load_dword v%d, v%d, s[%d:%d], s%d offen offset:3072" % (vdst, vtmp, ssrd, ssrd + 3, soff), ("T", 1), []]]
    return L, ops

class G3(Gemm2):
    def __init__(s, AR=4, PD=3, R=5, pf=(30, 24, 364, 1), retouch=(150, 300), tfl='', dfl='', xbar=(), pk=False, pf0=8, TS=3, vpm=2, fill=12, fill_flags="", **kw):
        s.fill = fill; s.fill_flags = fill_flags
        kw.setdefault("npro", 7); kw.setdefault("rate", 0.66); kw.setdefault("st_flags", " sc1")
        super().__init__("g3_kernel", NRB=4, NF=14, SUB=2, NST=16, STB=28672, R=R, AR=AR, PD=PD, ndma=7, VACC=32, **kw)
        s.pf, s.TS, s.vpm = pf, TS, vpm
        s.sCode, s.retouch = 56, retouch
        s.tfl, s.dfl = tfl, dfl
        s.xbar_after = xbar
        s.pk = pk
        s.pf0 = pf0
        s.flag_after = {3: 1, 5: 3}
        s.extra_fill = None
        s.pair_order = [0, 1, 2, 3, 4, 5, 6]
        s.vC1 = [16, 17, 18, 19]; s.vT = 20
    def dma_text(s, st, n):
        pre = ["s_add_u32 m0, s%d, %d" % (s.sLdsW, (st % s.R) * s.STB + (n // 4) * 4096)] if n % 4 == 0 else []
        return pre, "buffer_load_dwordx4 v%d, s[%d:%d], s%d offen offset:%d%s lds" % (s.vD[n], s.sW, s.sW + 3, s.sDoff, (n % 4) * 1024, s.dfl)
    def dma_step(s, st): return 64 * 7168
    def rd_off(s, sub, j, h):
        mat, jj = divmod(j, 7)
        return (sub * 2 + mat) * 7168 + h * 16 * 224 + jj * 32
    def unit_order(s):
        u = [(st, sub, j) for st in range(s.NST - s.TS) for sub in range(s.SUB) for j in range(s.NF)]
        for p_ in s.pair_order:
            for st in range(s.NST - s.TS, s.NST):
                for sub in range(s.SUB):
                    u += [(st, sub, p_), (st, sub, p_ + 7)]
        return u
    def epi_pair(s, j):
        L = []
        if j % 2 == 1: L.append("s_add_u32 s45, s44, %d" % ((j // 2) * 16 * 1024))
        if j == 6: L.append("s_mov_b32 s45, s46")
        for i in range(s.NRB):
            g, u = s.acc(j, i), s.acc(j + 7, i)
            t = s.vT + 4 * (i % 2)
            o = g if j % 2 == 0 else s.acc(j - 1, i) + 2
            c = s.vC1[i]
            if s.pk:
                sel = "op_sel:[0,%d] op_sel_hi:[1,%d]" % (c % 2, c % 2)
                for r in (0, 2): L.append("v_pk_mul_f32 v[%d:%d], v[%d:%d], v[%d:%d] %s" % (t + r, t + r + 1, g + r, g + r + 1, c & ~1, (c & ~1) + 1, sel))
                for r in range(4):
                    L.append("v_exp_f32 v%d, v%d" % (t + r, t + r))
                    if r % 2 == 1: L.append("v_pk_mul_f32 v[%d:%d], v[%d:%d], v[%d:%d]" % (g + r - 1, g + r, g + r - 1, g + r, u + r - 1, u + r))
                for r in (0, 2): L.append("v_pk_add_f32 v[%d:%d], v[%d:%d], 1.0 op_sel_hi:[1,0]" % (t + r, t + r + 1, t + r, t + r + 1))
                for r in range(4): L.append("v_rcp_f32 v%d, v%d" % (t + r, t + r))
                if i and (j % 2 == 1 or j == 6): L.append("s_add_u32 s45, s45, %d" % (112 * 1024))
                for r in (0, 2): L.append("v_pk_mul_f32 v[%d:%d], v[%d:%d], v[%d:%d]" % (g + r, g + r + 1, g + r, g + r + 1, t + r, t + r + 1))
            else:
                for r in range(4): L.append("v_mul_f32 v%d, v%d, v%d" % (t + r, g + r, c))
                for r in range(4):
                    L.append("v_exp_f32 v%d, v%d" % (t + r, t + r))
                    L.append("v_mul_f32 v%d, v%d, v%d" % (g + r, g + r, u + r))
                for r in range(4): L.append("v_add_f32 v%d, 1.0, v%d" % (t + r, t + r))
                for r in range(4): L.append("v_rcp_f32 v%d, v%d" % (t + r, t + r))
                if i and (j % 2 == 1 or j == 6): L.append("s_add_u32 s45, s45, %d" % (112 * 1024))
                for r in range(4): L.append("v_mul_f32 v%d, v%d, v%d" % (g + r, g + r, t + r))
            L.append("v_cvt_pk_bf16_f32 v%d, v%d, v%d" % (o, g, g + 1))
            L.append("v_cvt_pk_bf16_f32 v%d, v%d, v%d" % (o + 1, g + 2, g + 3))
            if j == 6:
                L.append(("vm", "buffer_store_dwordx2 v[%d:%d], v1, s[%d:%d], s45 offen%s" % (o, o + 1, s.sO, s.sO + 3, " sc1" if s.fused else ""), ("st", j, i)))
            elif j % 2 == 1:
                L.append(("vm", "buffer_store_dwordx4 v[%d:%d], v1, s[%d:%d], s45 offen%s" % (o - 2, o + 1, s.sO, s.sO + 3, s.st_flags), ("st", j, i)))
        if s.fused and j in s.flag_after:
            pj = s.flag_after[j]
            L.append(("wv", ("stw", pj), [("st", pj, i) for i in range(s.NRB)]))
            L.append("v_mov_b32 v28, %d" % (pj // 2 + 1))
            L.append("v_mov_b32 v30, 0")
            L.append("buffer_store_dword v28, v30, s[60:63], s59 offen sc1")
        return L
    def valu_ready(s, units):
        last = {}
        for n, (st, sub, j) in enumerate(units): last[j % 7] = n
        out = {last[j] + 3: s.epi_pair(j) for j in range(7)}
        L = [("wv", "ssw", [("ss", i) for i in range(s.NRB)])]
        for i in range(s.NRB):
            b = s.vT
            for r in range(4): L.append("v_accvgpr_read_b32 v%d, a%d" % (b + r, s.aX + 4 * i + r))
            L.append("v_add_f32 v%d, v%d, v%d" % (b, b, b + 1))
            L.append("v_add_f32 v%d, v%d, v%d" % (b + 2, b + 2, b + 3))
            L.append("v_add_f32 v%d, v%d, v%d" % (b, b, b + 2))
            reduce_g4(L.append, b, b + 1)
            L.append("v_mov_b32 v%d, 0x%x" % (b + 1, f2u(1e-5)))
            L.append("v_fmac_f32 v%d, 0x%x, v%d" % (b + 1, f2u(1.0 / 1024), b))
            L.append("v_rsq_f32 v%d, v%d" % (b + 1, b + 1))
            L.append("s_nop 0")
            L.append("v_mul_f32 v%d, 0x%x, v%d" % (s.vC1[i], f2u(-LOG2E), b + 1))
        out[28 * 9] = L
        if s.extra_fill:
            k = s.extra_fill[0]
            while k in out: k += 1
            out[k] = s.extra_fill[1]
        return out
    def extra_vm(s):
        L = []
        for i in range(s.NRB):
            L.append((28 * 6 + 5 * i, 28 * 7, [[], "buffer_load_dwordx4 a[%d:%d], v29, s[%d:%d], s47 offen offset:%d%s" % (s.aX + 4 * i, s.aX + 4 * i + 3, s.sS, s.sS + 3, i * 1024, s.a_flags), ("ss", i), []]))
        if s.fill:
            for k in range(s.fill):
                post = ["s_add_u32 s69, s69, 4096"] if k % 4 == 3 else []
                L.append((28 * 4 + 9 * k, 28 * 5 + 9 * k, [[], "buffer_store_dwordx4 a[%d:%d], v29, s[52:55], s69 offen offset:%d%s" % (s.aF, s.aF + 3, (k % 4) * 1024, s.fill_flags), ("F", k), post]))
        if s.pf:
            n0, dn, m0_, dm = s.pf
            for k in range(16 - s.pf0):
                n = n0 + k * dn
                L.append((n, n, [[], "buffer_load_dword v31, v30, s[4:7], s70 offen" + s.tfl, ("T2", k), ["s_add_u32 s70, s70, %d" % (64 * 7168)]]))
            for k in range(2):
                n = m0_ + k * dm
                L.append((n, n, [["v_lshrrev_b32 v30, 3, v0", "v_lshlrev_b32 v30, 10, v30", "v_lshl_add_u32 v30, v0, 7, v30"] if k == 0 else [], "buffer_load_dword v31, v30, s[64:67], s68 offen", ("T3", k), ["s_add_u32 s68, s68, %d" % (7 * 2048)]]))
        return L
    def gen(s, a):
        NRB, sT, sWave, vT = s.NRB, s.sT, s.sWave, s.vT
        sNt, sMt = 33, 34
        if not s.after_k2: s.header(a)
        a("s_load_dwordx4 s[36:39], s[0:1], 48")
        a("s_load_dwordx4 s[48:51], s[0:1], 64")
        if not s.after_k2:
            a("s_load_dwordx2 s[40:41], s[0:1], 88")
            a("v_lshrrev_b32 v1, 6, v0")
            a("v_and_b32 v0, 63, v0")
            a("v_readfirstlane_b32 s%d, v1" % sWave)
        else:
            a("s_barrier")
            self_code_touch(a, s.name, "%s_end" % s.name, s.vCode, s.vJunk, s.sCode, 2, swave=sWave, tag="pc3")
        a("s_and_b32 s%d, s2, 7" % sT)
        a("s_lshl_b32 s%d, s%d, 2" % (sNt, sT))
        a("s_lshr_b32 s%d, s2, 3" % sT)
        a("s_and_b32 s%d, s%d, 3" % (sMt, sT))
        a("s_add_u32 s%d, s%d, s%d" % (sNt, sNt, sMt))
        a("s_lshr_b32 s%d, s%d, 2" % (sMt, sT))
        a("s_lshl_b32 s%d, s%d, 4" % (sT, sMt))
        a("s_mul_i32 s42, s%d, %d" % (sWave, NRB))
        a("s_add_u32 s42, s42, s%d" % sT)
        a("s_lshl_b32 s43, s42, 15")
        a("v_lshlrev_b32 v1, 4, v0")
        for i in range(NRB):
            a("s_add_u32 s%d, s43, %d" % (sT, i * 32768))
            a("v_add_u32 v%d, s%d, v1" % (s.vA[i], sT))
        a("s_lshl_b32 s47, s42, 10")
        for i in range(7):
            a("v_add_u32 v%d, %d, v0" % (vT, 64 * i))
            a("v_mul_u32_u24 v%d, 4682, v%d" % (vT + 1, vT))
            a("v_lshrrev_b32 v%d, 16, v%d" % (vT + 1, vT + 1))
            a("v_mul_u32_u24 v%d, %d, v%d" % (vT + 1, 7168 - 14 * 16, vT + 1))
            a("v_lshl_add_u32 v%d, v%d, 4, v%d" % (s.vD[i], vT, vT + 1))
            if i % 4:
                a("v_subrev_u32 v%d, %d, v%d" % (s.vD[i], (i % 4) * 1024, s.vD[i]))
        a("s_and_b32 s%d, s%d, 1" % (sT, sWave))
        a("s_mul_i32 s%d, s%d, %d" % (s.sDoff, sT, 32 * 7168))
        a("s_mul_i32 s32, s%d, 224" % sNt)
        a("s_add_u32 s%d, s%d, s32" % (s.sDoff, s.sDoff))
        a("s_lshl_b32 s%d, s%d, 1" % (sT, sT))
        a("s_bfe_u32 s32, s%d, 0x10001" % sWave)
        a("s_add_u32 s32, s32, s%d" % sT)
        a("s_mul_i32 s%d, s32, 7168" % s.sLdsW)
        a("s_waitcnt lgkmcnt(0)")
        a("s_bitcmp1_b32 s%d, 1" % sWave)
        a("s_cselect_b32 s%d, s38, s36" % s.sW)
        a("s_cselect_b32 s%d, s39, s37" % (s.sW + 1))
        a("s_and_b32 s%d, s%d, 0xffff" % (s.sW + 1, s.sW + 1))
        a("s_mov_b32 s%d, %d" % (s.sW + 2, 1024 * 7168))
        a("s_mov_b32 s%d, 0x00020000" % (s.sW + 3))
        srd_off(a, s.sA, 40, WS_HC, 4 * MB)
        if s.stamp is not None and not s.after_k2: stamp_mid(a, 3)
        aSS = s.aX
        tl, s.tops = touch_ops(s, 48, 30, 31)
        def early(p): pass
        def late(p):
            srd_off(p.i, s.sS, 40, WS_SS, 2048 * 64)
            srd_off(p.i, s.sO, 40, WS_ACT, 2048 * 3584 * 2)
            p.i("v_lshrrev_b32 v%d, 2, v0" % vT)
            p.i("v_mul_u32_u24 v%d, 224, v%d" % (vT, vT))
            p.i("v_and_b32 v%d, 3, v0" % (vT + 1))
            p.i("v_lshl_add_u32 v%d, v%d, 3, v%d" % (s.vB[0], vT + 1, vT))
            s.base_setup(p.i)
            p.i("v_mov_b32 v29, v1")
            p.i("s_mul_i32 s43, s42, %d" % (112 * 1024))
            p.i("v_add_u32 v1, s43, v1")
            p.i("s_lshr_b32 s%d, s%d, 4" % (sT, sNt))
            p.i("s_mul_i32 s46, s%d, %d" % (sT, 56 * 1024))
            p.i("s_and_b32 s%d, s%d, 15" % (sT, sNt))
            p.i("s_lshl_b32 s44, s%d, 10" % sT)
            p.i("s_add_u32 s44, s44, s46")
            p.i("s_lshr_b32 s%d, s%d, 1" % (sT, sT))
            p.i("s_lshl_b32 s%d, s%d, 10" % (sT, sT))
            p.i("s_add_u32 s46, s46, s%d" % sT)
            p.i("s_and_b32 s%d, s%d, 1" % (sT, sNt))
            p.i("s_lshl_b32 s%d, s%d, 3" % (sT, sT))
            p.i("s_add_u32 s46, s46, s%d" % sT)
            p.i("s_add_u32 s46, s46, %d" % (48 * 1024))
            if s.pf:
                srd_off(p.i, 64, 48, 0, 1024 * 7168)
                p.i("v_lshlrev_b32 v30, 7, v0")
                p.i("v_cmp_lt_u32 vcc, 6, v0")
                p.i("v_mov_b32 v%d, 0x40000000" % vT)
                p.i("s_lshr_b32 s70, s2, 3")
                p.i("v_cndmask_b32 v30, v30, v%d, vcc" % vT)
                p.i("s_lshl_b32 s70, s70, 2")
                p.i("s_add_u32 s70, s70, s%d" % sWave)
                p.i("s_mul_i32 s68, s70, %d" % (14 * 2048))
                p.i("s_bfe_u32 s71, s2, 0x10002")
                p.i("s_mul_i32 s71, s71, %d" % (1792 * 2048))
                p.i("s_add_u32 s68, s68, s71")
                p.i("s_and_b32 s71, s2, 1")
                p.i("s_lshl_b32 s71, s71, 10")
                p.i("s_add_u32 s68, s68, s71")
                p.i("s_bitcmp1_b32 s70, 6")
                p.i("s_cselect_b32 s4, s38, s36")
                p.i("s_cselect_b32 s5, s39, s37")
                p.i("s_and_b32 s5, s5, 0xffff")
                p.i("s_mov_b32 s6, %d" % (1024 * 7168))
                p.i("s_mov_b32 s7, 0x00020000")
                p.i("s_and_b32 s70, s70, 63")
                p.i("s_mul_i32 s70, s70, 7168")
                p.i("s_and_b32 s71, s2, 7")
                p.i("s_mul_i32 s71, s71, 896")
                p.i("s_add_u32 s70, s70, s71")
                p.i("s_add_u32 s70, s70, %d" % (s.pf0 * 64 * 7168))
            if s.fill:
                srd_off(p.i, 52, 40, WS_XB, s.fill * MB)
                p.i("s_lshl_b32 s69, s2, 2")
                p.i("s_add_u32 s69, s69, s%d" % sWave)
                p.i("s_mul_i32 s69, s69, %d" % (s.fill * 1024))
                for r in range(4): p.i("v_accvgpr_write_b32 a%d, -1" % (s.aF + r))
            if s.fused:
                srd_off(p.i, 60, 40, WS_FL, 8192)
                p.i("s_lshr_b32 s59, s42, 2")
                p.i("s_lshl_b32 s59, s59, 5")
                p.i("s_add_u32 s59, s59, s%d" % sNt)
                p.i("s_lshl_b32 s59, s59, 2")
        def gate(p):
            I = p.i
            I("s_lshr_b32 s%d, s42, 2" % sT)
            I("s_lshl_b32 s%d, s%d, 7" % (sT, sT))
            I("s_sub_u32 s32, 8, s%d" % sMt)
            I("s_and_b32 s32, s32, 7")
            I("s_lshl_b32 s32, s32, 2")
            I("s_sub_u32 s45, 3, s%d" % sWave)
            I("s_add_u32 s45, s45, s32")
            I("s_lshl_b32 s45, s45, 7")
            I("v_mov_b32 v%d, s%d" % (vT, sT))
            I("v_mov_b32 v%d, s45" % (vT + 1))
            I("v_cmp_gt_u32 vcc, 32, v0")
            I("s_sub_u32 s45, 4, s%d" % sWave)
            I("s_and_b32 s45, s45, 3")
            I("v_cndmask_b32 v%d, v%d, v%d, vcc" % (vT, vT + 1, vT))
            I("s_add_u32 s45, s45, s32")
            I("s_lshl_b32 s45, s45, 7")
            I("v_and_b32 v%d, 31, v0" % (vT + 1))
            I("v_lshlrev_b32 v%d, 2, v%d" % (vT + 1, vT + 1))
            I("v_add_u32 v%d, v%d, v%d" % (vT, vT, vT + 1))
            I("v_add_u32 v%d, s45, v%d" % (vT + 1, vT + 1))
            I("v_mov_b32 v%d, 1" % (vT + 2))
            I("v_mov_b32 v%d, 0" % (vT + 3))
            I("s_mov_b32 s32, 0")
            I("s_waitcnt vmcnt(%d)" % (2 * s.ndma + 1))
            p.vm("buffer_store_dword v%d, v%d, s[60:63], s35 offen sc1" % (vT + 2, vT + 3), ("k2f",))
            p.label("g234_spin")
            I("s_movk_i32 s45, 0x1000")
            p.vm("buffer_load_dword v%d, v%d, s[60:63], s45 offen sc1" % (vT + 4, vT), ("k2l", 0))
            p.vm("buffer_load_dword v%d, v%d, s[60:63], s45 offen sc1" % (vT + 5, vT + 1), ("k2l", 1))
            I("s_add_u32 s32, s32, 1")
            I("s_waitcnt vmcnt(0)")
            I("v_min_u32 v%d, v%d, v%d" % (vT + 4, vT + 4, vT + 5))
            I("v_cmp_ne_u32 vcc, 1, v%d" % (vT + 4))
            I("s_cmp_lt_u32 s32, 0x40000")
            I("s_cselect_b64 vcc, vcc, 0")
            I("s_cmp_lg_u64 vcc, 0")
            I("s_cbranch_scc1 g234_spin")
            if s.stamp is not None: I("s_memtime s[%d:%d]" % (SB + 8 + 2 * 3, SB + 9 + 2 * 3))
        if s.after_k2: s.gate = gate
        s.aF = aSS + 4 * NRB
        if s.fused: s.post_loop = lambda p: p.i("s_barrier")
        s.emit_main(a, early, late)
        s.nagpr = aSS + 4 * NRB + 4
        if not s.fused: s.footer(a, s.nagpr, s.R * s.STB)

class G4(Gemm2):
    def __init__(s, AR=4, PD=3, R=6, name="g4_kernel", NST=28, **kw):
        kw.setdefault("npro", 12)
        super().__init__(name, NRB=2, NF=4, SUB=4, NST=NST, STB=16896, R=R, AR=AR, PD=PD, ndma=4, VACC=64, **kw)
    def dma_text(s, st, n):
        pre = ["s_add_u32 m0, s%d, %d" % (s.sLdsW, (st % s.R) * s.STB)] if n == 0 else []
        return pre, "buffer_load_dwordx4 v%d, s[%d:%d], s%d offen offset:%d lds" % (s.vD[n], s.sW, s.sW + 3, s.sDoff, n * 1056)
    def dma_step(s, st): return 128 * 2048
    def rd_off(s, sub, j, h):
        return (sub // 2) * 8448 + (sub % 2) * 512 + h * 256 + j * 32
    def lane_addrs(s, a, vT):
        a("v_bfe_u32 v%d, v0, 2, 3" % vT)
        a("v_mul_u32_u24 v%d, 1056, v%d" % (vT, vT))
        a("v_lshrrev_b32 v%d, 5, v0" % (vT + 1))
        a("v_lshl_add_u32 v%d, v%d, 7, v%d" % (vT, vT + 1, vT))
        a("v_and_b32 v%d, 3, v0" % (vT + 1))
        a("v_lshl_add_u32 v%d, v%d, 3, v%d" % (s.vB[0], vT + 1, vT))
        s.base_setup(a)
    def extra_vm(s): return s.xops
    def gen(s, a):
        NRB, sT, sWave = s.NRB, s.sT, s.sWave
        vT = 20; vR2 = [16, 17]; vM = [18, 19]; vH = 32
        sNt, sMt, sH, sM = 33, 34, 48, 52
        s.header(a)
        a("s_load_dwordx4 s[36:39], s[0:1], 64")
        a("s_load_dwordx2 s[40:41], s[0:1], 88")
        a("v_lshrrev_b32 v1, 6, v0")
        a("v_and_b32 v0, 63, v0")
        a("v_readfirstlane_b32 s%d, v1" % sWave)
        a("s_bfe_u32 s%d, s2, 0x20001" % sT)
        a("s_lshl_b32 s%d, s%d, 2" % (sMt, sT))
        a("s_lshr_b32 s%d, s2, 6" % sT)
        a("s_add_u32 s%d, s%d, s%d" % (sMt, sMt, sT))
        a("s_and_b32 s%d, s2, 1" % sT)
        a("s_lshl_b32 s%d, s%d, 3" % (sNt, sT))
        a("s_bfe_u32 s%d, s2, 0x30003" % sT)
        a("s_add_u32 s%d, s%d, s%d" % (sNt, sNt, sT))
        a("s_lshl_b32 s42, s%d, 3" % sMt)
        a("s_lshl_b32 s%d, s%d, 1" % (sT, sWave))
        a("s_add_u32 s42, s42, s%d" % sT)
        a("s_mul_i32 s43, s42, %d" % (112 * 1024))
        a("v_lshlrev_b32 v1, 4, v0")
        for i in range(NRB):
            a("s_add_u32 s%d, s43, %d" % (sT, i * 112 * 1024))
            a("v_add_u32 v%d, s%d, v1" % (s.vA[i], sT))
        a("v_lshrrev_b32 v%d, 3, v0" % vT)
        a("v_lshlrev_b32 v%d, 14, v%d" % (vT, vT))
        a("v_and_b32 v%d, 7, v0" % (vT + 1))
        a("v_lshl_add_u32 v%d, v%d, 4, v%d" % (s.vD[0], vT + 1, vT))
        for n in range(1, 4):
            a("v_add_u32 v%d, %d, v%d" % (s.vD[n], n * (2048 - 1056), s.vD[0]))
        a("s_mul_i32 s%d, s%d, 4224" % (s.sLdsW, sWave))
        a("s_lshr_b32 s%d, s%d, 1" % (sT, sWave))
        a("s_lshl_b32 s%d, s%d, 17" % (s.sDoff, sT))
        a("s_and_b32 s%d, s%d, 1" % (sT, sWave))
        a("s_lshl_b32 s%d, s%d, 13" % (sT, sT))
        a("s_add_u32 s%d, s%d, s%d" % (s.sDoff, s.sDoff, sT))
        a("s_lshl_b32 s%d, s%d, 7" % (sT, sNt))
        a("s_add_u32 s%d, s%d, s%d" % (s.sDoff, s.sDoff, sT))
        a("s_waitcnt lgkmcnt(0)")
        srd_off(a, s.sW, 36, 0, 3584 * 2048)
        srd_off(a, s.sA, 40, WS_ACT, 2048 * 3584 * 2)
        if s.stamp is not None: stamp_mid(a, 3)
        n0 = (s.NST - 4) * s.NF * s.SUB
        s.xops = []
        for i in range(NRB):
            s.xops.append((n0, 10**9, [[], "buffer_load_dwordx4 v[%d:%d], v1, s[%d:%d], s47 offen offset:%d" % (48 + 4 * i, 51 + 4 * i, s.sS, s.sS + 3, i * 1024), ("ss", i), []]))
            for q in range(2):
                r = vH + (i * 2 + q) * 4
                s.xops.append((n0, 10**9, [[], "buffer_load_dwordx4 v[%d:%d], v1, s[%d:%d], s%d offen offset:%d" % (r, r + 3, sH, sH + 3, 45 + i, q * 1024), ("h", i, q), []]))
            s.xops.append((n0, 10**9, [[], "buffer_load_dword v%d, v%d, s[%d:%d], 0 offen offset:%d" % (vM[i], vT + 10, sM, sM + 3, i * 64), ("m", i), []]))
        def early(p): pass
        def late(p):
            s.lane_addrs(p.i, vT)
            srd_off(p.i, s.sS, 40, WS_SS, 2048 * 64)
            srd_off(p.i, s.sO, 38, 0, 2048 * 2048)
            srd_off(p.i, sH, 40, WS_HC, 4 * MB)
            srd_off(p.i, sM, 40, WS_MT, 8192)
            p.i("s_lshl_b32 s47, s42, 10")
            p.i("s_lshl_b32 s%d, s42, 15" % sT)
            p.i("s_lshl_b32 s45, s%d, 11" % sNt)
            p.i("s_add_u32 s45, s45, s%d" % sT)
            p.i("s_add_u32 s46, s45, 0x8000")
            p.i("v_and_b32 v%d, 15, v0" % vT)
            p.i("s_lshl_b32 s%d, s42, 4" % sT)
            p.i("v_add_u32 v%d, s%d, v%d" % (vT, sT, vT))
            p.i("v_lshlrev_b32 v%d, 2, v%d" % (vT + 10, vT))
            p.i("v_lshrrev_b32 v%d, 8, v%d" % (vT + 1, vT))
            p.i("v_and_b32 v%d, 255, v%d" % (vT, vT))
            p.i("v_lshl_add_u32 v%d, v%d, 3, v%d" % (vT, vT, vT + 1))
            p.i("v_lshlrev_b32 v%d, 11, v%d" % (vT, vT))
            p.i("v_lshrrev_b32 v%d, 4, v0" % (vT + 1))
            p.i("v_lshl_add_u32 v%d, v%d, 3, v%d" % (vT, vT + 1, vT))
            p.i("s_lshl_b32 s44, s%d, 7" % sNt)
        def tail(e):
            e.wv("side", [("ss", i) for i in range(NRB)] + [("h", i, q) for i in range(NRB) for q in range(2)] + [("m", i) for i in range(NRB)])
            for i in range(NRB):
                b = 48 + 4 * i
                e.i("v_add_f32 v%d, v%d, v%d" % (b, b, b + 1))
                e.i("v_add_f32 v%d, v%d, v%d" % (b + 2, b + 2, b + 3))
                e.i("v_add_f32 v%d, v%d, v%d" % (b, b, b + 2))
                reduce_g4(e.i, b, b + 1)
                e.i("v_mov_b32 v%d, 0x%x" % (b + 1, f2u(1e-5)))
                e.i("v_fmac_f32 v%d, 0x%x, v%d" % (b + 1, f2u(1.0 / 1024), b))
                e.i("v_rcp_f32 v%d, v%d" % (vR2[i], b + 1))
            for i in range(NRB):
                for j in range(4):
                    c = s.acc(j, i)
                    h = vH + (i * 2 + j // 2) * 4 + (j % 2) * 2
                    t = vT + 2 + 4 * (j % 2)
                    e.i("v_lshlrev_b32 v%d, 16, v%d" % (t, h))
                    e.i("v_and_b32 v%d, 0xffff0000, v%d" % (t + 1, h))
                    e.i("v_lshlrev_b32 v%d, 16, v%d" % (t + 2, h + 1))
                    e.i("v_and_b32 v%d, 0xffff0000, v%d" % (t + 3, h + 1))
                    for r in range(4): e.i("v_add_f32 v%d, v%d, v%d" % (t + r, t + r, vM[i]))
                    for r in range(4): e.i("v_fmac_f32 v%d, v%d, v%d" % (t + r, c + r, vR2[i]))
                    e.i("v_cvt_pk_bf16_f32 v%d, v%d, v%d" % (c, t, t + 1))
                    e.i("v_cvt_pk_bf16_f32 v%d, v%d, v%d" % (c + 1, t + 2, t + 3))
                    e.vm("buffer_store_dwordx2 v[%d:%d], v%d, s[%d:%d], s44 offen offset:%d" % (c, c + 1, vT, s.sO, s.sO + 3, j * 32))
                e.i("s_add_u32 s44, s44, %d" % (16 * 8 * 2048))
        s.tail = tail
        s.emit_main(a, early, late)
        s.footer(a, s.aX, s.R * s.STB)

class K2(G4):
    def __init__(s, PD=3, pf=False, xneed=12, **kw):
        kw.setdefault("npro", 14)
        kw.setdefault("rate", 0.7)
        super().__init__(AR=4, PD=PD, R=4, name="k2_kernel", NST=4, **kw)
        s.pf, s.xneed = pf, xneed
        s.aM = s.aX
        s.vAccM = 56
        s.vMl = 31
        s.vJunk = 30
        s.dt = 'f16'
        s.LM = s.R * s.STB
        s.LX = s.LM + 4096
    def dma_text(s, st, n):
        pre = ["s_add_u32 m0, s%d, %d" % (s.sLdsW, (st % s.R) * s.STB + 32 * n)]
        return pre, "buffer_load_dwordx4 v1, s[%d:%d], s%d offen offset:%d lds" % (s.sW, s.sW + 3, s.sDoff, n * 1024)
    def dma_step(s, st): return 16384
    def rdm(s, p, q):
        if q < 16:
            r = s.aM + 4 * (q % 4)
            p.ds("ds_read_b128 a[%d:%d], v%d offset:%d" % (r, r + 3, s.vMl, q * 64), ("M", q))
    def post_sync0(s, p):
        p.wv("vmw", [("vm",)])
        for q in range(3): s.rdm(p, q)
    def extra_unit(s, p, q):
        p.wl(("M", q), [("M", q)])
        r = s.aM + 4 * (q % 4)
        for i in range(s.NRB):
            c = s.vAccM + 4 * i
            src = "0" if q == 0 else "v[%d:%d]" % (c, c + 3)
            p.i("v_mfma_f32_16x16x32_f16 v[%d:%d], a[%d:%d], a[%d:%d], %s" % (c, c + 3, r, r + 3, s.aA(q, i), s.aA(q, i) + 3, src))
        s.rdm(p, q + 3)
    def gen(s, a):
        NRB, sT, sWave = s.NRB, s.sT, s.sWave
        vT = 20; vXM = [18, 19]; vX = 32; vXa = 16; vXr = 8
        sNt, sT1, sX, sM, sXM, sVM = 33, 34, 48, 52, 56, 60
        s.header(a)
        a("s_load_dwordx2 s[36:37], s[0:1], 0")
        a("s_load_dwordx2 s[38:39], s[0:1], 56")
        a("s_load_dwordx2 s[40:41], s[0:1], 88")
        a("v_lshrrev_b32 v1, 6, v0")
        a("v_and_b32 v0, 63, v0")
        a("v_readfirstlane_b32 s%d, v1" % sWave)
        a("s_and_b32 s%d, s2, 7" % sT1)
        a("s_bfe_u32 s%d, s2, 0x40003" % sNt)
        if s.pf:
            a("s_cmp_eq_u32 s%d, 4" % sWave)
            a("s_cbranch_scc1 k2_helper")
        a("s_lshr_b32 s%d, s2, 7" % sT)
        a("s_lshl_b32 s42, s%d, 4" % sT1)
        a("s_lshl_b32 s%d, s%d, 3" % (sT, sT))
        a("s_add_u32 s42, s42, s%d" % sT)
        a("s_lshl_b32 s%d, s%d, 1" % (sT, sWave))
        a("s_add_u32 s42, s42, s%d" % sT)
        a("s_lshl_b32 s43, s42, 14")
        a("v_lshlrev_b32 v1, 4, v0")
        for i in range(NRB):
            a("s_add_u32 s%d, s43, %d" % (sT, i * 16384))
            a("v_add_u32 v%d, s%d, v1" % (s.vA[i], sT))
        a("s_mul_i32 s%d, s%d, 4224" % (s.sLdsW, sWave))
        a("s_lshl_b32 s%d, s%d, 4" % (sT, sT1))
        a("s_add_u32 s%d, s%d, s%d" % (sT, sT, sNt))
        a("s_lshl_b32 s%d, s%d, 16" % (s.sDoff, sT))
        a("s_lshl_b32 s%d, s%d, 12" % (sT, sWave))
        a("s_add_u32 s%d, s%d, s%d" % (s.sDoff, s.sDoff, sT))
        a("s_lshl_b32 s45, s%d, 10" % sWave)
        a("s_add_u32 s45, s45, %d" % s.LM)
        a("s_lshl_b32 s46, s%d, 10" % sT1)
        a("s_waitcnt lgkmcnt(0)")
        srd_off(a, s.sW, 40, WS_V, 8 * MB)
        srd_off(a, s.sA, 40, WS_WSF, 2 * MB)
        srd_off(a, sVM, 40, WS_VM, 8192)
        if s.stamp is not None: stamp_mid(a, 3)
        s.xops = []
        for k in range(4):
            s.xops.append((0, s.xneed, [["s_add_u32 m0, s64, %d" % (k * 1024)],
                           "buffer_load_dwordx4 v%d, s[%d:%d], s47 offen lds" % (vXa + (k % 2), sX, sX + 3), ("x", k),
                           ["s_add_u32 s47, s47, %d" % (8 * 16384)]]))
        for i in range(NRB):
            s.xops.append((0, s.xneed, [[], "buffer_load_dword v%d, v%d, s[%d:%d], 0 offen offset:%d" % (vXM[i], vT + 3, sXM, sXM + 3, i * 64), ("xm", i), []]))
        def early(p):
            p.i("s_mov_b32 m0, s45")
            p.i("s_nop 0")
            p.vm("buffer_load_dwordx4 v1, s[%d:%d], s46 offen lds" % (sVM, sVM + 3), ("vm",))
        def late(p):
            s.lane_addrs(p.i, vT)
            p.i("v_lshrrev_b32 v%d, 4, v0" % vT)
            p.i("v_lshlrev_b32 v%d, 4, v%d" % (vT, vT))
            p.i("v_add_u32 v%d, s45, v%d" % (s.vMl, vT))
            p.i("v_and_b32 v%d, 15, v0" % vT)
            p.i("v_lshlrev_b32 v%d, 4, v%d" % (vT + 2, vT))
            p.i("s_lshl_b32 s%d, s42, 4" % sT)
            p.i("v_add_u32 v%d, s%d, v%d" % (vT + 3, sT, vT))
            p.i("v_lshlrev_b32 v%d, 2, v%d" % (vT + 3, vT + 3))
            p.i("v_lshrrev_b32 v%d, 3, v0" % (vT + 1))
            p.i("v_lshrrev_b32 v%d, 4, v0" % (vT + 4))
            p.i("v_and_b32 v%d, 7, v0" % (vT + 5))
            p.i("v_xor_b32 v%d, v%d, v%d" % (vT + 4, vT + 4, vT + 5))
            p.i("v_lshlrev_b32 v%d, 14, v%d" % (vT + 1, vT + 1))
            p.i("v_lshl_add_u32 v%d, v%d, 4, v%d" % (vXa, vT + 4, vT + 1))
            p.i("v_xor_b32 v%d, 64, v%d" % (vXa + 1, vXa))
            p.i("s_lshl_b32 s64, s%d, 12" % sWave)
            p.i("s_add_u32 s64, s64, %d" % s.LX)
            p.i("v_lshlrev_b32 v%d, 7, v%d" % (vT + 1, vT))
            p.i("v_add_u32 v%d, s64, v%d" % (vT + 1, vT + 1))
            p.i("v_bfe_u32 v%d, v0, 4, 1" % (vT + 4))
            p.i("v_lshl_add_u32 v%d, v%d, 3, v%d" % (vT + 1, vT + 4, vT + 1))
            p.i("v_lshrrev_b32 v%d, 5, v0" % (vT + 4))
            p.i("v_lshrrev_b32 v%d, 1, v%d" % (vT + 5, vT))
            p.i("v_xor_b32 v%d, v%d, v%d" % (vT + 4, vT + 4, vT + 5))
            for j in range(4):
                p.i("v_xor_b32 v%d, %d, v%d" % (vT + 5, 2 * j, vT + 4))
                p.i("v_lshl_add_u32 v%d, v%d, 4, v%d" % (vXr + j, vT + 5, vT + 1))
            p.i("s_lshr_b32 s47, s42, 4")
            p.i("s_and_b32 s%d, s42, 15" % sT)
            p.i("s_lshl_b32 s%d, s%d, 7" % (sT, sT))
            p.i("s_add_u32 s47, s47, s%d" % sT)
            p.i("s_lshl_b32 s47, s47, 11")
            p.i("s_lshl_b32 s%d, s%d, 7" % (sT, sNt))
            p.i("s_add_u32 s47, s47, s%d" % sT)
            srd_off(p.i, s.sS, 40, WS_SS, 2048 * 64)
            srd_off(p.i, s.sO, 40, WS_HC, 4 * MB)
            srd_off(p.i, sX, 36, 0, 2048 * 2048)
            srd_off(p.i, sM, 40, WS_MT, 8192)
            srd_off(p.i, sXM, 40, WS_XM, 8192)
            p.i("s_lshl_b32 s44, s42, 15")
            p.i("s_lshl_b32 s%d, s%d, 11" % (sT, sNt))
            p.i("s_add_u32 s44, s44, s%d" % sT)
            p.i("s_lshl_b32 s45, s42, 10")
            p.i("s_lshr_b32 s%d, s%d, 2" % (sT, sNt))
            p.i("s_lshl_b32 s%d, s%d, 8" % (sT, sT))
            p.i("s_add_u32 s45, s45, s%d" % sT)
            p.i("s_and_b32 s%d, s%d, 3" % (sT, sNt))
            p.i("s_lshl_b32 s%d, s%d, 2" % (sT, sT))
            p.i("s_add_u32 s45, s45, s%d" % sT)
        def tail(e):
            e.wv("side", [("x", k) for k in range(4)] + [("xm", i) for i in range(NRB)])
            for i in range(NRB):
                for j in range(4):
                    x = vX + (i * 4 + j) * 2
                    e.ds("ds_read_b64 v[%d:%d], v%d offset:%d" % (x, x + 1, vXr + j, i * 2048), ("xr", i, j))
            for i in range(NRB):
                m = vXM[i]
                e.i("v_add_f32 v%d, v%d, v%d" % (m, m, s.vAccM + 4 * i))
                ssr = 48 + 2 * i
                for j in range(4):
                    c = s.acc(j, i)
                    x = vX + (i * 4 + j) * 2
                    t = vT + 4
                    for r in range(4): e.i("v_sub_f32 v%d, v%d, v%d" % (c + r, c + r, m))
                    e.wl(("xr", i, j), [("xr", i, j)])
                    e.i("v_lshlrev_b32 v%d, 16, v%d" % (t, x))
                    e.i("v_and_b32 v%d, 0xffff0000, v%d" % (t + 1, x))
                    e.i("v_lshlrev_b32 v%d, 16, v%d" % (t + 2, x + 1))
                    e.i("v_and_b32 v%d, 0xffff0000, v%d" % (t + 3, x + 1))
                    for r in range(4): e.i("v_add_f32 v%d, v%d, v%d" % (t + r, t + r, c + r))
                    e.i("v_cvt_pk_bf16_f32 v%d, v%d, v%d" % (x, t, t + 1))
                    e.i("v_cvt_pk_bf16_f32 v%d, v%d, v%d" % (x + 1, t + 2, t + 3))
                    if j % 2 == 1:
                        e.vm("buffer_store_dwordx4 v[%d:%d], v1, s[%d:%d], s44 offen offset:%d%s" % (x - 2, x + 1, s.sO, s.sO + 3, (j // 2) * 1024, s.st_flags))
                    for r in range(4):
                        if j == 0 and r == 0: e.i("v_mul_f32 v%d, v%d, v%d" % (ssr, t, t))
                        else: e.i("v_fmac_f32 v%d, v%d, v%d" % (ssr, t + r, t + r))
                e.i("s_add_u32 s44, s44, 0x8000")
                reduce_g4(e.i, ssr, ssr + 1)
                e.vm("buffer_store_dword v%d, v%d, s[%d:%d], s45 offen offset:%d" % (ssr, vT + 2, s.sS, s.sS + 3, i * 1024))
            e.i("s_cmp_lg_u32 s%d, 0" % sNt)
            e.i("s_cbranch_scc1 %s_nomt" % s.name)
            for i in range(NRB):
                e.vm("buffer_store_dword v%d, v%d, s[%d:%d], 0 offen offset:%d" % (vXM[i], vT + 3, sM, sM + 3, i * 64))
            e.label("%s_nomt" % s.name)
        s.tail = tail
        s.emit_main(a, early, late)
        if s.stamp is not None:
            stamp_mid(a, 2); stamp_end(a, 40, s.stamp, s.sWave)
        if s.pf:
            a("s_branch %s_end" % s.name)
            a.label("k2_helper")
            a("s_waitcnt lgkmcnt(0)")
            srd_off(a, 64, 38, 0, 1024 * 7168)
            a("s_mul_i32 s68, s2, 28672")
            a("v_lshlrev_b32 v6, 6, v0")
            for k in range(7):
                a("buffer_load_dword v7, v6, s[64:67], s68 offen")
                a("s_add_u32 s68, s68, 4096")
            for k in range(s.NST): a("s_barrier")
        a.label("%s_end" % s.name)
        a.end_kernel(s.name, s.VACC + s.NACC, s.aM + 16, 102)
        a.launch(s.name, 256, 320 if s.pf else 256, s.LX + 16384)

class G4S(Gemm2):
    def __init__(s, SK=2, AR=None, PD=3, R=8, TS=1, LK=None, xfl=" sc1", l2pf=0, l2d=2, retouch=(200,), defer=True, lgrp=2, rc_ahead=28, **kw):
        kw.setdefault("npro", 8); kw.setdefault("rate", 0.6)
        s.l2pf, s.l2d = l2pf, l2d
        s.SK = SK
        NRB = SK
        AR = AR or (7 if SK == 4 else 10)
        s.LK = LK or (7 if SK == 4 else 8)
        s.KF = 8 // SK
        s.xfl = xfl
        super().__init__("g4_kernel", NRB=NRB, NF=8, SUB=2, NST=56 // SK, STB=16896, R=R, AR=AR, PD=PD, ndma=4, VACC=128, **kw)
        s.TS = TS
        s.retouch = retouch
        s.vCode = 10
        s.defer = defer
        s.lgrp, s.rc_ahead = lgrp, rc_ahead
        s.vD2 = [116, 117, 118, 119]
        s.vpm = 1
    def a_pre(s, q):
        if not (s.fused and q % 16 == 0): return []
        cpt = q // 16
        return [("wv", ("flw", cpt), [("fl", cpt)]),
                "v_cmp_gt_u32 vcc, %d, v12" % (cpt + 1), "s_nop 1", "s_cbranch_vccnz g34_slow%d" % cpt, ("label", "g34_cont%d" % cpt)]
    def slow_paths(s, a):
        for cpt in range(4):
            a.label("g34_slow%d" % cpt)
            if cpt == 0 and s.alt_path:
                for x in s.inherited:
                    if isinstance(x, tuple): a("s_waitcnt vmcnt(0)" if x[0] == "wv" else x[1])
                    else: a(x)
                a.label("g34_spin0")
            if s.backoff: a("s_sleep %d" % s.backoff)
            a("buffer_load_dword v12, v%d, s[4:7], 0 offen sc1" % (11 if cpt == 3 else 10))
            a("s_add_u32 s67, s67, 1")
            a("s_waitcnt vmcnt(0)")
            a("v_cmp_gt_u32 vcc, %d, v12" % (cpt + 1))
            a("s_cmp_lt_u32 s67, 0x40000")
            a("s_cselect_b64 s[68:69], vcc, 0")
            a("s_cmp_lg_u64 s[68:69], 0")
            if cpt == 0 and s.alt_path:
                a("s_cbranch_scc1 g34_spin0")
                for x in s.alt_loads: a(x)
                a("s_waitcnt vmcnt(0)")
                a("s_branch g34_join0")
            else:
                a("s_cbranch_scc1 g34_slow%d" % cpt)
                a("s_branch g34_cont%d" % cpt)
    def crow(s, kb):
        return (kb % 16) * 112 + (kb // 16) * 32 if kb < 48 else (kb - 48) * 224 + 96
    def is_late(s, st, n): return s.defer and st >= s.NST - s.LK and n >= 2
    def late_steps(s, units):
        if not s.defer: return {}
        first = {}
        for n, (st, sub, j) in enumerate(units):
            if st >= s.NST - s.LK and j < s.KF: first.setdefault(st, n)
        out = {}
        for st in first:
            g0 = s.NST - s.LK + (st - (s.NST - s.LK)) // s.lgrp * s.lgrp
            out[st] = first[g0]
        return out
    def dma_text(s, st, n):
        pre = []
        if n % 2 == 0:
            d = s.crow(2 * st + 1) - s.crow(2 * st)
            if n == 0 or s.is_late(st, n):
                pre.append("s_add_u32 s%d, s%d, %d" % (s.sDoff, {112: 27, 224: 30}[d], s.crow(2 * st) * 2048))
            pre.append("s_add_u32 m0, s%d, %d" % (s.sLdsW, (st % s.R) * s.STB + (0 if n else 4224)))
        v = (s.vD2 if st >= 24 else s.vD)[n]
        return pre, "buffer_load_dwordx4 v%d, s[%d:%d], s%d offen offset:%d lds" % (v, s.sW, s.sW + 3, s.sDoff, (n % 2) * 1056)
    def dma_step(s, st): return None
    def rd_off(s, sub, j, h): return sub * 8448 + (j // 4) * 4224 + h * 512 + (j % 4) * 32
    def unit_order(s):
        KF = s.KF
        u = [(st, sub, j) for st in range(s.NST - s.LK) for sub in range(s.SUB) for j in range(s.NF)]
        u += [(st, sub, j) for st in range(s.NST - s.LK, s.NST - s.TS) for sub in range(s.SUB) for j in range(KF, s.NF)]
        for pr in range(KF // 2, 4):
            for st in range(s.NST - s.TS, s.NST):
                for sub in range(s.SUB):
                    u += [(st, sub, 2 * pr), (st, sub, 2 * pr + 1)]
        u += [(st, sub, j) for st in range(s.NST - s.LK, s.NST) for sub in range(s.SUB) for j in range(KF)]
        return u
    def valu_ready(s, units):
        last = {}
        for n, (st, sub, j) in enumerate(units): last[j // 2] = n
        out = {}
        ppg = s.KF // 2
        for pr in range(ppg, 4):
            g, pi = divmod(pr, ppg)
            L = []
            for i in range(s.NRB):
                c0, c1 = s.acc(2 * pr, i), s.acc(2 * pr + 1, i)
                L.append("v_cvt_pk_bf16_f32 v%d, v%d, v%d" % (c0, c0, c0 + 1))
                L.append("v_cvt_pk_bf16_f32 v%d, v%d, v%d" % (c0 + 1, c0 + 2, c0 + 3))
                L.append("v_cvt_pk_bf16_f32 v%d, v%d, v%d" % (c0 + 2, c1, c1 + 1))
                L.append("v_cvt_pk_bf16_f32 v%d, v%d, v%d" % (c0 + 3, c1 + 2, c1 + 3))
                L.append("buffer_store_dwordx4 v[%d:%d], v1, s[%d:%d], s%d offen offset:%d%s" % (c0, c0 + 3, s.sX, s.sX + 3, s.sXo + g - 1, (i * ppg + pi) * 1024, s.xfl))
            out[last[pr] + (3 if s.NRB == 4 else 5)] = L
        k = s.side_fill[0]
        while k in out: k += 1
        out[k] = s.side_fill[1]
        return out
    def extra_vm(s): return s.xops
    def gen(s, a):
        NRB, sT, sWave, SK, KF = s.NRB, s.sT, s.sWave, s.SK, s.KF
        ppg = KF // 2
        vT = 20; vR2 = 16; vM = 32; vH = 36; vS = 52; vRc = 68
        NRC = (SK - 1) * 16
        sNt, sMt, sKk, sH, sM = 33, 34, 35, 48, 52
        s.sX, s.sXo = 56, 60
        KQ = 3584 // SK
        a_real = a
        if s.fused:
            PRE = []
            a = PRE.append
            t0, t1, vL16 = 4, 5, 29
            a("s_mov_b32 s70, s59")
            srd_off(a, 4, 40, WS_FL, 4096)
        else:
            t0, t1, vL16 = vT, vT + 1, 1
            s.header(a)
            a("s_load_dwordx4 s[36:39], s[0:1], 64")
            a("s_load_dwordx2 s[40:41], s[0:1], 88")
            a("v_lshrrev_b32 v1, 6, v0")
            a("v_and_b32 v0, 63, v0")
            a("v_readfirstlane_b32 s%d, v1" % sWave)
            a("v_lshlrev_b32 v1, 4, v0")
        assert SK == 2
        a("s_bfe_u32 s%d, s2, 0x10002" % sKk)
        a("s_bfe_u32 s%d, s2, 0x10001" % sT)
        a("s_lshl_b32 s%d, s%d, 3" % (sMt, sT))
        a("s_lshr_b32 s%d, s2, 5" % sT)
        a("s_add_u32 s%d, s%d, s%d" % (sMt, sMt, sT))
        a("s_and_b32 s%d, s2, 1" % sT)
        a("s_lshl_b32 s%d, s%d, 2" % (sNt, sT))
        a("s_bfe_u32 s%d, s2, 0x20003" % sT)
        a("s_add_u32 s%d, s%d, s%d" % (sNt, sNt, sT))
        a("s_mul_i32 s42, s%d, %d" % (sMt, 4 * NRB))
        a("s_mul_i32 s%d, s%d, %d" % (sT, sWave, NRB))
        a("s_add_u32 s42, s42, s%d" % sT)
        if s.fused:
            a("s_lshr_b32 s%d, s42, 2" % sT)
            a("s_lshl_b32 s%d, s%d, 7" % (sT, sT))
            a("s_lshl_b32 s71, s%d, 6" % sKk)
            a("s_add_u32 s%d, s%d, s71" % (sT, sT))
            a("v_and_b32 v10, 15, v0")
            a("v_lshlrev_b32 v10, 2, v10")
            a("v_add_u32 v10, s%d, v10" % sT)
            a("s_xor_b32 s71, s70, 64")
            a("v_mov_b32 v11, s71")
            a("v_cmp_gt_u32 vcc, 32, v0")
            a("s_mov_b32 s67, 0")
            a("s_nop 0")
            a("v_cndmask_b32 v11, v11, v10, vcc")
        a("s_mul_i32 s43, s42, %d" % (112 * 1024))
        a("s_mul_i32 s%d, s%d, %d" % (sT, sKk, KQ // 32 * 1024))
        a("s_add_u32 s43, s43, s%d" % sT)
        for i in range(NRB):
            a("s_add_u32 s%d, s43, %d" % (sT, i * 112 * 1024))
            a("v_add_u32 v%d, s%d, v%d" % (s.vA[i], sT, vL16))
        a("v_lshrrev_b32 v%d, 3, v0" % t0)
        a("v_lshlrev_b32 v%d, 13, v%d" % (t0, t0))
        a("v_and_b32 v%d, 7, v0" % t1)
        a("v_lshl_add_u32 v%d, v%d, 4, v%d" % (t0, t1, t0))
        a("s_lshl_b32 s%d, s%d, 7" % (sT, sKk))
        a("v_add_u32 v%d, s%d, v%d" % (s.vD[2], sT, t0))
        a("v_xor_b32 v%d, 128, v%d" % (s.vD[0], s.vD[2]))
        a("v_add_u32 v%d, %d, v%d" % (s.vD[1], 2048 - 1056, s.vD[0]))
        a("v_add_u32 v%d, %d, v%d" % (s.vD[3], 2048 - 1056, s.vD[2]))
        a("s_lshr_b32 s%d, s%d, 1" % (sT, sWave))
        a("s_mul_i32 s%d, s%d, 8448" % (s.sLdsW, sT))
        a("s_and_b32 s32, s%d, 1" % sWave)
        a("s_mul_i32 s%d, s32, 2112" % s.sDoff)
        a("s_add_u32 s%d, s%d, s%d" % (s.sLdsW, s.sLdsW, s.sDoff))
        a("s_mul_i32 s%d, s%d, %d" % (s.sDoff, sKk, KQ * 2048))
        a("s_lshl_b32 s32, s32, 12")
        a("s_add_u32 s%d, s%d, s32" % (s.sDoff, s.sDoff))
        a("s_lshl_b32 s32, s%d, 8" % sNt)
        a("s_add_u32 s%d, s%d, s32" % (s.sDoff, s.sDoff))
        for reg, d in ((27, 112), (30, 224)):
            a("s_mul_i32 s%d, s%d, %d" % (reg, sT, d * 2048))
            a("s_add_u32 s%d, s%d, s%d" % (reg, reg, s.sDoff))
        if not s.fused: a("s_waitcnt lgkmcnt(0)")
        srd_off(a, s.sW, 48 if s.fused else 36, 0, 3584 * 2048)
        srd_off(a, s.sA, 40, WS_ACT, 2048 * 3584 * 2)
        if s.fused:
            s.PRE = PRE
            a = a_real
            if s.pre_only: return
        if s.stamp is not None and not s.fused: stamp_mid(a, 3)
        n0 = (s.NST * 2 // 3) * s.NF * s.SUB
        big = n0 + 40
        s.xops = []
        for i in range(NRB):
            s.xops.append((n0, big, [[], "buffer_load_dwordx4 v[%d:%d], v1, s[%d:%d], s47 offen offset:%d%s" % (vS + 4 * i, vS + 4 * i + 3, s.sS, s.sS + 3, i * 1024, s.a_flags), ("ss", i), []]))
            for pi in range(ppg):
                r = vH + (i * ppg + pi) * 4
                s.xops.append((n0, big, [[], "buffer_load_dwordx4 v[%d:%d], v1, s[%d:%d], s45 offen offset:%d%s" % (r, r + 3, sH, sH + 3, pi * 1024, s.a_flags), ("h", i, pi),
                                         ["s_add_u32 s45, s45, 0x8000"] if pi == ppg - 1 else []]))
            s.xops.append((n0, big, [[], "buffer_load_dword v%d, v%d, s[%d:%d], 0 offen offset:%d%s" % (vM + i, vT + 10, sM, sM + 3, i * 64, s.a_flags), ("m", i), []]))
        if s.l2pf:
            assert SK == 2
            upc = 4 * s.NF * s.SUB
            for c in range(1, 7):
                for hh in range(s.l2pf):
                    s.xops.append((max(0, (c - s.l2d) * upc), -1, [[], "buffer_load_dword v31, v12, s[4:7], s70 offen offset:%d" % (hh * 64), ("L2", c, hh),
                                   ["s_add_u32 s70, s70, s71"] if hh == s.l2pf - 1 else []]))
        if s.fused:
            for cpt in (1, 2, 3):
                n = s.chk_steps[cpt]
                s.xops.append((n, n, [[], "buffer_load_dword v12, v%d, s[4:7], 0 offen sc1" % (11 if cpt == 3 else 10), ("fl", cpt), []]))
            n = s.chk_steps[0]
            s.xops.append((n, n, [[("wv", "allst", s.all_stores)], "buffer_store_dword v123, v124, s[4:7], s70 offen sc1", ("flst",), []]))
            if s.pub2 is not None:
                s.xops.append((s.pub2, s.pub2, [[("wv", "st3", [("st", 3, i) for i in range(4)])], "buffer_store_dword v125, v124, s[4:7], s70 offen sc1", ("flst2",), []]))
        def early(p): pass
        def late(p):
            if s.fused:
                p.i("v_lshlrev_b32 v1, 4, v0")
                p.i("v_mov_b32 v123, 4")
                p.i("v_mov_b32 v124, 0")
                p.i("v_mov_b32 v125, 2")
            if s.l2pf:
                p.i("s_lshr_b32 s67, s2, 3")
                p.i("s_lshl_b32 s67, s67, 2")
                p.i("s_add_u32 s67, s67, s%d" % sWave)
                p.i("v_lshlrev_b32 v12, 7, v0")
                p.i("s_and_b32 s70, s2, 3")
                p.i("s_lshl_b32 s70, s70, 5")
                p.i("s_add_u32 s70, s70, s67")
                p.i("s_mul_i32 s70, s70, %d" % (112 * 1024))
                p.i("s_mul_i32 s%d, s%d, %d" % (sT, sKk, 56 * 1024))
                p.i("s_add_u32 s70, s70, s%d" % sT)
                p.i("s_add_u32 s70, s70, 8192")
                p.i("s_mul_i32 s68, s%d, %d" % (sKk, 1792 * 2048))
                p.i("s_lshl_b32 s%d, s67, 13" % sT)
                p.i("s_add_u32 s68, s68, s%d" % sT)
                p.i("s_add_u32 s68, s68, %d" % (524288 - 32 * 8192))
                p.i("s_mov_b32 s71, 524288")
                p.i("s_cmp_lt_u32 s67, 32")
                p.i("s_cselect_b32 s70, s70, s68")
                p.i("s_cselect_b32 s71, 8192, s71")
                p.i("s_cselect_b32 s4, s%d, s%d" % (s.sA, s.sW))
                p.i("s_cselect_b32 s5, s%d, s%d" % (s.sA + 1, s.sW + 1))
                p.i("s_cselect_b32 s6, s%d, s%d" % (s.sA + 2, s.sW + 2))
                p.i("s_mov_b32 s7, 0x00020000")
                p.i("s_cmp_lt_u32 s67, 96")
                p.i("s_cselect_b32 s6, s6, 0")
            p.i("v_bfe_u32 v%d, v0, 2, 2" % vT)
            p.i("v_mul_u32_u24 v%d, 1056, v%d" % (vT, vT))
            p.i("v_lshrrev_b32 v%d, 4, v0" % (vT + 1))
            p.i("v_lshl_add_u32 v%d, v%d, 7, v%d" % (vT, vT + 1, vT))
            p.i("v_and_b32 v%d, 3, v0" % (vT + 1))
            p.i("v_lshl_add_u32 v%d, v%d, 3, v%d" % (s.vB[0], vT + 1, vT))
            p.i("v_lshrrev_b32 v%d, 5, v0" % vT)
            p.i("v_mul_u32_u24 v%d, %d, v%d" % (vT, 96 * 2048, vT))
            for k in range(4): p.i("v_add_u32 v%d, v%d, v%d" % (s.vD2[k], s.vD[k], vT))
            s.base_setup(p.i)
            srd_off(p.i, s.sS, 40, WS_SS, 2048 * 64)
            srd_off(p.i, s.sO, 50 if s.fused else 38, 0, 2048 * 2048)
            srd_off(p.i, sH, 40, WS_HC, 4 * MB)
            srd_off(p.i, sM, 40, WS_MT, 8192)
            srd_off(p.i, s.sX, 40, WS_XB, (SK - 1) * 4 * MB)
            p.i("s_lshl_b32 s47, s42, 10")
            p.i("s_lshl_b32 s45, s42, 5")
            p.i("s_lshl_b32 s%d, s%d, 2" % (sT, sNt))
            p.i("s_add_u32 s45, s45, s%d" % sT)
            p.i("s_mul_i32 s%d, s%d, %d" % (sT, sKk, ppg))
            p.i("s_add_u32 s45, s45, s%d" % sT)
            p.i("s_lshl_b32 s45, s45, 10")
            p.i("s_lshl_b32 s44, s%d, 12" % sWave)
            p.i("s_lshl_b32 s63, s2, 14")
            p.i("s_add_u32 s63, s63, s44")
            p.i("s_xor_b32 s%d, s63, %d" % (s.sXo, 4 << 14))
            p.i("v_and_b32 v%d, 15, v0" % vT)
            p.i("s_lshl_b32 s%d, s42, 4" % sT)
            p.i("v_add_u32 v%d, s%d, v%d" % (vT + 10, sT, vT))
            p.i("v_lshlrev_b32 v%d, 2, v%d" % (vT + 10, vT + 10))
            p.i("s_lshl_b32 s64, s%d, 12" % sWave)
            p.i("s_add_u32 s64, s64, %d" % (s.R * s.STB))
            p.i("v_lshlrev_b32 v%d, 7, v%d" % (vT + 1, vT))
            p.i("v_add_u32 v%d, s64, v%d" % (vT + 1, vT + 1))
            p.i("v_bfe_u32 v%d, v0, 4, 1" % (vT + 2))
            p.i("v_lshl_add_u32 v%d, v%d, 3, v%d" % (vT + 1, vT + 2, vT + 1))
            p.i("v_lshrrev_b32 v%d, 5, v0" % (vT + 2))
            p.i("v_and_b32 v%d, 7, v0" % (vT + 3))
            p.i("v_xor_b32 v%d, v%d, v%d" % (vT + 2, vT + 2, vT + 3))
            for j in range(4):
                p.i("v_xor_b32 v%d, %d, v%d" % (vT + 3, 2 * j, vT + 2))
                p.i("v_lshl_add_u32 v%d, v%d, 4, v%d" % (vT + 4 + j, vT + 3, vT + 1))
            p.i("v_add_u32 v%d, s64, v1" % (vT + 8))
            p.i("v_lshrrev_b32 v%d, 3, v0" % (vT + 1))
            p.i("v_and_b32 v%d, 7, v0" % (vT + 2))
            p.i("v_xor_b32 v%d, v%d, v%d" % (vT + 2, vT + 2, vT + 1))
            p.i("v_lshlrev_b32 v%d, 14, v%d" % (vT + 1, vT + 1))
            p.i("v_lshl_add_u32 v%d, v%d, 4, v%d" % (vT, vT + 2, vT + 1))
            p.i("s_lshr_b32 s44, s42, 4")
            p.i("s_and_b32 s%d, s42, 15" % sT)
            p.i("s_lshl_b32 s%d, s%d, 7" % (sT, sT))
            p.i("s_add_u32 s44, s44, s%d" % sT)
            p.i("s_lshl_b32 s44, s44, 11")
            p.i("s_lshl_b32 s%d, s%d, 8" % (sT, sNt))
            p.i("s_add_u32 s44, s44, s%d" % sT)
            p.i("s_mul_i32 s%d, s%d, %d" % (sT, sKk, KF * 32))
            p.i("s_add_u32 s44, s44, s%d" % sT)
            p.i("s_mov_b32 s66, 0")
        vP = 84
        NU = s.NST * s.SUB * s.NF
        def rc_text(k):
            r = vRc + k * 4
            return "buffer_load_dwordx4 v[%d:%d], v1, s[%d:%d], s63 offen offset:%d%s" % (r, r + 3, s.sX, s.sX + 3, k * 1024, s.xfl)
        for k in range(4):
            n = NU - s.rc_ahead + k
            s.xops.append((n, n, [[], rc_text(k), ("rc", k), []]))
        F = [("wv", "side", [("ss", i) for i in range(NRB)] + [("h", i, pi) for i in range(NRB) for pi in range(ppg)] + [("m", i) for i in range(NRB)])]
        for i in range(NRB):
            b = vS + 4 * i
            F.append("v_add_f32 v%d, v%d, v%d" % (b, b, b + 1))
            F.append("v_add_f32 v%d, v%d, v%d" % (b + 2, b + 2, b + 3))
            F.append("v_add_f32 v%d, v%d, v%d" % (b, b, b + 2))
            reduce_g4(F.append, b, b + 1)
            F.append("v_mov_b32 v%d, 0x%x" % (b + 1, f2u(1e-5)))
            F.append("v_fmac_f32 v%d, 0x%x, v%d" % (b + 1, f2u(1.0 / 1024), b))
            F.append("v_rcp_f32 v%d, v%d" % (vR2 + i, b + 1))
        for i in range(NRB):
            for j in range(KF):
                h = vH + (i * ppg + j // 2) * 4 + 2 * (j % 2)
                t = vP + (i * KF + j) * 4
                F.append("v_lshlrev_b32 v%d, 16, v%d" % (t, h))
                F.append("v_and_b32 v%d, 0xffff0000, v%d" % (t + 1, h))
                F.append("v_lshlrev_b32 v%d, 16, v%d" % (t + 2, h + 1))
                F.append("v_and_b32 v%d, 0xffff0000, v%d" % (t + 3, h + 1))
                for r in range(4): F.append("v_add_f32 v%d, v%d, v%d" % (t + r, t + r, vM + i))
        s.side_fill = (NU - 56, F)
        def tail(e):
            def recv():
                for k in range(4): e.vm(rc_text(k), ("rc2", k))
            for i in range(NRB):
                for j in range(KF):
                    c = s.acc(j, i)
                    t = vP + (i * KF + j) * 4
                    for r in range(4): e.i("v_fmac_f32 v%d, v%d, v%d" % (t + r, c + r, vR2 + i))
            e.i("s_branch %s_chk" % s.name)
            e.label("%s_retry" % s.name)
            recv()
            e.label("%s_chk" % s.name)
            e.i("s_waitcnt vmcnt(0)")
            e.i("v_max_u32 v%d, v%d, v%d" % (vT + 2, vRc, vRc + 1))
            e.i("v_max_u32 v%d, v%d, v%d" % (vT + 3, vRc + 2, vRc + 3))
            for k in range(4, NRC, 4):
                e.i("v_max3_u32 v%d, v%d, v%d, v%d" % (vT + 2, vT + 2, vRc + k, vRc + k + 1))
                e.i("v_max3_u32 v%d, v%d, v%d, v%d" % (vT + 3, vT + 3, vRc + k + 2, vRc + k + 3))
            e.i("v_max_u32 v%d, v%d, v%d" % (vT + 2, vT + 2, vT + 3))
            e.i("v_cmp_eq_u32 vcc, -1, v%d" % (vT + 2))
            e.i("s_add_u32 s66, s66, 1")
            e.i("s_cmp_lt_u32 s66, 0x20000")
            e.i("s_cselect_b64 s[68:69], vcc, 0")
            e.i("s_cmp_lg_u64 s[68:69], 0")
            e.i("s_cbranch_scc1 %s_retry" % s.name)
            if s.stamp is not None: e.i("s_memtime s[%d:%d]" % (SB + 28, SB + 29))
            for i in range(NRB):
                for j in range(KF):
                    r = vRc + (i * ppg + j // 2) * 4 + 2 * (j % 2)
                    t = vP + (i * KF + j) * 4
                    u = vH + 4 * (j % 2)
                    e.i("v_lshlrev_b32 v%d, 16, v%d" % (u, r))
                    e.i("v_and_b32 v%d, 0xffff0000, v%d" % (u + 1, r))
                    e.i("v_lshlrev_b32 v%d, 16, v%d" % (u + 2, r + 1))
                    e.i("v_and_b32 v%d, 0xffff0000, v%d" % (u + 3, r + 1))
                    for q in range(4): e.i("v_fmac_f32 v%d, v%d, v%d" % (t + q, u + q, vR2 + i))
                    e.i("v_cvt_pk_bf16_f32 v%d, v%d, v%d" % (t, t, t + 1))
                    e.i("v_cvt_pk_bf16_f32 v%d, v%d, v%d" % (t + 1, t + 2, t + 3))
                    e.i("ds_write_b64 v%d, v[%d:%d] offset:%d" % (vT + 4 + j, t, t + 1, i * 2048))
            e.i("s_waitcnt lgkmcnt(0)")
            for k in range(4):
                e.i("ds_read_b128 v[%d:%d], v%d offset:%d" % (vRc + 4 * k, vRc + 4 * k + 3, vT + 8, k * 1024))
            for k in range(4):
                e.i("s_waitcnt lgkmcnt(%d)" % (3 - k))
                e.vm("buffer_store_dwordx4 v[%d:%d], v%d, s[%d:%d], s44 offen" % (vRc + 4 * k, vRc + 4 * k + 3, vT, s.sO, s.sO + 3))
                if k < 3: e.i("s_add_u32 s44, s44, %d" % (8 * 16384))
        s.tail = tail
        s.emit_main(a, early, late)
        s.nagpr = s.aX
        if not s.fused: s.footer(a, s.aX, s.R * s.STB + 16384)
    def prof(s, N): return [N * k // 7 for k in range(1, 7)]

class K2H(Gemm2):
    def __init__(s, PD=3, xneed=12, **kw):
        kw.setdefault("npro", 12)
        kw.setdefault("rate", 0.7)
        super().__init__("k2_kernel", NRB=1, NF=4, SUB=4, NST=4, STB=16896, R=4, AR=4, PD=PD, ndma=4, VACC=64, **kw)
        s.xneed = xneed
        s.aM = s.aX
        s.vAccM = 56
        s.vMl = 31
        s.vJunk = 30
        s.dt = 'f16'
        s.LM = s.R * s.STB
        s.LX = s.LM + 8192
    def rd_off(s, sub, j, h):
        return (sub // 2) * 8448 + (sub % 2) * 512 + h * 256 + j * 32
    def dma_text(s, st, n):
        pre = ["s_add_u32 m0, s%d, %d" % (s.sLdsW, (st % s.R) * s.STB + 32 * n)]
        return pre, "buffer_load_dwordx4 v1, s[%d:%d], s%d offen offset:%d lds" % (s.sW, s.sW + 3, s.sDoff, n * 1024)
    def dma_step(s, st): return 16384
    def rdm(s, p, q):
        if q < 16:
            r = s.aM + 4 * (q % 4)
            p.ds("ds_read_b128 a[%d:%d], v%d offset:%d" % (r, r + 3, s.vMl, q * 64), ("M", q))
    def post_sync0(s, p):
        p.wv("vmw", [("vm", 0), ("vm", 1)])
        for q in range(3): s.rdm(p, q)
    def extra_unit(s, p, q):
        p.wl(("M", q), [("M", q)])
        r = s.aM + 4 * (q % 4)
        c = s.vAccM
        src = "0" if q == 0 else "v[%d:%d]" % (c, c + 3)
        p.i("v_mfma_f32_16x16x32_f16 v[%d:%d], a[%d:%d], a[%d:%d], %s" % (c, c + 3, r, r + 3, s.aA(q, 0), s.aA(q, 0) + 3, src))
        s.rdm(p, q + 3)
    def extra_vm(s): return s.xops
    def gen(s, a):
        sT, sWave = s.sT, s.sWave
        vT = 20; vXM = [18, 19]; vX = 32; vXa = 4; vXr = 8
        vHo, vSo, vRo = 16, 17, 3
        sNt, sT1, sX, sM, sXM, sVM = 33, 34, 48, 52, 56, 60
        s.header(a)
        a("s_load_dwordx2 s[36:37], s[0:1], 0")
        a("s_load_dwordx2 s[40:41], s[0:1], 88")
        a("v_lshrrev_b32 v1, 6, v0")
        a("v_and_b32 v0, 63, v0")
        a("v_readfirstlane_b32 s%d, v1" % sWave)
        a("s_and_b32 s%d, s2, 7" % sT1)
        a("s_bfe_u32 s%d, s2, 0x30003" % sNt)
        a("s_lshr_b32 s%d, s2, 6" % sT)
        a("s_lshl_b32 s42, s%d, 4" % sT1)
        a("s_lshl_b32 s%d, s%d, 2" % (sT, sT))
        a("s_add_u32 s42, s42, s%d" % sT)
        a("s_add_u32 s42, s42, s%d" % sWave)
        a("s_lshl_b32 s43, s42, 14")
        a("v_lshlrev_b32 v1, 4, v0")
        a("v_add_u32 v%d, s43, v1" % s.vA[0])
        a("s_mul_i32 s%d, s%d, 4224" % (s.sLdsW, sWave))
        a("s_lshl_b32 s%d, s%d, 3" % (sT, sT1))
        a("s_add_u32 s%d, s%d, s%d" % (sT, sT, sNt))
        a("s_lshl_b32 s%d, s%d, 16" % (s.sDoff, sT))
        a("s_lshl_b32 s47, s%d, 10" % sT)
        a("s_add_u32 s47, s47, %d" % (8192 - 1024))
        a("s_lshl_b32 s%d, s%d, 12" % (sT, sWave))
        a("s_add_u32 s%d, s%d, s%d" % (s.sDoff, s.sDoff, sT))
        a("s_lshl_b32 s45, s%d, 11" % sWave)
        a("s_add_u32 s45, s45, %d" % s.LM)
        a("s_lshl_b32 s46, s%d, 10" % sT1)
        a("s_waitcnt lgkmcnt(0)")
        srd_off(a, s.sW, 40, WS_V, 4 * MB)
        srd_off(a, s.sA, 40, WS_WSF, 2 * MB)
        srd_off(a, sVM, 40, WS_VM, 8192 + 65536)
        if s.stamp is not None and not s.fused: stamp_mid(a, 3)
        s.xops = []
        for k in range(4):
            s.xops.append((0, s.xneed, [["s_add_u32 m0, s64, %d" % (k * 1024)],
                           "buffer_load_dwordx4 v%d, s[%d:%d], 0 offen lds" % (vXa + k, sX, sX + 3), ("x", k), []]))
        s.xops.append((0, s.xneed, [[], "buffer_load_dword v%d, v%d, s[%d:%d], 0 offen" % (vXM[0], vT + 3, sXM, sXM + 3), ("xm", 0), []]))
        s.xops.append((0, s.xneed, [[], "buffer_load_dword v%d, v%d, s[%d:%d], 0 offen" % (vXM[1], vRo, sXM, sXM + 3), ("xm", 1), []]))
        def early(p):
            p.i("s_mov_b32 m0, s45")
            p.i("s_nop 0")
            p.vm("buffer_load_dwordx4 v1, s[%d:%d], s46 offen lds" % (sVM, sVM + 3), ("vm", 0))
            p.vm("buffer_load_dwordx4 v1, s[%d:%d], s47 offen offset:1024 lds" % (sVM, sVM + 3), ("vm", 1))
        def late(p):
            I = p.i
            I("v_bfe_u32 v%d, v0, 2, 3" % vT)
            I("v_mul_u32_u24 v%d, 1056, v%d" % (vT, vT))
            I("v_lshrrev_b32 v%d, 5, v0" % (vT + 1))
            I("v_lshl_add_u32 v%d, v%d, 7, v%d" % (vT, vT + 1, vT))
            I("v_and_b32 v%d, 3, v0" % (vT + 1))
            I("v_lshl_add_u32 v%d, v%d, 3, v%d" % (s.vB[0], vT + 1, vT))
            s.base_setup(I)
            I("v_lshrrev_b32 v%d, 4, v0" % vT)
            I("v_lshlrev_b32 v%d, 4, v%d" % (vT, vT))
            I("v_and_b32 v%d, 1, v0" % (vT + 1))
            I("v_lshl_add_u32 v%d, v%d, 10, v%d" % (vT, vT + 1, vT))
            I("v_add_u32 v%d, s45, v%d" % (s.vMl, vT))
            I("v_and_b32 v%d, 15, v0" % vT)
            I("v_lshlrev_b32 v%d, 4, v%d" % (vT + 2, vT))
            I("s_lshl_b32 s%d, s42, 4" % sT)
            I("v_add_u32 v%d, s%d, v%d" % (vT + 3, sT, vT))
            I("v_lshlrev_b32 v%d, 2, v%d" % (vT + 3, vT + 3))
            I("s_and_b32 s65, s42, 15")
            I("s_lshl_b32 s65, s65, 7")
            I("s_add_u32 s65, s65, s%d" % sT1)
            I("s_sub_u32 s66, 2048, s65")
            I("v_lshlrev_b32 v%d, 3, v%d" % (vT + 4, vT))
            I("v_sub_u32 v%d, s66, v%d" % (vT + 4, vT + 4))
            I("v_and_b32 v%d, 0x7ff, v%d" % (vT + 4, vT + 4))
            I("v_and_b32 v%d, 7, v%d" % (vT + 5, vT + 4))
            I("v_lshrrev_b32 v%d, 3, v%d" % (vT + 4, vT + 4))
            I("v_lshl_add_u32 v%d, v%d, 8, v%d" % (vT + 4, vT + 5, vT + 4))
            I("v_lshlrev_b32 v%d, 2, v%d" % (vRo, vT + 4))
            I("v_lshrrev_b32 v%d, 4, v%d" % (vT + 5, vT + 4))
            I("v_and_b32 v%d, 15, v%d" % (vT + 4, vT + 4))
            I("v_lshlrev_b32 v%d, 4, v%d" % (vT + 4, vT + 4))
            I("v_lshl_add_u32 v%d, v%d, 10, v%d" % (vSo, vT + 5, vT + 4))
            I("v_lshl_add_u32 v%d, v%d, 15, v%d" % (vHo, vT + 5, vT + 4))
            I("v_lshrrev_b32 v%d, 4, v0" % (vT + 5))
            I("v_xor_b32 v%d, 3, v%d" % (vT + 5, vT + 5))
            I("v_lshl_add_u32 v%d, v%d, 8, v%d" % (vHo, vT + 5, vHo))
            I("v_lshrrev_b32 v%d, 4, v0" % (vT + 4))
            I("v_and_b32 v%d, 7, v0" % (vT + 5))
            I("v_xor_b32 v%d, v%d, v%d" % (vT + 4, vT + 4, vT + 5))
            I("v_lshlrev_b32 v%d, 4, v%d" % (vT + 4, vT + 4))
            I("v_and_b32 v%d, 0x38, v0" % (vT + 5))
            I("s_lshl_b32 s67, s%d, 7" % sNt)
            I("s_sub_u32 s68, %d, s67" % (15 * 128))
            for k in range(4):
                if k < 2: I("v_add_u32 v%d, s65, v%d" % (vT + 6, vT + 5))
                else: I("v_sub_u32 v%d, s66, v%d" % (vT + 6, vT + 5))
                if k % 2:
                    I("v_add_u32 v%d, %d, v%d" % (vT + 6, 64 if k < 2 else -64, vT + 6))
                I("v_and_b32 v%d, 0x7ff, v%d" % (vT + 6, vT + 6))
                I("v_lshl_add_u32 v%d, v%d, 11, v%d" % (vT + 6, vT + 6, vT + 4))
                if k % 2: I("v_xor_b32 v%d, 64, v%d" % (vT + 6, vT + 6))
                I("v_add_u32 v%d, s%d, v%d" % (vXa + k, 67 if k < 2 else 68, vT + 6))
            I("s_lshl_b32 s64, s%d, 12" % sWave)
            I("s_add_u32 s64, s64, %d" % s.LX)
            I("v_lshlrev_b32 v%d, 7, v%d" % (vT + 1, vT))
            I("v_add_u32 v%d, s64, v%d" % (vT + 1, vT + 1))
            I("v_bfe_u32 v%d, v0, 4, 1" % (vT + 4))
            I("v_lshl_add_u32 v%d, v%d, 3, v%d" % (vT + 1, vT + 4, vT + 1))
            I("v_lshrrev_b32 v%d, 5, v0" % (vT + 4))
            I("v_lshrrev_b32 v%d, 1, v%d" % (vT + 5, vT))
            I("v_xor_b32 v%d, v%d, v%d" % (vT + 4, vT + 4, vT + 5))
            for j in range(4):
                I("v_xor_b32 v%d, %d, v%d" % (vT + 5, 2 * j, vT + 4))
                I("v_lshl_add_u32 v%d, v%d, 4, v%d" % (vXr + j, vT + 5, vT + 1))
            I("v_add_u32 v12, 16, v0")
            I("v_and_b32 v12, 63, v12")
            I("v_lshlrev_b32 v12, 2, v12")
            srd_off(I, s.sS, 40, WS_SS, 2048 * 64)
            srd_off(I, s.sO, 40, WS_HC, 4 * MB)
            srd_off(I, sX, 36, 0, 2048 * 2048)
            srd_off(I, sM, 40, WS_MT, 8192)
            srd_off(I, sXM, 40, WS_XM, 8192)
            I("s_lshl_b32 s44, s42, 15")
            I("s_lshl_b32 s%d, s%d, 11" % (sT, sNt))
            I("s_add_u32 s44, s44, s%d" % sT)
            I("s_sub_u32 s69, %d, s%d" % (15 * 2048, sT))
            for dst, src in ((45, sNt), (70, 71)):
                if dst == 70: I("s_sub_u32 s71, 15, s%d" % sNt)
                I("s_lshr_b32 s%d, s%d, 2" % (sT, src))
                I("s_lshl_b32 s%d, s%d, 8" % (dst, sT))
                I("s_and_b32 s%d, s%d, 3" % (sT, src))
                I("s_lshl_b32 s%d, s%d, 2" % (sT, sT))
                I("s_add_u32 s%d, s%d, s%d" % (dst, dst, sT))
            I("s_lshl_b32 s%d, s42, 10" % sT)
            I("s_add_u32 s45, s45, s%d" % sT)
            I("v_cmp_lt_u32 s[38:39], 47, v0")
            if s.fused:
                I("s_lshr_b32 s35, s42, 2")
                I("s_lshl_b32 s35, s35, 3")
                I("s_add_u32 s35, s35, s%d" % sNt)
                I("s_lshl_b32 s35, s35, 2")
                I("s_add_u32 s35, s35, s%d" % sWave)
                I("s_lshl_b32 s35, s35, 2")
                I("s_add_u32 s35, s35, 4096")
        def tail(e):
            R_ = 48
            for j in range(4):
                e.ds("ds_bpermute_b32 v%d, v12, v%d" % (R_ + j, s.acc(j, 0)), ("bp", j))
            e.wv("side", [("x", k) for k in range(4)] + [("xm", i) for i in range(2)])
            for j in range(4):
                e.ds("ds_read_b64 v[%d:%d], v%d" % (vX + 2 * j, vX + 2 * j + 1, vXr + j), ("xr", 0, j))
            for j in range(4):
                e.i("v_xor_b32 v%d, 24, v%d" % (vXr + j, vXr + j))
                e.ds("ds_read_b64 v[%d:%d], v%d offset:2048" % (vX + 8 + 2 * j, vX + 8 + 2 * j + 1, vXr + j), ("xr", 1, j))
            for i in range(2):
                e.i("v_add_f32 v%d, v%d, v%d" % (vXM[i], vXM[i], s.vAccM))
            e.i("v_mov_b32 v%d, v%d" % (R_ + 4, s.vAccM + 1))
            e.wl("bpw", [("bp", j) for j in range(4)])
            for j in range(4):
                e.i("v_cndmask_b32 v%d, v%d, v%d, s[38:39]" % (R_ + j, R_ + j, R_ + j + 1))
            for i in range(2):
                m = vXM[i]
                ssr = 60 + 2 * i
                for j in range(4):
                    c = s.acc(j, 0) if i == 0 else s.acc(3 - j, 0)
                    src = [c, c + 1, c + 2, c + 3] if i == 0 else [R_ + 3 - j, c + 3, c + 2, c + 1]
                    x = vX + (i * 4 + j) * 2
                    t = vT + 4
                    e.wl(("xr", i, j), [("xr", i, j)])
                    e.i("v_lshlrev_b32 v%d, 16, v%d" % (t, x))
                    e.i("v_and_b32 v%d, 0xffff0000, v%d" % (t + 1, x))
                    e.i("v_lshlrev_b32 v%d, 16, v%d" % (t + 2, x + 1))
                    e.i("v_and_b32 v%d, 0xffff0000, v%d" % (t + 3, x + 1))
                    for r in range(4): e.i("v_sub_f32 v%d, v%d, v%d" % (t + r, t + r, m))
                    for r in range(4): e.i("v_add_f32 v%d, v%d, v%d" % (t + r, t + r, src[r]))
                    e.i("v_cvt_pk_bf16_f32 v%d, v%d, v%d" % (x, t, t + 1))
                    e.i("v_cvt_pk_bf16_f32 v%d, v%d, v%d" % (x + 1, t + 2, t + 3))
                    if j % 2 == 1:
                        e.vm("buffer_store_dwordx4 v[%d:%d], v%d, s[%d:%d], s%d offen offset:%d%s" % (x - 2, x + 1, 1 if i == 0 else vHo, s.sO, s.sO + 3, 44 if i == 0 else 69, (j // 2) * 1024, s.st_flags))
                    for r in range(4):
                        if j == 0 and r == 0: e.i("v_mul_f32 v%d, v%d, v%d" % (ssr, t, t))
                        else: e.i("v_fmac_f32 v%d, v%d, v%d" % (ssr, t + r, t + r))
                reduce_g4(e.i, ssr, ssr + 1)
                e.vm("buffer_store_dword v%d, v%d, s[%d:%d], s%d offen%s" % (ssr, vT + 2 if i == 0 else vSo, s.sS, s.sS + 3, 45 if i == 0 else 70, s.st_flags))
            e.i("s_cmp_lg_u32 s%d, 0" % sNt)
            e.i("s_cbranch_scc1 %s_nomt" % s.name)
            e.vm("buffer_store_dword v%d, v%d, s[%d:%d], 0 offen%s" % (vXM[0], vT + 3, sM, sM + 3, s.st_flags))
            e.label("%s_nomt" % s.name)
        s.tail = tail
        s.emit_main(a, early, late)
        if not s.fused: s.footer(a, s.aM + 16, s.LX + 16384)

def gen_g34(a, stamp, c3, c4, c2=None):
    c4 = dict(c4); c3 = dict(c3)
    chk = c4.pop("chk_steps", None) or {0: 24, 1: 76, 2: 180, 3: 284}
    order = c3.pop("order", (0, 1, 6, 2, 3, 4, 5))
    flag_after = c3.pop("flag_after", {6: 1})
    pub2 = c4.pop("pub2", 0)
    backoff = c4.pop("backoff", 0)
    alt = c4.pop("alt", False)
    pre_at = c3.pop("pre_at", 368)
    fl0 = c3.pop("fl0", 440)
    g3 = G3(stamp=stamp, **c3); g4 = G4S(stamp=stamp, **c4)
    g3.name = g4.name = "g34_kernel"
    g3.fused = g4.fused = True
    g3.handover = True
    g3.pair_order = list(order); g3.flag_after = flag_after
    g3.fill_flags = " sc1"
    g4.a_flags = " sc1"
    g4.selfpf = False
    g4.chk_steps = chk
    g4.alt_path = alt
    g4.pub2 = pub2
    g4.backoff = backoff
    g4.all_stores = [("st", j, i) for j in (1, 3, 5, 6) for i in range(4)]
    g3.prof = lambda N: []
    g3.m_prof = 4
    g4.m_start, g4.m_end, g4.m_prof = 5, 6, 7
    g4.prof = lambda N: [N // 4, N // 2, 3 * N // 4]
    g4.pre_only = True
    g4.gen(a)
    if c2 is not None:
        c2 = dict(c2); c2["st_flags"] = " sc1"
        k2 = K2H(stamp=stamp, **c2)
        k2.name = "g34_kernel"; k2.fused = True
        k2.stamp_keep = stamp
        k2.prof = lambda N: []
        k2.m_start, k2.m_end = 9, 9
        a.label("k2_kernel") if False else None
        k2.gen(a)
        g3.after_k2 = True
        g3.a_flags = " sc1"
        g4.prof = lambda N: [N // 3, 2 * N // 3]
    g3.extra_fill = (pre_at, g4.PRE)
    g3.late_x = [(fl0, fl0, [[], "buffer_load_dword v12, v10, s[4:7], 0 offen sc1", ("fl", 0), []])]
    g3.gen(a)
    assert not any(x in g3.leftover for x in g4.PRE[-3:]), "pre-setup must finish inside the g3 loop"
    assert g3.last_vm_step < pre_at, g3.last_vm_step
    assert "v_mov_b32 v28, 1" not in g3.leftover, "first progress flag must be published before the first flag check"
    i1 = [k for k, it in enumerate(g3.stream.items) if it[1] == "v_mov_b32 v28, 1"][0]
    assert any(it[0] == 'vm' and "s59 offen sc1" in it[1] for it in g3.stream.items[i1:]), "flag store not inside g3 loop"
    g4.pre_only = False
    g4.inherited = g3.leftover
    g4.prev_streams = [g3.stream]
    g4.gen(a)
    gen_g34.info = {c_: g4.issue_step.get(("A", 16 * c_, 0)) for c_ in (1, 2, 3)}
    if stamp is not None: stamp_end(a, 40, stamp, g4.sWave)
    a("s_branch g34_kernel_end")
    g4.slow_paths(a)
    a.label("g34_kernel_end")
    a.end_kernel("g34_kernel", 256, max(g3.nagpr, g4.nagpr), 102)
    a.launch("g34_kernel", 256, 256, max(g3.R * g3.STB, g4.R * g4.STB + 16384))
```

```python
import sys
from common import *
from gemm2 import *
import k1b, k1c
HEADER = """pre-LN FNet mixing + pre-LN SwiGLU FFN, gfx950. 4 launches:
k1: LayerNorm(x) + 1024-pt DFT along hidden (2-stage 32x32 MFMA factorisation) + radix-8 step of the sequence DFT
k2: remaining 256-pt part of the sequence DFT as GEMM with the input DFT matrices, residual, row-centering, row sum-of-squares
g3: gate/up GEMM + SiLU*up (LayerNorm scale folded in)
g4: down GEMM + residual"""
def build(stamp=False, c3={}, c4={}, c2={}, c1={}, split=True, herm=True, fuse=1):
    a = Asm()
    (k1c if herm else k1b).gen_k1(a, stamp=0 if stamp else None, **c1)
    if fuse < 2: (K2H if herm else K2)(stamp=1 if stamp else None, **c2).gen(a)
    c3 = dict(c3); c3.setdefault('fill', 4 * (c4.get('SK', 2) - 1) if split else 0)
    if fuse:
        gen_g34(a, (2 if fuse < 2 else 1) if stamp else None, c3, c4, c2 if fuse == 2 else None)
    else:
        G3(stamp=2 if stamp else None, **c3).gen(a)
        (G4S if split else G4)(stamp=3 if stamp else None, **c4).gen(a)
    a.label('code_end')
    return a.text(HEADER)
if __name__ == "__main__":
    out = sys.argv[1] if len(sys.argv) > 1 else "sequential_preLN__spectral_fnet__swiglu_ffn__prompt.s"
    open(out, "w").write(build())
```

```python
from common import *
import math

def gen_k1(a, stamp=None, prefetch=1, codepf=True, selfpf=True, st_flags=" sc1", early_touch=True, wsf_flags='', wsload=False, tpos=3, prows=4, wsf=True):
    name = "k1_kernel"
    ZROW = 2304
    LX = 8 * ZROW
    LX0 = LX + 8 * 2048
    LDS = LX0 + 64
    sWave, sT = 24, 31
    sX, sV, sVM, sXM, sWs, sWF = 8, 12, 16, 20, 44, 48
    vRaw, vF, vWr, vWi, vWn, vTr, vTi, vXop, vD, vU = 4, 16, 32, 40, 48, 56, 72, 88, 96, 128
    vT = 144
    vJ = 160
    vB_ = 164
    a.begin_kernel(name)
    a("s_cmp_ge_u32 s2, 256")
    a("s_cbranch_scc1 %s_end" % name)
    if stamp is not None: stamp_begin(a)
    a("s_load_dwordx2 s[36:37], s[0:1], 0")
    a("s_load_dwordx4 s[52:55], s[0:1], 8")
    a("s_load_dwordx2 s[40:41], s[0:1], 88")
    a("s_load_dwordx4 s[56:59], s[0:1], 48")
    if selfpf: self_code_touch(a, name, "%s_end" % name, vJ + 1, vJ, 4, 3)
    a("v_lshrrev_b32 v1, 6, v0")
    a("v_and_b32 v0, 63, v0")
    a("v_readfirstlane_b32 s%d, v1" % sWave)
    a("v_lshlrev_b32 v1, 4, v0")
    a("s_lshl_b32 s25, s%d, 8" % sWave)
    a("s_add_u32 s25, s25, s2")
    a("s_lshl_b32 s26, s25, 11")
    a("s_and_b32 s27, s2, 7")
    a("s_lshl_b32 s27, s27, 8")
    a("s_and_b32 s28, s2, 0xf8")
    a("s_add_u32 s27, s27, s28")
    a("s_add_u32 s27, s27, s%d" % sWave)
    a("s_lshr_b32 s28, s27, 4")
    a("s_lshl_b32 s28, s28, 4")
    a("v_and_b32 v2, 15, v0")
    a("v_add_u32 v%d, s28, v2" % vT)
    a("v_lshrrev_b32 v%d, 8, v%d" % (vT + 1, vT))
    a("v_and_b32 v%d, 255, v%d" % (vT, vT))
    a("v_lshl_add_u32 v%d, v%d, 3, v%d" % (vT, vT, vT + 1))
    a("v_lshrrev_b32 v%d, 4, v0" % (vT + 1))
    if wsload:
        a("v_lshlrev_b32 v%d, 12, v%d" % (vT, vT))
        a("v_lshl_add_u32 v%d, v%d, 3, v%d" % (vT, vT + 1, vT))
        a("s_and_b32 s28, s27, 7")
        a("s_lshl_b32 s28, s28, 6")
    a("s_waitcnt lgkmcnt(0)")
    srd_off(a, sX, 36, 0, 2048 * 2048)
    a("buffer_load_dwordx4 v[%d:%d], v1, s[%d:%d], s26 offen" % (vRaw, vRaw + 3, sX, sX + 3))
    a("buffer_load_dwordx4 v[%d:%d], v1, s[%d:%d], s26 offen offset:1024" % (vRaw + 4, vRaw + 7, sX, sX + 3))
    if wsload:
        a("s_bitcmp1_b32 s27, 3")
        a("s_cselect_b32 s%d, s54, s52" % sWs)
        a("s_cselect_b32 s%d, s55, s53" % (sWs + 1))
        a("s_and_b32 s%d, s%d, 0xffff" % (sWs + 1, sWs + 1))
        a("s_mov_b32 s%d, %d" % (sWs + 2, 2048 * 4096))
        a("s_mov_b32 s%d, 0x00020000" % (sWs + 3))
        a("buffer_load_dwordx2 v[12:13], v%d, s[%d:%d], s28 offen" % (vT, sWs, sWs + 3))
        a("buffer_load_dwordx2 v[14:15], v%d, s[%d:%d], s28 offen offset:32" % (vT, sWs, sWs + 3))
    def touches():
        a("s_lshr_b32 s35, s2, 3")
        a("s_lshl_b32 s35, s35, 3")
        a("s_add_u32 s35, s35, s%d" % sWave)
        if prefetch:
            a("s_bitcmp1_b32 s35, 7")
            a("s_cselect_b32 s64, s58, s56")
            a("s_cselect_b32 s65, s59, s57")
            a("s_and_b32 s65, s65, 0xffff")
            a("s_mov_b32 s66, %d" % (1024 * 7168))
            a("s_mov_b32 s67, 0x00020000")
            a("s_and_b32 s60, s35, 127")
            a("s_mul_i32 s60, s60, %d" % (prows * 7168))
            a("s_and_b32 s61, s2, 7")
            a("s_mul_i32 s61, s61, 896")
            a("s_add_u32 s60, s60, s61")
            a("v_mul_u32_u24 v%d, 9363, v0" % (vJ + 2))
            a("v_lshrrev_b32 v%d, 16, v%d" % (vJ + 2, vJ + 2))
            a("v_mul_u32_u24 v%d, %d, v%d" % (vJ + 2, 7168 - 7 * 128, vJ + 2))
            a("v_lshl_add_u32 v%d, v0, 7, v%d" % (vJ + 2, vJ + 2))
            a("v_cmp_lt_u32 vcc, %d, v0" % (7 * prows - 1))
            a("v_mov_b32 v%d, 0x40000000" % (vJ + 3))
            a("s_nop 0")
            a("v_cndmask_b32 v%d, v%d, v%d, vcc" % (vJ + 2, vJ + 2, vJ + 3))
        if codepf:
            a("s_getpc_b64 s[62:63]")
            a.label("k1_pc2")
            a("s_add_u32 s62, s62, k1_kernel_end - k1_pc2")
            a("s_addc_u32 s63, s63, 0")
            a("s_min_u32 s61, s35, (code_end - k1_kernel_end) / 8192 - 1")
            a("s_lshl_b32 s61, s61, 13")
            a("v_lshlrev_b32 v%d, 7, v0" % (vJ + 3))
            a("v_add_u32 v%d, s61, v%d" % (vJ + 3, vJ + 3))
        n = 0
        if codepf:
            a("global_load_dword v%d, v%d, s[62:63]" % (vJ, vJ + 3)); n += 1
        if prefetch:
            a("buffer_load_dword v%d, v%d, s[64:67], s60 offen" % (vJ, vJ + 2)); n += 1
        return n
    nt_ = [0, 0]
    if tpos == 0: nt_[0] = touches()
    srd_off(a, sV, 40, WS_V, 4 * MB)
    srd_off(a, sVM, 40, WS_VM, 8192 + 65536)
    srd_off(a, sXM, 40, WS_XM, 8192)
    srd_off(a, sWF, 40, WS_WSF, 2 * MB)
    if wsf:
        a("v_cvt_f32_u32 v%d, v%d" % (vT, vT))
        a("v_mul_f32 v%d, 0x%x, v%d" % (vT, f2u(1.0 / 2048), vT))
        a("s_and_b32 s28, s27, 7")
        a("s_lshl_b32 s28, s28, 5")
        a("v_lshl_add_u32 v%d, v%d, 2, s28" % (vT + 2, vT + 1))
        a("v_cvt_f32_u32 v%d, v%d" % (vT + 2, vT + 2))
        a("s_bitcmp1_b32 s27, 3")
        a("s_cselect_b32 s28, 0x%x, 0" % f2u(0.25))
        for h in range(2):
            for r in range(4):
                a("v_add_f32 v%d, 0x%x, v%d" % (vT + 3, f2u(16.0 * h + r), vT + 2))
                a("v_fma_f32 v%d, v%d, v%d, s28" % (vT + 3, vT + 3, vT))
                a("v_fract_f32 v%d, v%d" % (vT + 3, vT + 3))
                a("v_cos_f32 v%d, v%d" % (vT + 4 + r, vT + 3))
            a("s_nop 0")
            a("v_cvt_pk_f16_f32 v%d, v%d, v%d" % (12 + 2 * h, vT + 4, vT + 5))
            a("v_cvt_pk_f16_f32 v%d, v%d, v%d" % (13 + 2 * h, vT + 6, vT + 7))
        a("s_lshl_b32 s28, s27, 10")
        a("buffer_store_dwordx4 v[12:15], v1, s[%d:%d], s28 offen%s" % (sWF, sWF + 3, wsf_flags))
    if tpos == 1: nt_[1] = touches()
    a("v_cvt_f32_u32 v%d, v2" % (vT + 2))
    a("v_lshlrev_b32 v%d, 2, v%d" % (vT + 1, vT + 1))
    a("v_cvt_f32_u32 v%d, v%d" % (vT + 3, vT + 1))
    for blk in range(2):
        if tpos == 2 and blk == 1: nt_[1] = touches()
        a("v_add_f32 v%d, 0x%x, v%d" % (vT + 4, f2u(16.0 * blk), vT + 2))
        a("v_mul_f32 v%d, 0x%x, v%d" % (vT + 5, f2u(1.0 / 1024), vT + 4))
        a("v_mul_f32 v%d, 0x%x, v%d" % (vT + 4, f2u(1.0 / 32), vT + 4))
        for half in range(2):
            for rp in range(2):
                for q in range(2):
                    r = 2 * rp + q
                    a("v_add_f32 v%d, 0x%x, v%d" % (vT + 6, f2u(16.0 * half + r), vT + 3))
                    a("v_mul_f32 v%d, v%d, v%d" % (vT + 7, vT + 6, vT + 4))
                    a("v_mul_f32 v%d, v%d, v%d" % (vT + 6, vT + 6, vT + 5))
                    a("v_fract_f32 v%d, v%d" % (vT + 7, vT + 7))
                    a("v_cos_f32 v%d, v%d" % (vT + 8 + q, vT + 7))
                    a("v_sin_f32 v%d, v%d" % (vT + 10 + q, vT + 7))
                    a("v_cos_f32 v%d, v%d" % (vTr + (half * 2 + blk) * 4 + r, vT + 6))
                    a("v_sin_f32 v%d, v%d" % (vTi + (half * 2 + blk) * 4 + r, vT + 6))
                d = blk * 4 + half * 2 + rp
                a("v_cvt_pk_f16_f32 v%d, v%d, v%d" % (vWr + d, vT + 8, vT + 9))
                a("v_cvt_pk_f16_f32 v%d, v%d, v%d" % (vWn + d, vT + 10, vT + 11))
                a("v_xor_b32 v%d, 0x80008000, v%d" % (vWi + d, vWn + d))
    a("s_lshl_b32 s29, s%d, 11" % sWave)
    a("s_add_u32 s29, s29, %d" % LX)
    a("v_add_u32 v%d, s29, v1" % (vT + 12))
    a("v_lshrrev_b32 v%d, 2, v0" % (vT + 13))
    a("v_lshlrev_b32 v%d, 6, v%d" % (vT + 13, vT + 13))
    a("v_and_b32 v%d, 3, v0" % (vT + 14))
    a("v_lshl_add_u32 v%d, v%d, 3, v%d" % (vT + 13, vT + 14, vT + 13))
    a("v_add_u32 v%d, s29, v%d" % (vT + 13, vT + 13))
    a("v_mul_u32_u24 v%d, 144, v2" % (vT + 14))
    a("v_lshl_add_u32 v%d, v%d, 2, v%d" % (vT + 14, vT + 1, vT + 14))
    a("s_mul_i32 s30, s%d, %d" % (sWave, ZROW))
    a("v_add_u32 v%d, s30, v%d" % (vT + 14, vT + 14))
    a("s_and_b32 s30, s%d, 1" % sWave)
    a("s_lshl_b32 s%d, s30, 6" % sT)
    a("v_and_b32 v%d, 31, v0" % (vT + 8))
    a("v_lshrrev_b32 v%d, 5, v0" % (vT + 9))
    a("v_lshl_add_u32 v%d, v%d, 1, v%d" % (vT + 10, vT + 8, vT + 9))
    a("v_add_u32 v%d, s%d, v%d" % (vT + 10, sT, vT + 10))
    a("v_lshrrev_b32 v%d, 3, v%d" % (vT + 11, vT + 10))
    a("v_add_u32 v%d, v%d, v%d" % (vT + 10, vT + 10, vT + 11))
    a("v_lshlrev_b32 v%d, 4, v%d" % (vT + 15, vT + 10))
    a("v_lshrrev_b32 v%d, 3, v%d" % (vT + 10, vT + 8))
    a("v_lshlrev_b32 v%d, 16, v%d" % (vT + 10, vT + 10))
    a("v_and_b32 v%d, 7, v0" % (vT + 11))
    a("v_lshl_add_u32 v%d, v%d, 4, v%d" % (vT + 10, vT + 11, vT + 10))
    a("v_lshl_add_u32 v%d, v%d, 15, v%d" % (vT + 10, vT + 9, vT + 10))
    a("s_lshl_b32 s34, s30, 2")
    a("v_lshrrev_b32 v%d, 3, v%d" % (vB_, vT + 8))
    a("v_add_u32 v%d, s34, v%d" % (vB_, vB_))
    a("v_cmp_eq_u32 vcc, 0, v%d" % vB_)
    a("v_lshlrev_b32 v%d, 10, v%d" % (vB_, vB_))
    a("v_lshl_add_u32 v%d, v%d, 9, v%d" % (vB_, vT + 9, vB_))
    a("v_add_u32 v%d, %d, v%d" % (vB_, 8192 - 1024, vB_))
    a("v_mov_b32 v%d, 0x40000000" % (vT + 7))
    a("v_cndmask_b32 v%d, v%d, v%d, vcc" % (vB_, vB_, vT + 7))
    a("v_cmp_ne_u32 vcc, 0, v%d" % (vT + 11))
    a("s_lshl_b32 s30, s30, 18")
    a("v_add_u32 v3, s30, v%d" % (vT + 10))
    a("v_cndmask_b32 v%d, v%d, v%d, vcc" % (vB_, vB_, vT + 7))
    a("s_lshr_b32 s32, s2, 5")
    a("s_lshl_b32 s32, s32, 6")
    a("s_bfe_u32 s%d, s2, 0x20002" % sT)
    a("s_lshl_b32 s%d, s%d, 4" % (sT, sT))
    a("s_add_u32 s32, s32, s%d" % sT)
    a("s_bfe_u32 s%d, s2, 0x10004" % sT)
    a("s_lshl_b32 s%d, s%d, 3" % (sT, sT))
    a("s_add_u32 s32, s32, s%d" % sT)
    a("s_and_b32 s%d, s2, 3" % sT)
    a("s_lshl_b32 s%d, s%d, 1" % (sT, sT))
    a("s_add_u32 s32, s32, s%d" % sT)
    a("s_and_b32 s26, s2, 0xc0")
    a("s_and_b32 s%d, s2, 7" % sT)
    a("s_lshl_b32 s%d, s%d, 3" % (sT, sT))
    a("s_add_u32 s26, s26, s%d" % sT)
    a("s_bfe_u32 s%d, s2, 0x30003" % sT)
    a("s_add_u32 s26, s26, s%d" % sT)
    a("s_lshl_b32 s26, s26, 7")
    a("s_and_b32 s%d, s25, 7" % sT)
    a("s_lshl_b32 s%d, s%d, 8" % (sT, sT))
    a("s_lshr_b32 s33, s25, 3")
    a("s_add_u32 s33, s33, s%d" % sT)
    a("s_lshl_b32 s33, s33, 2")
    if stamp is not None: stamp_mid(a, 3)
    if tpos == 3: nt_[1] = touches()
    a("s_waitcnt vmcnt(%d)" % ((1 if wsf else 0) + nt_[0] + nt_[1]))
    a("v_readfirstlane_b32 s30, v%d" % vRaw)
    for k in range(8):
        a("v_lshlrev_b32 v%d, 16, v%d" % (vF + 2 * k, vRaw + k))
        a("v_and_b32 v%d, 0xffff0000, v%d" % (vF + 2 * k + 1, vRaw + k))
    a("s_lshl_b32 s30, s30, 16")
    for k in range(16):
        a("v_subrev_f32 v%d, s30, v%d" % (vF + k, vF + k))
    s0 = vT
    a("v_add_f32 v%d, v%d, v%d" % (s0, vF, vF + 2))
    a("v_mul_f32 v%d, v%d, v%d" % (s0 + 2, vF, vF))
    a("v_add_f32 v%d, v%d, v%d" % (s0 + 1, vF + 1, vF + 3))
    a("v_mul_f32 v%d, v%d, v%d" % (s0 + 3, vF + 1, vF + 1))
    for k in range(2, 16, 2):
        if k >= 4:
            a("v_add_f32 v%d, v%d, v%d" % (s0, s0, vF + k))
            a("v_add_f32 v%d, v%d, v%d" % (s0 + 1, s0 + 1, vF + k + 1))
        a("v_fmac_f32 v%d, v%d, v%d" % (s0 + 2, vF + k, vF + k))
        a("v_fmac_f32 v%d, v%d, v%d" % (s0 + 3, vF + k + 1, vF + k + 1))
    a("v_sub_f32 v%d, v%d, v%d" % (s0 + 8, s0, s0 + 1))
    a("v_add_f32 v%d, v%d, v%d" % (s0, s0, s0 + 1))
    a("v_add_f32 v%d, v%d, v%d" % (s0 + 2, s0 + 2, s0 + 3))
    for sh in (8, 4, 2, 1):
        for r in (s0 + 8, s0, s0 + 2):
            a("v_add_f32_dpp v%d, v%d, v%d row_ror:%d row_mask:0xf bank_mask:0xf" % (r, r, r, sh))
    for op in ("v_permlane32_swap_b32", "v_permlane16_swap_b32"):
        for r in (s0 + 8, s0, s0 + 2): a("v_mov_b32 v%d, v%d" % (r + 1, r))
        for r in (s0 + 8, s0, s0 + 2): a("%s v%d, v%d" % (op, r, r + 1))
        for r in (s0 + 8, s0, s0 + 2): a("v_add_f32 v%d, v%d, v%d" % (r, r, r + 1))
    a("v_mul_f32 v%d, 0x%x, v%d" % (s0, f2u(1.0 / 1024), s0))
    a("v_mul_f32 v%d, 0x%x, v%d" % (s0 + 2, f2u(1.0 / 1024), s0 + 2))
    a("v_fma_f32 v%d, -v%d, v%d, v%d" % (s0 + 2, s0, s0, s0 + 2))
    a("v_max_f32 v%d, 0, v%d" % (s0 + 2, s0 + 2))
    a("v_add_f32 v%d, 0x%x, v%d" % (s0 + 2, f2u(1e-5), s0 + 2))
    a("v_rsq_f32 v%d, v%d" % (s0 + 3, s0 + 2))
    a("v_add_f32 v%d, s30, v%d" % (s0 + 4, s0))
    a("v_mul_f32 v%d, v%d, v%d" % (s0 + 1, s0, s0 + 3))
    a("v_mul_f32 v%d, v%d, v%d" % (s0 + 8, s0 + 8, s0 + 3))
    for k in range(16):
        a("v_fma_f32 v%d, v%d, v%d, -v%d" % (vF + k, vF + k, s0 + 3, s0 + 1))
    for k in range(8):
        a("v_cvt_pk_f16_f32 v%d, v%d, v%d" % (vRaw + k, vF + 2 * k, vF + 2 * k + 1))
    a("ds_write_b128 v%d, v[%d:%d]" % (vT + 12, vRaw, vRaw + 3))
    a("ds_write_b128 v%d, v[%d:%d] offset:1024" % (vT + 12, vRaw + 4, vRaw + 7))
    a("v_mov_b32 v%d, 0" % (s0 + 5))
    a("buffer_store_dword v%d, v%d, s[%d:%d], s33 offen" % (s0 + 4, s0 + 5, sXM, sXM + 3))
    srd_off(a, 68, 40, WS_FL, 8192)
    a("s_lshl_b32 s33, s25, 2")
    a("buffer_store_dword v%d, v%d, s[68:71], s33 offen" % (s0 + 5, s0 + 5))
    a("v_readfirstlane_b32 s30, v%d" % vF)
    a("s_lshl_b32 s%d, s%d, 2" % (sT, sWave))
    a("s_add_u32 s%d, s%d, %d" % (sT, sT, LX0))
    a("s_waitcnt lgkmcnt(0)")
    for ib in range(2):
        for h in range(2):
            a("ds_read_b64_tr_b16 v[%d:%d], v%d offset:%d" % (vXop + ib * 4 + 2 * h, vXop + ib * 4 + 2 * h + 1, vT + 13, h * 1024 + ib * 32))
    a("v_mov_b32 v%d, s%d" % (s0 + 6, sT))
    a("v_mov_b32 v%d, s30" % (s0 + 7))
    a("ds_write_b32 v%d, v%d" % (s0 + 6, s0 + 7))
    a("ds_write_b32 v%d, v%d offset:32" % (s0 + 6, s0 + 8))
    if wsload:
        a("s_waitcnt vmcnt(%d)" % (1 + npf))
        for k in range(4):
            a("v_lshlrev_b32 v%d, 16, v%d" % (vF + 2 * k, 12 + k))
            a("v_and_b32 v%d, 0xffff0000, v%d" % (vF + 2 * k + 1, 12 + k))
        for k in range(4):
            a("v_cvt_pk_f16_f32 v%d, v%d, v%d" % (12 + k, vF + 2 * k, vF + 2 * k + 1))
        a("s_lshl_b32 s27, s27, 10")
        a("buffer_store_dwordx4 v[12:15], v1, s[%d:%d], s27 offen%s" % (sWF, sWF + 3, wsf_flags))
    if stamp is not None: stamp_mid(a, 0)
    a("s_waitcnt lgkmcnt(0)")
    D1 = lambda ib, jb, p: vD + ((ib * 2 + jb) * 2 + p) * 4
    for jb in range(2):
        for ib in range(2):
            for p in range(2):
                w = (vWr if p == 0 else vWi) + jb * 4
                a("v_mfma_f32_16x16x32_f16 v[%d:%d], v[%d:%d], v[%d:%d], 0" % (D1(ib, jb, p), D1(ib, jb, p) + 3, vXop + ib * 4, vXop + ib * 4 + 3, w, w + 3))
    a("s_nop 3")
    D2 = lambda jb, fb, p: 16 + ((fb) * 2 + p) * 4 if jb == 0 else vD + ((fb) * 2 + p) * 4 * 0 + (0)
    U_ = lambda jb, p: vU + (jb * 2 + p) * 4
    def D2(jb, fb, p):
        if jb == 0: return 16 + (fb * 2 + p) * 4
        return D1(fb, 0, p)
    for jb in range(2):
        for ib in range(2):
            for r in range(4):
                ur, ui = D1(ib, jb, 0) + r, D1(ib, jb, 1) + r
                c, s_ = vTr + (ib * 2 + jb) * 4 + r, vTi + (ib * 2 + jb) * 4 + r
                a("v_mul_f32 v%d, v%d, v%d" % (vT + r, ur, c))
                a("v_mul_f32 v%d, v%d, v%d" % (vT + 4 + r, ui, c))
                a("v_fmac_f32 v%d, v%d, v%d" % (vT + r, ui, s_))
                a("v_fma_f32 v%d, -v%d, v%d, v%d" % (vT + 4 + r, ur, s_, vT + 4 + r))
            for p in range(2):
                u = U_(jb, p) + ib * 2
                a("v_cvt_pk_f16_f32 v%d, v%d, v%d" % (u, vT + 4 * p, vT + 4 * p + 1))
                a("v_cvt_pk_f16_f32 v%d, v%d, v%d" % (u + 1, vT + 4 * p + 2, vT + 4 * p + 3))
        a("s_nop 1")
        for fb in range(1):
            d = D2(jb, fb, 0)
            a("v_mfma_f32_16x16x32_f16 v[%d:%d], v[%d:%d], v[%d:%d], 0" % (d, d + 3, U_(jb, 0), U_(jb, 0) + 3, vWr + fb * 4, vWr + fb * 4 + 3))
            a("v_mfma_f32_16x16x32_f16 v[%d:%d], v[%d:%d], v[%d:%d], v[%d:%d]" % (d, d + 3, U_(jb, 1), U_(jb, 1) + 3, vWn + fb * 4, vWn + fb * 4 + 3, d, d + 3))
            d = D2(jb, fb, 1)
            a("v_mfma_f32_16x16x32_f16 v[%d:%d], v[%d:%d], v[%d:%d], 0" % (d, d + 3, U_(jb, 0), U_(jb, 0) + 3, vWi + fb * 4, vWi + fb * 4 + 3))
            a("v_mfma_f32_16x16x32_f16 v[%d:%d], v[%d:%d], v[%d:%d], v[%d:%d]" % (d, d + 3, U_(jb, 1), U_(jb, 1) + 3, vWr + fb * 4, vWr + fb * 4 + 3, d, d + 3))
    for jb in range(2):
        if jb == 1: a("s_nop 5")
        for fb in range(1):
            o = vRaw + fb * 4 if jb == 0 else vXop + fb * 4
            for p in range(2):
                d = D2(jb, fb, p)
                a("v_cvt_pk_f16_f32 v%d, v%d, v%d" % (o + 2 * p, d, d + 1))
                a("v_cvt_pk_f16_f32 v%d, v%d, v%d" % (o + 2 * p + 1, d + 2, d + 3))
            a("ds_write_b128 v%d, v[%d:%d] offset:%d" % (vT + 14, o, o + 3, fb * 16 * 144 + jb * 64))
    a("s_waitcnt lgkmcnt(0)")
    a("s_barrier")
    if stamp is not None: stamp_mid(a, 1)
    a("s_cmp_gt_u32 s%d, 4" % sWave)
    a("s_cbranch_scc1 %s_done" % name)
    a("s_cmp_eq_u32 s%d, 4" % sWave)
    a("s_cbranch_scc1 %s_vec" % name)
    Z = lambda k: 16 + k * 4
    for k in (0, 4, 2, 6, 1, 5, 3, 7):
        a("ds_read_b128 v[%d:%d], v%d offset:%d" % (Z(k), Z(k) + 3, vT + 15, k * ZROW))
    def pk(d, x, y, nx=0, ny=0):
        m = " neg_lo:[%d,%d] neg_hi:[%d,%d]" % (nx, ny, nx, ny) if (nx or ny) else ""
        a("v_pk_add_f16 v%d, v%d, v%d%s" % (d, x, y, m))
    P = lambda k: 48 + k * 4
    X = lambda m: 64 + m * 4
    def dft4_store(t1_of_m, b):
        for h in range(2):
            for p in range(2):
                (r0, n0), (r2, n2) = b[0][p], b[2][p]
                (r1, n1), (r3, n3) = b[1][p], b[3][p]
                pk(P(0) + 2 * p + h, r0 + h, r2 + h, n0, n2)
                pk(P(1) + 2 * p + h, r0 + h, r2 + h, n0, 1 - n2)
                pk(P(2) + 2 * p + h, r1 + h, r3 + h, n1, n3)
                pk(P(3) + 2 * p + h, r1 + h, r3 + h, n1, 1 - n3)
        for m in range(4):
            for h in range(2):
                re, im = 0 + h, 2 + h
                if m == 0:
                    pk(X(0) + re, P(0) + re, P(2) + re); pk(X(0) + im, P(0) + im, P(2) + im, 1, 1)
                elif m == 2:
                    pk(X(2) + re, P(0) + re, P(2) + re, 0, 1); pk(X(2) + im, P(2) + im, P(0) + im, 0, 1)
                elif m == 1:
                    pk(X(1) + re, P(1) + re, P(3) + im); pk(X(1) + im, P(3) + re, P(1) + im, 0, 1)
                else:
                    pk(X(3) + re, P(1) + re, P(3) + im, 0, 1); pk(X(3) + im, P(1) + im, P(3) + re, 1, 1)
            a("s_add_u32 s30, s26, 0x%x" % (t1_of_m(m) * MB // 2))
            a("s_add_u32 s33, s32, 0x%x" % (t1_of_m(m) * 8192))
            a("v_permlane32_swap_b32 v%d, v%d" % (X(m), X(m) + 2))
            a("v_permlane32_swap_b32 v%d, v%d" % (X(m) + 1, X(m) + 3))
            a("buffer_store_dwordx4 v[%d:%d], v3, s[%d:%d], s30 offen%s" % (X(m), X(m) + 3, sV, sV + 3, st_flags))
            a("buffer_store_short v%d, v%d, s[%d:%d], s33 offen" % (X(m), vB_, sVM, sVM + 3))
    a("s_cmp_ge_u32 s%d, 2" % sWave)
    a("s_cbranch_scc1 %s_odd" % name)
    for n, k in enumerate((0, 2, 1, 3)):
        a("s_waitcnt lgkmcnt(%d)" % (6 - 2 * n))
        for c in range(4): pk(Z(k) + c, Z(k) + c, Z(k + 4) + c)
    dft4_store(lambda m: 2 * m, [((Z(k), 0), (Z(k) + 2, 0)) for k in range(4)])
    a("s_branch %s_done" % name)
    a.label("%s_vec" % name)
    a("v_bfe_u32 v30, v0, 4, 1")
    a("v_lshlrev_b32 v16, 5, v30")
    a("v_add_u32 v16, %d, v16" % LX0)
    a("ds_read_b128 v[20:23], v16")
    a("ds_read_b128 v[24:27], v16 offset:16")
    a("v_and_b32 v17, 7, v0")
    a("v_cvt_f32_u32 v18, v17")
    a("v_mul_f32 v18, 0x%x, v18" % f2u(0.125))
    a("v_bfe_u32 v19, v0, 3, 1")
    a("v_cvt_f32_u32 v28, v19")
    a("v_mul_f32 v28, 0x%x, v28" % f2u(-0.25))
    a("v_mov_b32 v29, 0")
    for k in range(8):
        a("v_mov_b32 v31, 0x%x" % f2u(float(k)))
        a("v_fma_f32 v%d, v18, v31, v28" % (32 + k))
        a("v_fract_f32 v%d, v%d" % (32 + k, 32 + k))
        a("v_cos_f32 v%d, v%d" % (32 + k, 32 + k))
    a("s_waitcnt lgkmcnt(0)")
    for k in range(8):
        a("v_fmac_f32 v29, v%d, v%d" % (32 + k, 20 + k))
    a("v_cvt_pk_f16_f32 v29, v29, v29")
    a("v_lshlrev_b32 v16, 10, v17")
    a("v_lshlrev_b32 v17, 13, v17")
    a("v_add_u32 v17, %d, v17" % (8192 + 7 * 1024))
    a("v_cmp_eq_u32 vcc, 0, v30")
    a("s_nop 1")
    a("v_cndmask_b32 v17, v17, v16, vcc")
    a("v_lshl_add_u32 v17, v19, 9, v17")
    a("buffer_store_short v29, v17, s[%d:%d], s32 offen" % (sVM, sVM + 3))
    a("s_branch %s_done" % name)
    a.label("%s_odd" % name)
    import numpy as np
    isq = int(np.float16(math.sqrt(0.5)).view(np.uint16))
    a("s_mov_b32 s29, 0x%x" % (isq | (isq << 16)))
    for n, k in enumerate((0, 2, 1, 3)):
        a("s_waitcnt lgkmcnt(%d)" % (6 - 2 * n))
        for c in range(4): pk(Z(k) + c, Z(k) + c, Z(k + 4) + c, 0, 1)
        if k in (1, 3):
            for h in range(2):
                dr, di = Z(k) + h, Z(k) + 2 + h
                pk(Z(k + 4) + h, dr, di)
                pk(Z(k + 4) + 2 + h, di, dr, 0, 1)
            for c in range(4):
                a("v_pk_mul_f16 v%d, v%d, s29" % (Z(k + 4) + c, Z(k + 4) + c))
    b = [((Z(0), 0), (Z(0) + 2, 0)), ((Z(5), 0), (Z(5) + 2, 0)), ((Z(2) + 2, 0), (Z(2), 1)), ((Z(7) + 2, 0), (Z(7), 1))]
    dft4_store(lambda m: 2 * m + 1, b)
    a.label("%s_done" % name)
    if stamp is not None:
        stamp_mid(a, 2); stamp_end(a, 40, stamp, sWave)
    a.label("%s_end" % name)
    a.end_kernel(name, 168, 0, 102)
    a.launch(name, 256, 512, LDS)
```

```python
class Stream:
    def __init__(self, prefix=None):
        self.items = []
        self.prefix = prefix
    def i(self, t):
        for l in t.strip("\n").split("\n"):
            self.items.append(('i', l.strip()))
    def vm(self, t, tag=None): self.items.append(('vm', t, tag))
    def ds(self, t, tag=None): self.items.append(('ds', t, tag))
    def wv(self, key, tags): self.items.append(('wv', (self.prefix, key), list(tags)))
    def wl(self, key, tags): self.items.append(('wl', (self.prefix, key), list(tags)))
    def label(self, l): self.items.append(('label', l))

def resolve(dyn_streams):
    res = {}
    vm, ds = [], []
    vpos, dpos = {}, {}
    vdone, ddone = 0, 0
    for s in dyn_streams:
        for it in s.items:
            k = it[0]
            if k == 'vm':
                vm.append(it[2]);
                if it[2] is not None: vpos[it[2]] = len(vm) - 1
            elif k == 'ds':
                ds.append(it[2])
                if it[2] is not None: dpos[it[2]] = len(ds) - 1
            elif k == 'wv':
                need = [vpos[t] for t in it[2] if t in vpos]
                miss = [t for t in it[2] if t not in vpos]
                assert not miss, ("missing vm tags", it[1], miss)
                n = len(vm) - 1 - max(need) if need else 63
                res[it[1]] = min(res.get(it[1], 63), n)
            elif k == 'wl':
                need = [dpos[t] for t in it[2] if t in dpos]
                miss = [t for t in it[2] if t not in dpos]
                assert not miss, ("missing ds tags", it[1], miss)
                n = len(ds) - 1 - max(need) if need else 15
                res[it[1]] = min(res.get(it[1], 15), n)
    return res

def emit(a, s, res, skip=()):
    for it in s.items:
        k = it[0]
        if k == 'i':
            if 'bar' in skip and it[1] == 's_barrier': continue
            if 'mfma' in skip and it[1].startswith('v_mfma'): continue
            a(it[1])
        elif k in ('vm', 'ds'):
            if it[2] is not None and it[2][0] in skip: continue
            a(it[1])
        elif k == 'label': a.label(it[1])
        elif k == 'wv': a("s_waitcnt vmcnt(%d)" % min(res[it[1]], 63))
        elif k == 'wl': a("s_waitcnt lgkmcnt(%d)" % min(res[it[1]], 15))

def same_text(s1, s2):
    f = lambda s: [(it[0], it[1]) for it in s.items]
    return f(s1) == f(s2)
```

```python
from common import *

class Gemm2:
    def __init__(s, name, NRB, NF, SUB, NST, STB, R, AR, PD, ndma, VACC, stamp=None, skip=(), npro=0, rate=1, st_flags="", LA=None, selfpf=True):
        s.name, s.NRB, s.NF, s.SUB, s.NST, s.STB, s.R, s.AR, s.PD, s.ndma, s.VACC = name, NRB, NF, SUB, NST, STB, R, AR, PD, ndma, VACC
        s.stamp, s.skip, s.npro, s.rate, s.st_flags = stamp, skip, npro, rate, st_flags
        s.LA = LA
        s.selfpf = selfpf
        s.vJunk = 31
        s.dt = 'bf16'
        s.vCode, s.sCode, s.retouch = 28, 4, ()
        s.xbar_after = ()
        s.m_start, s.m_end, s.m_prof = 0, 1, 4
        s.fused = False
        s.handover, s.inherited, s.prev_streams = False, [], []
        s.late_x = []
        s.fill_step = {}
        s.defer_blocks = ()
        s.carry = []
        s.afile = 'a'
        s.slot0, s.pre_stages = 0, 0
        s.gate, s.gate_na, s.after_k2 = None, 8, False
        s.issue_step = {}
        s.alt_path = False
        s.a_flags = ''
        s.NB = PD + 1
        s.NACC = NF * NRB * 4
        s.vA = [2 + i for i in range(NRB)]
        s.vD = [6 + i for i in range(ndma)]
        s.spb = 65536 // STB
        s.nbase = -(-R // s.spb)
        s.vB = [13 + k for k in range(s.nbase)]
        assert s.nbase <= 3
        s.aBbase = AR * SUB * NRB * 4
        s.aX = s.aBbase + s.NB * 4
        s.sA, s.sW, s.sO, s.sS = 8, 12, 16, 20
        s.sWave, s.sDoff, s.sAoff, s.sLdsW, s.sT = 24, 25, 26, 28, 31
        s.vpm = 2
    def acc(s, j, i): return s.VACC + (j * s.NRB + i) * 4
    def aA(s, q, i): return ((q % (s.AR * s.SUB)) * s.NRB + i) * 4
    def unit_order(s): return [(st, sub, j) for st in range(s.NST) for sub in range(s.SUB) for j in range(s.NF)]
    def extra_unit(s, p, q): pass
    def post_sync0(s, p): pass
    def is_late(s, st, n): return False
    def a_pre(s, q): return []
    def late_steps(s, units): return {}
    def valu_ready(s, units): return {}
    def extra_vm(s): return []
    def dma_ops(s, st):
        ops = []
        for n in range(s.ndma):
            pre, t = s.dma_text(st, n)
            ops.append([pre, t, ("D", st, n), []])
        if st + 1 < s.NST and s.dma_step(st) is not None:
            ops[-1][3] = ["s_add_u32 s%d, s%d, %d" % (s.sDoff, s.sDoff, s.dma_step(st))]
        return ops
    def a_ops(s, q):
        ops = []
        for i in range(s.NRB):
            r = s.aA(q, i)
            t = "buffer_load_dwordx4 a[%d:%d], v%d, s[%d:%d], s%d offen offset:%d%s" % (r, r + 3, s.vA[i], s.sA, s.sA + 3, s.sAoff, (q % 4) * 1024, s.a_flags)
            ops.append([s.a_pre(q) if i == 0 else [], t, ("A", q, i), []])
        if q % 4 == 3:
            ops[-1][3] = ["s_add_u32 s%d, s%d, 4096" % (s.sAoff, s.sAoff)]
        return ops
    def put(s, p, op):
        pre, t, tag, post = op
        for x in pre:
            if isinstance(x, tuple):
                if x[0] == "wv": p.wv(x[1], x[2])
                elif x[0] == "label": p.label(x[1])
            else: p.i(x)
        if pre: p.i("s_nop 0")
        p.vm(t, tag)
        for x in post: p.i(x)
    def base_setup(s, a):
        for k in range(1, s.nbase):
            a("v_add_u32 v%d, %d, v%d" % (s.vB[k], k * s.spb * s.STB, s.vB[0]))
    def emit_main(s, a, early, late):
        units = s.unit_order()
        N = len(units)
        PD = s.PD
        first_st, last_st, first_q, last_q = {}, {}, {}, {}
        for n, (st, sub, j) in enumerate(units):
            q = st * s.SUB + sub
            first_st.setdefault(st, n); last_st[st] = n
            first_q.setdefault(q, n); last_q[q] = n
        sync_step = {st: first_st[st] - PD for st in range(s.NST)}
        sync_at = {}
        for st, n in sync_step.items(): sync_at.setdefault(n, []).append(st)
        xbar = [last_st[st] + 1 for st in s.xbar_after]
        bsteps = sorted(list(sync_step.values()) + xbar)
        qd, qa, qd2 = [], [], []
        late_steps = {st: n - PD for st, n in s.late_steps(units).items()}
        late_at = {}
        for st, n in late_steps.items(): late_at.setdefault(n, []).append(st)
        for st in range(s.NST):
            if st < s.R: e = -10**9
            else:
                L = last_st[st - s.R]
                c = [b for b in bsteps if b > L]
                e = c[0]
                assert e < sync_step[st], ("dma cannot be issued before its sync", st)
            if s.LA is not None: e = max(e, sync_step[st] - s.LA)
            for op in s.dma_ops(st) if st >= s.pre_stages else []:
                late_ = s.is_late(st, op[2][2])
                (qd2 if late_ else qd).append((e, late_steps[st] if late_ else sync_step[st], op))
        qd += qd2
        nq = s.NST * s.SUB
        for q in range(nq):
            e = -10**9 if q < s.AR * s.SUB else last_q[q - s.AR * s.SUB] + 1
            assert e <= first_q[q], ("A ring too small", q)
            if s.LA is not None: e = max(e, first_q[q] - s.LA)
            for op in s.a_ops(q): qa.append((e, first_q[q], op))
        qx = list(s.extra_vm())
        if s.selfpf:
            for k, n in enumerate(s.retouch):
                qx.append((n, n, [[], "global_load_dword v%d, v%d, s[%d:%d]" % (s.vJunk, s.vCode, s.sCode, s.sCode + 1), ("C", k), []]))
        qx += s.late_x
        qx = sorted(qx, key=lambda x: x[0])
        def next_vm(step):
            c = []
            for qq in (qd, qa, qx):
                if qq and qq[0][0] <= step: c.append((qq[0][1], id(qq), qq))
            if not c: return None
            c.sort(key=lambda x: x[0])
            return c[0][2].pop(0)[2]
        p = Stream(type(s).__name__)
        p.i("s_mov_b32 s%d, 0" % s.sAoff)
        early(p)
        if s.gate:
            for _ in range(2 * s.ndma): s.put(p, qd.pop(0)[2])
            late(p)
            s.gate(p)
            for _ in range(s.gate_na): s.put(p, qa.pop(0)[2])
            late = lambda p: None
        else:
          while (qd and qd[0][1] < 0) or (qa and qa[0][1] <= 0):
            s.put(p, next_vm(-1))
          for _ in range(s.npro):
            op = next_vm(-1)
            if op: s.put(p, op)
        if s.inherited and s.stamp is not None and not s.alt_path: p.i("s_memtime s[%d:%d]" % (SB + 12, SB + 13))
        for x in s.inherited: s.fill_emit(p, x)
        if s.inherited and s.stamp is not None and not s.alt_path: p.i("s_memtime s[%d:%d]" % (SB + 16, SB + 17))
        if s.alt_path:
            i0 = [k for k, it in enumerate(p.items) if it[0] == 'label' and it[1] == "g34_cont0"][0]
            ninh = len(s.inherited)
            s.alt_loads = [it[1] for it in p.items[i0 + 1:len(p.items) - ninh]]
            p.label("g34_join0")
        late(p)
        def sync(st):
            p.wv(("D", st), [("D", st, n) for n in range(s.ndma) if not s.is_late(st, n)])
            p.i("s_barrier")
        def rd(n, h):
            if n >= N: return
            st, sub, j = units[n]
            slot = (st + s.slot0) % s.R
            r = s.aBbase + (n % s.NB) * 4 + 2 * h
            p.ds("ds_read_b64_tr_b16 a[%d:%d], v%d offset:%d" % (r, r + 1, s.vB[slot // s.spb], (slot % s.spb) * s.STB + s.rd_off(sub, j, h)), ("B", n, h))
        for n in range(-PD, 0):
            for st in sync_at.get(n, []):
                sync(st)
                if st == 0: s.post_sync0(p)
            rd(n + PD, 0); rd(n + PD, 1)
        if s.stamp is not None: p.i("s_memtime s[%d:%d]" % (SB + 8 + 2 * s.m_start, SB + 9 + 2 * s.m_start))
        vr = s.valu_ready(units)
        vq = []
        seen_q = set()
        seen_j = set()
        credit = 0.0
        vcred = 0.0
        for n, (st, sub, j) in enumerate(units):
            q = st * s.SUB + sub
            vq += vr.get(n, [])
            if s.stamp is not None and n in s.prof(N): p.i("s_memtime s[%d:%d]" % (SB + 8 + 2 * (s.m_prof + s.prof(N).index(n)), SB + 9 + 2 * (s.m_prof + s.prof(N).index(n))))
            if q not in seen_q:
                seen_q.add(q)
                if s.afile == 'a': p.wv(("A", q), [("A", q, i) for i in range(s.NRB)])
                s.extra_unit(p, q)
            p.wl(("B", n), [("B", n, 0), ("B", n, 1)])
            b = s.aBbase + (n % s.NB) * 4
            for i in range(s.NRB):
                c = s.acc(j, i)
                p.i("v_mfma_f32_16x16x32_%s v[%d:%d], a[%d:%d], %s[%d:%d], %s" % (s.dt,
                    c, c + 3, b, b + 3, s.afile, s.aA(q, i), s.aA(q, i) + 3, ("v[%d:%d]" % (c, c + 3)) if j in seen_j else "0"))
                if i == 0:
                    for st2 in sync_at.get(n, []): sync(st2)
                    if n in xbar: p.i("s_barrier")
                    if n in late_at:
                        p.wv(("Dlate", n), [("D", st2, k) for st2 in late_at[n] for k in range(s.ndma) if s.is_late(st2, k)])
                        p.i("s_barrier")
                    rd(n + PD, 0)
                    if s.NRB == 1: rd(n + PD, 1)
                elif i == 1:
                    rd(n + PD, 1)
                if i == s.NRB - 1:
                    seen_j.add(j)
                    credit = min(credit + s.rate, max(s.rate, 1.0) + 0.99)
                    if qx and qx[0][0] <= n and qx[0][1] <= n:
                        if qx[0] not in s.late_x: s.last_vm_step = n
                        s.put(p, qx.pop(0)[2])
                    while credit >= 1.0:
                        op = next_vm(n)
                        if not op: break
                        s.put(p, op); credit -= 1.0
                        s.last_vm_step = n
                        s.issue_step[op[2]] = n
                vcred = min(vcred + s.vpm, s.vpm + 0.99)
                while vcred >= 1.0 and vq:
                    x = vq.pop(0); vcred -= 1.0
                    s.fill_emit(p, x)
                    s.fill_step[id(x) if isinstance(x, tuple) else x] = n
        assert not qd and not qa and not qx
        if s.stamp is not None: p.i("s_memtime s[%d:%d]" % (SB + 8 + 2 * s.m_end, SB + 9 + 2 * s.m_end))
        s.post_loop(p)
        p.i("s_nop 7")
        for k in sorted(vr):
            if k >= N: vq += vr[k]
        if s.handover:
            s.leftover = vq; s.stream = p
            return
        for x in vq: s.fill_emit(p, x)
        s.tail(p)
        res = resolve(s.prev_streams + [p])
        for q_ in s.prev_streams: emit(a, q_, res, ())
        emit(a, p, res, s.skip)
    def tail(s, p): pass
    def post_loop(s, p): pass
    def fill_emit(s, p, x):
        if isinstance(x, tuple):
            if x[0] == "wv": p.wv(x[1], x[2])
            else: p.vm(x[1], x[2])
        elif x.startswith("buffer_"): p.vm(x, None)
        else: p.i(x)
    def prof(s, N): return [N * k // 8 for k in range(1, 8)]
    def header(s, a):
        a.begin_kernel(s.name)
        a("s_cmp_ge_u32 s2, 256")
        a("s_cbranch_scc1 %s_end" % s.name)
        if s.stamp is not None: stamp_begin(a)
        if s.selfpf: self_code_touch(a, s.name, "%s_end" % s.name, s.vCode, s.vJunk, s.sCode, 2)
    def footer(s, a, nagpr, lds):
        if s.stamp is not None:
            stamp_mid(a, 2); stamp_end(a, 40, s.stamp, s.sWave)
        a.label("%s_end" % s.name)
        a.end_kernel(s.name, s.VACC + s.NACC, nagpr, 102)
        a.launch(s.name, 256, 256, lds)

def touch_ops(g, skarg, vtmp, vdst, ssrd=64, soff=68):
    L = []
    srd_off(L.append, ssrd, skarg, 0, 1024 * 7168)
    L.append("s_lshl_b32 s%d, s2, 2" % soff)
    L.append("s_add_u32 s%d, s%d, s%d" % (soff, soff, g.sWave))
    L.append("s_mul_i32 s%d, s%d, 7168" % (soff, soff))
    L.append("v_lshlrev_b32 v%d, 6, v0" % vtmp)
    ops = [[[], "buffer_load_dword v%d, v%d, s[%d:%d], s%d offen" % (vdst, vtmp, ssrd, ssrd + 3, soff), ("T", 0), []],
           [[], "buffer_load_dword v%d, v%d, s[%d:%d], s%d offen offset:3072" % (vdst, vtmp, ssrd, ssrd + 3, soff), ("T", 1), []]]
    return L, ops

class G3(Gemm2):
    def __init__(s, AR=4, PD=3, R=5, pf=(30, 24, 364, 1), retouch=(150, 300), tfl='', dfl='', xbar=(), pk=False, pf0=8, TS=3, vpm=2, fill=12, fill_flags="", **kw):
        s.fill = fill; s.fill_flags = fill_flags
        kw.setdefault("npro", 7); kw.setdefault("rate", 0.66); kw.setdefault("st_flags", " sc1")
        super().__init__("g3_kernel", NRB=4, NF=14, SUB=2, NST=16, STB=28672, R=R, AR=AR, PD=PD, ndma=7, VACC=32, **kw)
        s.pf, s.TS, s.vpm = pf, TS, vpm
        s.sCode, s.retouch = 56, retouch
        s.tfl, s.dfl = tfl, dfl
        s.xbar_after = xbar
        s.pk = pk
        s.pf0 = pf0
        s.flag_after = {3: 1, 5: 3}
        s.extra_fill = None
        s.pair_order = [0, 1, 2, 3, 4, 5, 6]
        s.vC1 = [16, 17, 18, 19]; s.vT = 20
    def dma_text(s, st, n):
        pre = ["s_add_u32 m0, s%d, %d" % (s.sLdsW, (st % s.R) * s.STB + (n // 4) * 4096)] if n % 4 == 0 else []
        return pre, "buffer_load_dwordx4 v%d, s[%d:%d], s%d offen offset:%d%s lds" % (s.vD[n], s.sW, s.sW + 3, s.sDoff, (n % 4) * 1024, s.dfl)
    def dma_step(s, st): return 64 * 7168
    def rd_off(s, sub, j, h):
        mat, jj = divmod(j, 7)
        return (sub * 2 + mat) * 7168 + h * 16 * 224 + jj * 32
    def unit_order(s):
        u = [(st, sub, j) for st in range(s.NST - s.TS) for sub in range(s.SUB) for j in range(s.NF)]
        for p_ in s.pair_order:
            for st in range(s.NST - s.TS, s.NST):
                for sub in range(s.SUB):
                    u += [(st, sub, p_), (st, sub, p_ + 7)]
        return u
    def epi_pair(s, j):
        L = []
        if j % 2 == 1: L.append("s_add_u32 s45, s44, %d" % ((j // 2) * 16 * 1024))
        if j == 6: L.append("s_mov_b32 s45, s46")
        for i in range(s.NRB):
            g, u = s.acc(j, i), s.acc(j + 7, i)
            t = s.vT + 4 * (i % 2)
            o = g if j % 2 == 0 else s.acc(j - 1, i) + 2
            c = s.vC1[i]
            if s.pk:
                sel = "op_sel:[0,%d] op_sel_hi:[1,%d]" % (c % 2, c % 2)
                for r in (0, 2): L.append("v_pk_mul_f32 v[%d:%d], v[%d:%d], v[%d:%d] %s" % (t + r, t + r + 1, g + r, g + r + 1, c & ~1, (c & ~1) + 1, sel))
                for r in range(4):
                    L.append("v_exp_f32 v%d, v%d" % (t + r, t + r))
                    if r % 2 == 1: L.append("v_pk_mul_f32 v[%d:%d], v[%d:%d], v[%d:%d]" % (g + r - 1, g + r, g + r - 1, g + r, u + r - 1, u + r))
                for r in (0, 2): L.append("v_pk_add_f32 v[%d:%d], v[%d:%d], 1.0 op_sel_hi:[1,0]" % (t + r, t + r + 1, t + r, t + r + 1))
                for r in range(4): L.append("v_rcp_f32 v%d, v%d" % (t + r, t + r))
                if i and (j % 2 == 1 or j == 6): L.append("s_add_u32 s45, s45, %d" % (112 * 1024))
                for r in (0, 2): L.append("v_pk_mul_f32 v[%d:%d], v[%d:%d], v[%d:%d]" % (g + r, g + r + 1, g + r, g + r + 1, t + r, t + r + 1))
            else:
                for r in range(4): L.append("v_mul_f32 v%d, v%d, v%d" % (t + r, g + r, c))
                for r in range(4):
                    L.append("v_exp_f32 v%d, v%d" % (t + r, t + r))
                    L.append("v_mul_f32 v%d, v%d, v%d" % (g + r, g + r, u + r))
                for r in range(4): L.append("v_add_f32 v%d, 1.0, v%d" % (t + r, t + r))
                for r in range(4): L.append("v_rcp_f32 v%d, v%d" % (t + r, t + r))
                if i and (j % 2 == 1 or j == 6): L.append("s_add_u32 s45, s45, %d" % (112 * 1024))
                for r in range(4): L.append("v_mul_f32 v%d, v%d, v%d" % (g + r, g + r, t + r))
            L.append("v_cvt_pk_bf16_f32 v%d, v%d, v%d" % (o, g, g + 1))
            L.append("v_cvt_pk_bf16_f32 v%d, v%d, v%d" % (o + 1, g + 2, g + 3))
            if j == 6:
                L.append(("vm", "buffer_store_dwordx2 v[%d:%d], v1, s[%d:%d], s45 offen%s" % (o, o + 1, s.sO, s.sO + 3, " sc1" if s.fused else ""), ("st", j, i)))
            elif j % 2 == 1:
                L.append(("vm", "buffer_store_dwordx4 v[%d:%d], v1, s[%d:%d], s45 offen%s" % (o - 2, o + 1, s.sO, s.sO + 3, s.st_flags), ("st", j, i)))
        if s.fused and j in s.flag_after:
            pj = s.flag_after[j]
            L.append(("wv", ("stw", pj), [("st", pj, i) for i in range(s.NRB)]))
            L.append("v_mov_b32 v28, %d" % (pj // 2 + 1))
            L.append("v_mov_b32 v30, 0")
            L.append("buffer_store_dword v28, v30, s[60:63], s59 offen sc1")
        return L
    def valu_ready(s, units):
        last = {}
        for n, (st, sub, j) in enumerate(units): last[j % 7] = n
        out = {last[j] + 3: s.epi_pair(j) for j in range(7) if j not in s.defer_blocks}
        def pub(pj):
            return [("wv", ("stw", pj), [("st", pj, i) for i in range(s.NRB)]), "v_mov_b32 v28, %d" % (pj // 2 + 1), "v_mov_b32 v30, 0",
                    "buffer_store_dword v28, v30, s[60:63], s59 offen sc1"]
        s.deferred = []
        if s.defer_blocks == (4, 5, 6):
            e6 = s.epi_pair(6)
            s.deferred = pub(3) + s.epi_pair(4) + s.epi_pair(5) + e6[:54] + pub(5) + e6[54:]
        elif s.defer_blocks == (5, 6):
            e6 = s.epi_pair(6)
            s.deferred = pub(3) + s.epi_pair(5) + e6[:54] + pub(5) + e6[54:]
        else: assert not s.defer_blocks
        L = [("wv", "ssw", [("ss", i) for i in range(s.NRB)])]
        for i in range(s.NRB):
            b = s.vT
            for r in range(4): L.append("v_accvgpr_read_b32 v%d, a%d" % (b + r, s.aX + 4 * i + r))
            L.append("v_add_f32 v%d, v%d, v%d" % (b, b, b + 1))
            L.append("v_add_f32 v%d, v%d, v%d" % (b + 2, b + 2, b + 3))
            L.append("v_add_f32 v%d, v%d, v%d" % (b, b, b + 2))
            reduce_g4(L.append, b, b + 1)
            L.append("v_mov_b32 v%d, 0x%x" % (b + 1, f2u(1e-5)))
            L.append("v_fmac_f32 v%d, 0x%x, v%d" % (b + 1, f2u(1.0 / 1024), b))
            L.append("v_rsq_f32 v%d, v%d" % (b + 1, b + 1))
            L.append("s_nop 0")
            L.append("v_mul_f32 v%d, 0x%x, v%d" % (s.vC1[i], f2u(-LOG2E), b + 1))
        out[28 * 9] = L
        if s.extra_fill:
            k = s.extra_fill[0]
            while k in out: k += 1
            out[k] = s.extra_fill[1]
        return out
    def extra_vm(s):
        L = []
        for i in range(s.NRB):
            L.append((28 * 6 + 5 * i, 28 * 7, [[], "buffer_load_dwordx4 a[%d:%d], v29, s[%d:%d], s47 offen offset:%d%s" % (s.aX + 4 * i, s.aX + 4 * i + 3, s.sS, s.sS + 3, i * 1024, s.a_flags), ("ss", i), []]))
        if s.fill:
            for k in range(s.fill):
                post = ["s_add_u32 s69, s69, 4096"] if k % 4 == 3 else []
                L.append((28 * 4 + 9 * k, 28 * 5 + 9 * k, [[], "buffer_store_dwordx4 a[%d:%d], v29, s[52:55], s69 offen offset:%d%s" % (s.aF, s.aF + 3, (k % 4) * 1024, s.fill_flags), ("F", k), post]))
        if s.pf:
            n0, dn, m0_, dm = s.pf
            for k in range(16 - s.pf0):
                n = n0 + k * dn
                L.append((n, n, [[], "buffer_load_dword v31, v30, s[4:7], s70 offen" + s.tfl, ("T2", k), ["s_add_u32 s70, s70, %d" % (64 * 7168)]]))
            for k in range(2):
                n = m0_ + k * dm
                L.append((n, n, [["v_lshrrev_b32 v30, 3, v0", "v_lshlrev_b32 v30, 10, v30", "v_lshl_add_u32 v30, v0, 7, v30"] if k == 0 else [], "buffer_load_dword v31, v30, s[64:67], s68 offen", ("T3", k), ["s_add_u32 s68, s68, %d" % (7 * 2048)]]))
        return L
    def gen(s, a):
        NRB, sT, sWave, vT = s.NRB, s.sT, s.sWave, s.vT
        sNt, sMt = 33, 34
        if not s.after_k2: s.header(a)
        a("s_load_dwordx4 s[36:39], s[0:1], 48")
        a("s_load_dwordx4 s[48:51], s[0:1], 64")
        if not s.after_k2:
            a("s_load_dwordx2 s[40:41], s[0:1], 88")
            a("v_lshrrev_b32 v1, 6, v0")
            a("v_and_b32 v0, 63, v0")
            a("v_readfirstlane_b32 s%d, v1" % sWave)
        else:
            a("s_barrier")
            self_code_touch(a, s.name, "%s_end" % s.name, s.vCode, s.vJunk, s.sCode, 2, swave=sWave, tag="pc3")
        a("s_and_b32 s%d, s2, 7" % sT)
        a("s_lshl_b32 s%d, s%d, 2" % (sNt, sT))
        a("s_lshr_b32 s%d, s2, 3" % sT)
        a("s_and_b32 s%d, s%d, 3" % (sMt, sT))
        a("s_add_u32 s%d, s%d, s%d" % (sNt, sNt, sMt))
        a("s_lshr_b32 s%d, s%d, 2" % (sMt, sT))
        a("s_lshl_b32 s%d, s%d, 4" % (sT, sMt))
        a("s_mul_i32 s42, s%d, %d" % (sWave, NRB))
        a("s_add_u32 s42, s42, s%d" % sT)
        a("s_lshl_b32 s43, s42, 15")
        a("v_lshlrev_b32 v1, 4, v0")
        for i in range(NRB):
            a("s_add_u32 s%d, s43, %d" % (sT, i * 32768))
            a("v_add_u32 v%d, s%d, v1" % (s.vA[i], sT))
        a("s_lshl_b32 s47, s42, 10")
        for i in range(7):
            a("v_add_u32 v%d, %d, v0" % (vT, 64 * i))
            a("v_mul_u32_u24 v%d, 4682, v%d" % (vT + 1, vT))
            a("v_lshrrev_b32 v%d, 16, v%d" % (vT + 1, vT + 1))
            a("v_mul_u32_u24 v%d, %d, v%d" % (vT + 1, 7168 - 14 * 16, vT + 1))
            a("v_lshl_add_u32 v%d, v%d, 4, v%d" % (s.vD[i], vT, vT + 1))
            if i % 4:
                a("v_subrev_u32 v%d, %d, v%d" % (s.vD[i], (i % 4) * 1024, s.vD[i]))
        a("s_and_b32 s%d, s%d, 1" % (sT, sWave))
        a("s_mul_i32 s%d, s%d, %d" % (s.sDoff, sT, 32 * 7168))
        a("s_mul_i32 s32, s%d, 224" % sNt)
        a("s_add_u32 s%d, s%d, s32" % (s.sDoff, s.sDoff))
        a("s_lshl_b32 s%d, s%d, 1" % (sT, sT))
        a("s_bfe_u32 s32, s%d, 0x10001" % sWave)
        a("s_add_u32 s32, s32, s%d" % sT)
        a("s_mul_i32 s%d, s32, 7168" % s.sLdsW)
        a("s_waitcnt lgkmcnt(0)")
        a("s_bitcmp1_b32 s%d, 1" % sWave)
        a("s_cselect_b32 s%d, s38, s36" % s.sW)
        a("s_cselect_b32 s%d, s39, s37" % (s.sW + 1))
        a("s_and_b32 s%d, s%d, 0xffff" % (s.sW + 1, s.sW + 1))
        a("s_mov_b32 s%d, %d" % (s.sW + 2, 1024 * 7168))
        a("s_mov_b32 s%d, 0x00020000" % (s.sW + 3))
        srd_off(a, s.sA, 40, WS_HC, 4 * MB)
        if s.stamp is not None and not s.after_k2: stamp_mid(a, 3)
        aSS = s.aX
        tl, s.tops = touch_ops(s, 48, 30, 31)
        def early(p): pass
        def late(p):
            srd_off(p.i, s.sS, 40, WS_SS, 2048 * 64)
            srd_off(p.i, s.sO, 40, WS_ACT, 2048 * 3584 * 2)
            p.i("v_lshrrev_b32 v%d, 2, v0" % vT)
            p.i("v_mul_u32_u24 v%d, 224, v%d" % (vT, vT))
            p.i("v_and_b32 v%d, 3, v0" % (vT + 1))
            p.i("v_lshl_add_u32 v%d, v%d, 3, v%d" % (s.vB[0], vT + 1, vT))
            s.base_setup(p.i)
            p.i("v_mov_b32 v29, v1")
            p.i("s_mul_i32 s43, s42, %d" % (112 * 1024))
            p.i("v_add_u32 v1, s43, v1")
            p.i("s_lshr_b32 s%d, s%d, 4" % (sT, sNt))
            p.i("s_mul_i32 s46, s%d, %d" % (sT, 56 * 1024))
            p.i("s_and_b32 s%d, s%d, 15" % (sT, sNt))
            p.i("s_lshl_b32 s44, s%d, 10" % sT)
            p.i("s_add_u32 s44, s44, s46")
            p.i("s_lshr_b32 s%d, s%d, 1" % (sT, sT))
            p.i("s_lshl_b32 s%d, s%d, 10" % (sT, sT))
            p.i("s_add_u32 s46, s46, s%d" % sT)
            p.i("s_and_b32 s%d, s%d, 1" % (sT, sNt))
            p.i("s_lshl_b32 s%d, s%d, 3" % (sT, sT))
            p.i("s_add_u32 s46, s46, s%d" % sT)
            p.i("s_add_u32 s46, s46, %d" % (48 * 1024))
            if s.pf:
                srd_off(p.i, 64, 48, 0, 1024 * 7168)
                p.i("v_lshlrev_b32 v30, 7, v0")
                p.i("v_cmp_lt_u32 vcc, 6, v0")
                p.i("v_mov_b32 v%d, 0x40000000" % vT)
                p.i("s_lshr_b32 s70, s2, 3")
                p.i("v_cndmask_b32 v30, v30, v%d, vcc" % vT)
                p.i("s_lshl_b32 s70, s70, 2")
                p.i("s_add_u32 s70, s70, s%d" % sWave)
                p.i("s_mul_i32 s68, s70, %d" % (14 * 2048))
                p.i("s_bfe_u32 s71, s2, 0x10002")
                p.i("s_mul_i32 s71, s71, %d" % (1792 * 2048))
                p.i("s_add_u32 s68, s68, s71")
                p.i("s_and_b32 s71, s2, 1")
                p.i("s_lshl_b32 s71, s71, 10")
                p.i("s_add_u32 s68, s68, s71")
                p.i("s_bitcmp1_b32 s70, 6")
                p.i("s_cselect_b32 s4, s38, s36")
                p.i("s_cselect_b32 s5, s39, s37")
                p.i("s_and_b32 s5, s5, 0xffff")
                p.i("s_mov_b32 s6, %d" % (1024 * 7168))
                p.i("s_mov_b32 s7, 0x00020000")
                p.i("s_and_b32 s70, s70, 63")
                p.i("s_mul_i32 s70, s70, 7168")
                p.i("s_and_b32 s71, s2, 7")
                p.i("s_mul_i32 s71, s71, 896")
                p.i("s_add_u32 s70, s70, s71")
                p.i("s_add_u32 s70, s70, %d" % (s.pf0 * 64 * 7168))
            if s.fill:
                srd_off(p.i, 52, 40, WS_XB, s.fill * MB)
                p.i("s_lshl_b32 s69, s2, 2")
                p.i("s_add_u32 s69, s69, s%d" % sWave)
                p.i("s_mul_i32 s69, s69, %d" % (s.fill * 1024))
                for r in range(4): p.i("v_accvgpr_write_b32 a%d, -1" % (s.aF + r))
            if s.fused:
                srd_off(p.i, 60, 40, WS_FL, 8192)
                p.i("s_lshr_b32 s59, s42, 2")
                p.i("s_lshl_b32 s59, s59, 5")
                p.i("s_add_u32 s59, s59, s%d" % sNt)
                p.i("s_lshl_b32 s59, s59, 2")
        def gate(p):
            I = p.i
            I("s_lshr_b32 s%d, s42, 2" % sT)
            I("s_lshl_b32 s%d, s%d, 7" % (sT, sT))
            I("s_sub_u32 s32, 8, s%d" % sMt)
            I("s_and_b32 s32, s32, 7")
            I("s_lshl_b32 s32, s32, 2")
            I("s_sub_u32 s45, 3, s%d" % sWave)
            I("s_add_u32 s45, s45, s32")
            I("s_lshl_b32 s45, s45, 7")
            I("v_mov_b32 v%d, s%d" % (vT, sT))
            I("v_mov_b32 v%d, s45" % (vT + 1))
            I("v_cmp_gt_u32 vcc, 32, v0")
            I("s_sub_u32 s45, 4, s%d" % sWave)
            I("s_and_b32 s45, s45, 3")
            I("v_cndmask_b32 v%d, v%d, v%d, vcc" % (vT, vT + 1, vT))
            I("s_add_u32 s45, s45, s32")
            I("s_lshl_b32 s45, s45, 7")
            I("v_and_b32 v%d, 31, v0" % (vT + 1))
            I("v_lshlrev_b32 v%d, 2, v%d" % (vT + 1, vT + 1))
            I("v_add_u32 v%d, v%d, v%d" % (vT, vT, vT + 1))
            I("v_add_u32 v%d, s45, v%d" % (vT + 1, vT + 1))
            I("v_mov_b32 v%d, 1" % (vT + 2))
            I("v_mov_b32 v%d, 0" % (vT + 3))
            I("s_mov_b32 s32, 0")
            I("s_waitcnt vmcnt(%d)" % (2 * s.ndma + 1))
            p.vm("buffer_store_dword v%d, v%d, s[60:63], s35 offen sc1" % (vT + 2, vT + 3), ("k2f",))
            p.label("g234_spin")
            I("s_movk_i32 s45, 0x1000")
            p.vm("buffer_load_dword v%d, v%d, s[60:63], s45 offen sc1" % (vT + 4, vT), ("k2l", 0))
            p.vm("buffer_load_dword v%d, v%d, s[60:63], s45 offen sc1" % (vT + 5, vT + 1), ("k2l", 1))
            I("s_add_u32 s32, s32, 1")
            I("s_waitcnt vmcnt(0)")
            I("v_min_u32 v%d, v%d, v%d" % (vT + 4, vT + 4, vT + 5))
            I("v_cmp_ne_u32 vcc, 1, v%d" % (vT + 4))
            I("s_cmp_lt_u32 s32, 0x40000")
            I("s_cselect_b64 vcc, vcc, 0")
            I("s_cmp_lg_u64 vcc, 0")
            I("s_cbranch_scc1 g234_spin")
            if s.stamp is not None: I("s_memtime s[%d:%d]" % (SB + 8 + 2 * 3, SB + 9 + 2 * 3))
        if s.after_k2: s.gate = gate
        s.aF = aSS + 4 * NRB
        if s.fused: s.post_loop = lambda p: p.i("s_barrier")
        s.emit_main(a, early, late)
        s.nagpr = aSS + 4 * NRB + 4
        if not s.fused: s.footer(a, s.nagpr, s.R * s.STB)

class G4(Gemm2):
    def __init__(s, AR=4, PD=3, R=6, name="g4_kernel", NST=28, **kw):
        kw.setdefault("npro", 12)
        super().__init__(name, NRB=2, NF=4, SUB=4, NST=NST, STB=16896, R=R, AR=AR, PD=PD, ndma=4, VACC=64, **kw)
    def dma_text(s, st, n):
        pre = ["s_add_u32 m0, s%d, %d" % (s.sLdsW, (st % s.R) * s.STB)] if n == 0 else []
        return pre, "buffer_load_dwordx4 v%d, s[%d:%d], s%d offen offset:%d lds" % (s.vD[n], s.sW, s.sW + 3, s.sDoff, n * 1056)
    def dma_step(s, st): return 128 * 2048
    def rd_off(s, sub, j, h):
        return (sub // 2) * 8448 + (sub % 2) * 512 + h * 256 + j * 32
    def lane_addrs(s, a, vT):
        a("v_bfe_u32 v%d, v0, 2, 3" % vT)
        a("v_mul_u32_u24 v%d, 1056, v%d" % (vT, vT))
        a("v_lshrrev_b32 v%d, 5, v0" % (vT + 1))
        a("v_lshl_add_u32 v%d, v%d, 7, v%d" % (vT, vT + 1, vT))
        a("v_and_b32 v%d, 3, v0" % (vT + 1))
        a("v_lshl_add_u32 v%d, v%d, 3, v%d" % (s.vB[0], vT + 1, vT))
        s.base_setup(a)
    def extra_vm(s): return s.xops
    def gen(s, a):
        NRB, sT, sWave = s.NRB, s.sT, s.sWave
        vT = 20; vR2 = [16, 17]; vM = [18, 19]; vH = 32
        sNt, sMt, sH, sM = 33, 34, 48, 52
        s.header(a)
        a("s_load_dwordx4 s[36:39], s[0:1], 64")
        a("s_load_dwordx2 s[40:41], s[0:1], 88")
        a("v_lshrrev_b32 v1, 6, v0")
        a("v_and_b32 v0, 63, v0")
        a("v_readfirstlane_b32 s%d, v1" % sWave)
        a("s_bfe_u32 s%d, s2, 0x20001" % sT)
        a("s_lshl_b32 s%d, s%d, 2" % (sMt, sT))
        a("s_lshr_b32 s%d, s2, 6" % sT)
        a("s_add_u32 s%d, s%d, s%d" % (sMt, sMt, sT))
        a("s_and_b32 s%d, s2, 1" % sT)
        a("s_lshl_b32 s%d, s%d, 3" % (sNt, sT))
        a("s_bfe_u32 s%d, s2, 0x30003" % sT)
        a("s_add_u32 s%d, s%d, s%d" % (sNt, sNt, sT))
        a("s_lshl_b32 s42, s%d, 3" % sMt)
        a("s_lshl_b32 s%d, s%d, 1" % (sT, sWave))
        a("s_add_u32 s42, s42, s%d" % sT)
        a("s_mul_i32 s43, s42, %d" % (112 * 1024))
        a("v_lshlrev_b32 v1, 4, v0")
        for i in range(NRB):
            a("s_add_u32 s%d, s43, %d" % (sT, i * 112 * 1024))
            a("v_add_u32 v%d, s%d, v1" % (s.vA[i], sT))
        a("v_lshrrev_b32 v%d, 3, v0" % vT)
        a("v_lshlrev_b32 v%d, 14, v%d" % (vT, vT))
        a("v_and_b32 v%d, 7, v0" % (vT + 1))
        a("v_lshl_add_u32 v%d, v%d, 4, v%d" % (s.vD[0], vT + 1, vT))
        for n in range(1, 4):
            a("v_add_u32 v%d, %d, v%d" % (s.vD[n], n * (2048 - 1056), s.vD[0]))
        a("s_mul_i32 s%d, s%d, 4224" % (s.sLdsW, sWave))
        a("s_lshr_b32 s%d, s%d, 1" % (sT, sWave))
        a("s_lshl_b32 s%d, s%d, 17" % (s.sDoff, sT))
        a("s_and_b32 s%d, s%d, 1" % (sT, sWave))
        a("s_lshl_b32 s%d, s%d, 13" % (sT, sT))
        a("s_add_u32 s%d, s%d, s%d" % (s.sDoff, s.sDoff, sT))
        a("s_lshl_b32 s%d, s%d, 7" % (sT, sNt))
        a("s_add_u32 s%d, s%d, s%d" % (s.sDoff, s.sDoff, sT))
        a("s_waitcnt lgkmcnt(0)")
        srd_off(a, s.sW, 36, 0, 3584 * 2048)
        srd_off(a, s.sA, 40, WS_ACT, 2048 * 3584 * 2)
        if s.stamp is not None: stamp_mid(a, 3)
        n0 = (s.NST - 4) * s.NF * s.SUB
        s.xops = []
        for i in range(NRB):
            s.xops.append((n0, 10**9, [[], "buffer_load_dwordx4 v[%d:%d], v1, s[%d:%d], s47 offen offset:%d" % (48 + 4 * i, 51 + 4 * i, s.sS, s.sS + 3, i * 1024), ("ss", i), []]))
            for q in range(2):
                r = vH + (i * 2 + q) * 4
                s.xops.append((n0, 10**9, [[], "buffer_load_dwordx4 v[%d:%d], v1, s[%d:%d], s%d offen offset:%d" % (r, r + 3, sH, sH + 3, 45 + i, q * 1024), ("h", i, q), []]))
            s.xops.append((n0, 10**9, [[], "buffer_load_dword v%d, v%d, s[%d:%d], 0 offen offset:%d" % (vM[i], vT + 10, sM, sM + 3, i * 64), ("m", i), []]))
        def early(p): pass
        def late(p):
            s.lane_addrs(p.i, vT)
            srd_off(p.i, s.sS, 40, WS_SS, 2048 * 64)
            srd_off(p.i, s.sO, 38, 0, 2048 * 2048)
            srd_off(p.i, sH, 40, WS_HC, 4 * MB)
            srd_off(p.i, sM, 40, WS_MT, 8192)
            p.i("s_lshl_b32 s47, s42, 10")
            p.i("s_lshl_b32 s%d, s42, 15" % sT)
            p.i("s_lshl_b32 s45, s%d, 11" % sNt)
            p.i("s_add_u32 s45, s45, s%d" % sT)
            p.i("s_add_u32 s46, s45, 0x8000")
            p.i("v_and_b32 v%d, 15, v0" % vT)
            p.i("s_lshl_b32 s%d, s42, 4" % sT)
            p.i("v_add_u32 v%d, s%d, v%d" % (vT, sT, vT))
            p.i("v_lshlrev_b32 v%d, 2, v%d" % (vT + 10, vT))
            p.i("v_lshrrev_b32 v%d, 8, v%d" % (vT + 1, vT))
            p.i("v_and_b32 v%d, 255, v%d" % (vT, vT))
            p.i("v_lshl_add_u32 v%d, v%d, 3, v%d" % (vT, vT, vT + 1))
            p.i("v_lshlrev_b32 v%d, 11, v%d" % (vT, vT))
            p.i("v_lshrrev_b32 v%d, 4, v0" % (vT + 1))
            p.i("v_lshl_add_u32 v%d, v%d, 3, v%d" % (vT, vT + 1, vT))
            p.i("s_lshl_b32 s44, s%d, 7" % sNt)
        def tail(e):
            e.wv("side", [("ss", i) for i in range(NRB)] + [("h", i, q) for i in range(NRB) for q in range(2)] + [("m", i) for i in range(NRB)])
            for i in range(NRB):
                b = 48 + 4 * i
                e.i("v_add_f32 v%d, v%d, v%d" % (b, b, b + 1))
                e.i("v_add_f32 v%d, v%d, v%d" % (b + 2, b + 2, b + 3))
                e.i("v_add_f32 v%d, v%d, v%d" % (b, b, b + 2))
                reduce_g4(e.i, b, b + 1)
                e.i("v_mov_b32 v%d, 0x%x" % (b + 1, f2u(1e-5)))
                e.i("v_fmac_f32 v%d, 0x%x, v%d" % (b + 1, f2u(1.0 / 1024), b))
                e.i("v_rcp_f32 v%d, v%d" % (vR2[i], b + 1))
            for i in range(NRB):
                for j in range(4):
                    c = s.acc(j, i)
                    h = vH + (i * 2 + j // 2) * 4 + (j % 2) * 2
                    t = vT + 2 + 4 * (j % 2)
                    e.i("v_lshlrev_b32 v%d, 16, v%d" % (t, h))
                    e.i("v_and_b32 v%d, 0xffff0000, v%d" % (t + 1, h))
                    e.i("v_lshlrev_b32 v%d, 16, v%d" % (t + 2, h + 1))
                    e.i("v_and_b32 v%d, 0xffff0000, v%d" % (t + 3, h + 1))
                    for r in range(4): e.i("v_add_f32 v%d, v%d, v%d" % (t + r, t + r, vM[i]))
                    for r in range(4): e.i("v_fmac_f32 v%d, v%d, v%d" % (t + r, c + r, vR2[i]))
                    e.i("v_cvt_pk_bf16_f32 v%d, v%d, v%d" % (c, t, t + 1))
                    e.i("v_cvt_pk_bf16_f32 v%d, v%d, v%d" % (c + 1, t + 2, t + 3))
                    e.vm("buffer_store_dwordx2 v[%d:%d], v%d, s[%d:%d], s44 offen offset:%d" % (c, c + 1, vT, s.sO, s.sO + 3, j * 32))
                e.i("s_add_u32 s44, s44, %d" % (16 * 8 * 2048))
        s.tail = tail
        s.emit_main(a, early, late)
        s.footer(a, s.aX, s.R * s.STB)

class K2(G4):
    def __init__(s, PD=3, pf=False, xneed=12, **kw):
        kw.setdefault("npro", 14)
        kw.setdefault("rate", 0.7)
        super().__init__(AR=4, PD=PD, R=4, name="k2_kernel", NST=4, **kw)
        s.pf, s.xneed = pf, xneed
        s.aM = s.aX
        s.vAccM = 56
        s.vMl = 31
        s.vJunk = 30
        s.dt = 'f16'
        s.LM = s.R * s.STB
        s.LX = s.LM + 4096
    def dma_text(s, st, n):
        pre = ["s_add_u32 m0, s%d, %d" % (s.sLdsW, (st % s.R) * s.STB + 32 * n)]
        return pre, "buffer_load_dwordx4 v1, s[%d:%d], s%d offen offset:%d lds" % (s.sW, s.sW + 3, s.sDoff, n * 1024)
    def dma_step(s, st): return 16384
    def rdm(s, p, q):
        if q < 16:
            r = s.aM + 4 * (q % 4)
            p.ds("ds_read_b128 a[%d:%d], v%d offset:%d" % (r, r + 3, s.vMl, q * 64), ("M", q))
    def post_sync0(s, p):
        p.wv("vmw", [("vm",)])
        for q in range(3): s.rdm(p, q)
    def extra_unit(s, p, q):
        p.wl(("M", q), [("M", q)])
        r = s.aM + 4 * (q % 4)
        for i in range(s.NRB):
            c = s.vAccM + 4 * i
            src = "0" if q == 0 else "v[%d:%d]" % (c, c + 3)
            p.i("v_mfma_f32_16x16x32_f16 v[%d:%d], a[%d:%d], a[%d:%d], %s" % (c, c + 3, r, r + 3, s.aA(q, i), s.aA(q, i) + 3, src))
        s.rdm(p, q + 3)
    def gen(s, a):
        NRB, sT, sWave = s.NRB, s.sT, s.sWave
        vT = 20; vXM = [18, 19]; vX = 32; vXa = 16; vXr = 8
        sNt, sT1, sX, sM, sXM, sVM = 33, 34, 48, 52, 56, 60
        s.header(a)
        a("s_load_dwordx2 s[36:37], s[0:1], 0")
        a("s_load_dwordx2 s[38:39], s[0:1], 56")
        a("s_load_dwordx2 s[40:41], s[0:1], 88")
        a("v_lshrrev_b32 v1, 6, v0")
        a("v_and_b32 v0, 63, v0")
        a("v_readfirstlane_b32 s%d, v1" % sWave)
        a("s_and_b32 s%d, s2, 7" % sT1)
        a("s_bfe_u32 s%d, s2, 0x40003" % sNt)
        if s.pf:
            a("s_cmp_eq_u32 s%d, 4" % sWave)
            a("s_cbranch_scc1 k2_helper")
        a("s_lshr_b32 s%d, s2, 7" % sT)
        a("s_lshl_b32 s42, s%d, 4" % sT1)
        a("s_lshl_b32 s%d, s%d, 3" % (sT, sT))
        a("s_add_u32 s42, s42, s%d" % sT)
        a("s_lshl_b32 s%d, s%d, 1" % (sT, sWave))
        a("s_add_u32 s42, s42, s%d" % sT)
        a("s_lshl_b32 s43, s42, 14")
        a("v_lshlrev_b32 v1, 4, v0")
        for i in range(NRB):
            a("s_add_u32 s%d, s43, %d" % (sT, i * 16384))
            a("v_add_u32 v%d, s%d, v1" % (s.vA[i], sT))
        a("s_mul_i32 s%d, s%d, 4224" % (s.sLdsW, sWave))
        a("s_lshl_b32 s%d, s%d, 4" % (sT, sT1))
        a("s_add_u32 s%d, s%d, s%d" % (sT, sT, sNt))
        a("s_lshl_b32 s%d, s%d, 16" % (s.sDoff, sT))
        a("s_lshl_b32 s%d, s%d, 12" % (sT, sWave))
        a("s_add_u32 s%d, s%d, s%d" % (s.sDoff, s.sDoff, sT))
        a("s_lshl_b32 s45, s%d, 10" % sWave)
        a("s_add_u32 s45, s45, %d" % s.LM)
        a("s_lshl_b32 s46, s%d, 10" % sT1)
        a("s_waitcnt lgkmcnt(0)")
        srd_off(a, s.sW, 40, WS_V, 8 * MB)
        srd_off(a, s.sA, 40, WS_WSF, 2 * MB)
        srd_off(a, sVM, 40, WS_VM, 8192)
        if s.stamp is not None: stamp_mid(a, 3)
        s.xops = []
        for k in range(4):
            s.xops.append((0, s.xneed, [["s_add_u32 m0, s64, %d" % (k * 1024)],
                           "buffer_load_dwordx4 v%d, s[%d:%d], s47 offen lds" % (vXa + (k % 2), sX, sX + 3), ("x", k),
                           ["s_add_u32 s47, s47, %d" % (8 * 16384)]]))
        for i in range(NRB):
            s.xops.append((0, s.xneed, [[], "buffer_load_dword v%d, v%d, s[%d:%d], 0 offen offset:%d" % (vXM[i], vT + 3, sXM, sXM + 3, i * 64), ("xm", i), []]))
        def early(p):
            p.i("s_mov_b32 m0, s45")
            p.i("s_nop 0")
            p.vm("buffer_load_dwordx4 v1, s[%d:%d], s46 offen lds" % (sVM, sVM + 3), ("vm",))
        def late(p):
            s.lane_addrs(p.i, vT)
            p.i("v_lshrrev_b32 v%d, 4, v0" % vT)
            p.i("v_lshlrev_b32 v%d, 4, v%d" % (vT, vT))
            p.i("v_add_u32 v%d, s45, v%d" % (s.vMl, vT))
            p.i("v_and_b32 v%d, 15, v0" % vT)
            p.i("v_lshlrev_b32 v%d, 4, v%d" % (vT + 2, vT))
            p.i("s_lshl_b32 s%d, s42, 4" % sT)
            p.i("v_add_u32 v%d, s%d, v%d" % (vT + 3, sT, vT))
            p.i("v_lshlrev_b32 v%d, 2, v%d" % (vT + 3, vT + 3))
            p.i("v_lshrrev_b32 v%d, 3, v0" % (vT + 1))
            p.i("v_lshrrev_b32 v%d, 4, v0" % (vT + 4))
            p.i("v_and_b32 v%d, 7, v0" % (vT + 5))
            p.i("v_xor_b32 v%d, v%d, v%d" % (vT + 4, vT + 4, vT + 5))
            p.i("v_lshlrev_b32 v%d, 14, v%d" % (vT + 1, vT + 1))
            p.i("v_lshl_add_u32 v%d, v%d, 4, v%d" % (vXa, vT + 4, vT + 1))
            p.i("v_xor_b32 v%d, 64, v%d" % (vXa + 1, vXa))
            p.i("s_lshl_b32 s64, s%d, 12" % sWave)
            p.i("s_add_u32 s64, s64, %d" % s.LX)
            p.i("v_lshlrev_b32 v%d, 7, v%d" % (vT + 1, vT))
            p.i("v_add_u32 v%d, s64, v%d" % (vT + 1, vT + 1))
            p.i("v_bfe_u32 v%d, v0, 4, 1" % (vT + 4))
            p.i("v_lshl_add_u32 v%d, v%d, 3, v%d" % (vT + 1, vT + 4, vT + 1))
            p.i("v_lshrrev_b32 v%d, 5, v0" % (vT + 4))
            p.i("v_lshrrev_b32 v%d, 1, v%d" % (vT + 5, vT))
            p.i("v_xor_b32 v%d, v%d, v%d" % (vT + 4, vT + 4, vT + 5))
            for j in range(4):
                p.i("v_xor_b32 v%d, %d, v%d" % (vT + 5, 2 * j, vT + 4))
                p.i("v_lshl_add_u32 v%d, v%d, 4, v%d" % (vXr + j, vT + 5, vT + 1))
            p.i("s_lshr_b32 s47, s42, 4")
            p.i("s_and_b32 s%d, s42, 15" % sT)
            p.i("s_lshl_b32 s%d, s%d, 7" % (sT, sT))
            p.i("s_add_u32 s47, s47, s%d" % sT)
            p.i("s_lshl_b32 s47, s47, 11")
            p.i("s_lshl_b32 s%d, s%d, 7" % (sT, sNt))
            p.i("s_add_u32 s47, s47, s%d" % sT)
            srd_off(p.i, s.sS, 40, WS_SS, 2048 * 64)
            srd_off(p.i, s.sO, 40, WS_HC, 4 * MB)
            srd_off(p.i, sX, 36, 0, 2048 * 2048)
            srd_off(p.i, sM, 40, WS_MT, 8192)
            srd_off(p.i, sXM, 40, WS_XM, 8192)
            p.i("s_lshl_b32 s44, s42, 15")
            p.i("s_lshl_b32 s%d, s%d, 11" % (sT, sNt))
            p.i("s_add_u32 s44, s44, s%d" % sT)
            p.i("s_lshl_b32 s45, s42, 10")
            p.i("s_lshr_b32 s%d, s%d, 2" % (sT, sNt))
            p.i("s_lshl_b32 s%d, s%d, 8" % (sT, sT))
            p.i("s_add_u32 s45, s45, s%d" % sT)
            p.i("s_and_b32 s%d, s%d, 3" % (sT, sNt))
            p.i("s_lshl_b32 s%d, s%d, 2" % (sT, sT))
            p.i("s_add_u32 s45, s45, s%d" % sT)
        def tail(e):
            e.wv("side", [("x", k) for k in range(4)] + [("xm", i) for i in range(NRB)])
            for i in range(NRB):
                for j in range(4):
                    x = vX + (i * 4 + j) * 2
                    e.ds("ds_read_b64 v[%d:%d], v%d offset:%d" % (x, x + 1, vXr + j, i * 2048), ("xr", i, j))
            for i in range(NRB):
                m = vXM[i]
                e.i("v_add_f32 v%d, v%d, v%d" % (m, m, s.vAccM + 4 * i))
                ssr = 48 + 2 * i
                for j in range(4):
                    c = s.acc(j, i)
                    x = vX + (i * 4 + j) * 2
                    t = vT + 4
                    for r in range(4): e.i("v_sub_f32 v%d, v%d, v%d" % (c + r, c + r, m))
                    e.wl(("xr", i, j), [("xr", i, j)])
                    e.i("v_lshlrev_b32 v%d, 16, v%d" % (t, x))
                    e.i("v_and_b32 v%d, 0xffff0000, v%d" % (t + 1, x))
                    e.i("v_lshlrev_b32 v%d, 16, v%d" % (t + 2, x + 1))
                    e.i("v_and_b32 v%d, 0xffff0000, v%d" % (t + 3, x + 1))
                    for r in range(4): e.i("v_add_f32 v%d, v%d, v%d" % (t + r, t + r, c + r))
                    e.i("v_cvt_pk_bf16_f32 v%d, v%d, v%d" % (x, t, t + 1))
                    e.i("v_cvt_pk_bf16_f32 v%d, v%d, v%d" % (x + 1, t + 2, t + 3))
                    if j % 2 == 1:
                        e.vm("buffer_store_dwordx4 v[%d:%d], v1, s[%d:%d], s44 offen offset:%d%s" % (x - 2, x + 1, s.sO, s.sO + 3, (j // 2) * 1024, s.st_flags))
                    for r in range(4):
                        if j == 0 and r == 0: e.i("v_mul_f32 v%d, v%d, v%d" % (ssr, t, t))
                        else: e.i("v_fmac_f32 v%d, v%d, v%d" % (ssr, t + r, t + r))
                e.i("s_add_u32 s44, s44, 0x8000")
                reduce_g4(e.i, ssr, ssr + 1)
                e.vm("buffer_store_dword v%d, v%d, s[%d:%d], s45 offen offset:%d" % (ssr, vT + 2, s.sS, s.sS + 3, i * 1024))
            e.i("s_cmp_lg_u32 s%d, 0" % sNt)
            e.i("s_cbranch_scc1 %s_nomt" % s.name)
            for i in range(NRB):
                e.vm("buffer_store_dword v%d, v%d, s[%d:%d], 0 offen offset:%d" % (vXM[i], vT + 3, sM, sM + 3, i * 64))
            e.label("%s_nomt" % s.name)
        s.tail = tail
        s.emit_main(a, early, late)
        if s.stamp is not None:
            stamp_mid(a, 2); stamp_end(a, 40, s.stamp, s.sWave)
        if s.pf:
            a("s_branch %s_end" % s.name)
            a.label("k2_helper")
            a("s_waitcnt lgkmcnt(0)")
            srd_off(a, 64, 38, 0, 1024 * 7168)
            a("s_mul_i32 s68, s2, 28672")
            a("v_lshlrev_b32 v6, 6, v0")
            for k in range(7):
                a("buffer_load_dword v7, v6, s[64:67], s68 offen")
                a("s_add_u32 s68, s68, 4096")
            for k in range(s.NST): a("s_barrier")
        a.label("%s_end" % s.name)
        a.end_kernel(s.name, s.VACC + s.NACC, s.aM + 16, 102)
        a.launch(s.name, 256, 320 if s.pf else 256, s.LX + 16384)

class G4S(Gemm2):
    def __init__(s, SK=2, AR=None, PD=3, R=8, TS=1, LK=None, xfl=" sc1", l2pf=0, l2d=2, retouch=(200,), defer=True, lgrp=2, rc_ahead=28, **kw):
        kw.setdefault("npro", 8); kw.setdefault("rate", 0.57)
        s.l2pf, s.l2d = l2pf, l2d
        s.SK = SK
        NRB = SK
        AR = AR or (7 if SK == 4 else 10)
        s.LK = LK or (7 if SK == 4 else 8)
        s.KF = 8 // SK
        s.xfl = xfl
        super().__init__("g4_kernel", NRB=NRB, NF=8, SUB=2, NST=56 // SK, STB=16896, R=R, AR=AR, PD=PD, ndma=4, VACC=128, **kw)
        s.TS = TS
        s.retouch = retouch
        s.vCode = 10
        s.defer = defer
        s.lgrp, s.rc_ahead = lgrp, rc_ahead
        s.vD2 = [116, 117, 118, 119]
        s.vpm = 1
    def a_pre(s, q):
        if not (s.fused and q % 16 == 0): return []
        cpt = q // 16
        return [("wv", ("flw", cpt), [("fl", cpt)]),
                "v_cmp_gt_u32 vcc, %d, v12" % (cpt + 1), "s_nop 1", "s_cbranch_vccnz g34_slow%d" % cpt, ("label", "g34_cont%d" % cpt)]
    def slow_paths(s, a):
        for cpt in range(4):
            a.label("g34_slow%d" % cpt)
            if cpt == 0 and s.alt_path:
                for x in s.inherited:
                    if isinstance(x, tuple): a("s_waitcnt vmcnt(0)" if x[0] == "wv" else x[1])
                    else: a(x)
                a.label("g34_spin0")
            if s.backoff: a("s_sleep %d" % s.backoff)
            a("buffer_load_dword v12, v%d, s[4:7], 0 offen sc1" % (11 if cpt == 3 else 10))
            a("s_add_u32 s67, s67, 1")
            a("s_waitcnt vmcnt(0)")
            a("v_cmp_gt_u32 vcc, %d, v12" % (cpt + 1))
            a("s_cmp_lt_u32 s67, 0x40000")
            a("s_cselect_b64 s[68:69], vcc, 0")
            a("s_cmp_lg_u64 s[68:69], 0")
            if cpt == 0 and s.alt_path:
                a("s_cbranch_scc1 g34_spin0")
                for x in s.alt_loads: a(x)
                a("s_waitcnt vmcnt(0)")
                a("s_branch g34_join0")
            else:
                a("s_cbranch_scc1 g34_slow%d" % cpt)
                a("s_branch g34_cont%d" % cpt)
    def crow(s, kb):
        return (kb % 16) * 112 + (kb // 16) * 32 if kb < 48 else (kb - 48) * 224 + 96
    def is_late(s, st, n): return s.defer and st >= s.NST - s.LK and n >= 2
    def late_steps(s, units):
        if not s.defer: return {}
        first = {}
        for n, (st, sub, j) in enumerate(units):
            if st >= s.NST - s.LK and j < s.KF: first.setdefault(st, n)
        out = {}
        for st in first:
            g0 = s.NST - s.LK + (st - (s.NST - s.LK)) // s.lgrp * s.lgrp
            out[st] = first[g0]
        return out
    def dma_text(s, st, n):
        pre = []
        if n % 2 == 0:
            d = s.crow(2 * st + 1) - s.crow(2 * st)
            if n == 0 or s.is_late(st, n):
                pre.append("s_add_u32 s%d, s%d, %d" % (s.sDoff, {112: 27, 224: 30}[d], s.crow(2 * st) * 2048))
            pre.append("s_add_u32 m0, s%d, %d" % (s.sLdsW, ((st + s.slot0) % s.R) * s.STB + (0 if n else 4224)))
        v = (s.vD2 if st >= 24 else s.vD)[n]
        return pre, "buffer_load_dwordx4 v%d, s[%d:%d], s%d offen offset:%d lds" % (v, s.sW, s.sW + 3, s.sDoff, (n % 2) * 1056)
    def dma_step(s, st): return None
    def rd_off(s, sub, j, h): return sub * 8448 + (j // 4) * 4224 + h * 512 + (j % 4) * 32
    def unit_order(s):
        KF = s.KF
        u = [(st, sub, j) for st in range(s.NST - s.LK) for sub in range(s.SUB) for j in range(s.NF)]
        u += [(st, sub, j) for st in range(s.NST - s.LK, s.NST - s.TS) for sub in range(s.SUB) for j in range(KF, s.NF)]
        for pr in range(KF // 2, 4):
            for st in range(s.NST - s.TS, s.NST):
                for sub in range(s.SUB):
                    u += [(st, sub, 2 * pr), (st, sub, 2 * pr + 1)]
        u += [(st, sub, j) for st in range(s.NST - s.LK, s.NST) for sub in range(s.SUB) for j in range(KF)]
        return u
    def valu_ready(s, units):
        last = {}
        for n, (st, sub, j) in enumerate(units): last[j // 2] = n
        out = {}
        ppg = s.KF // 2
        for pr in range(ppg, 4):
            g, pi = divmod(pr, ppg)
            L = []
            for i in range(s.NRB):
                c0, c1 = s.acc(2 * pr, i), s.acc(2 * pr + 1, i)
                L.append("v_cvt_pk_bf16_f32 v%d, v%d, v%d" % (c0, c0, c0 + 1))
                L.append("v_cvt_pk_bf16_f32 v%d, v%d, v%d" % (c0 + 1, c0 + 2, c0 + 3))
                L.append("v_cvt_pk_bf16_f32 v%d, v%d, v%d" % (c0 + 2, c1, c1 + 1))
                L.append("v_cvt_pk_bf16_f32 v%d, v%d, v%d" % (c0 + 3, c1 + 2, c1 + 3))
                L.append("buffer_store_dwordx4 v[%d:%d], v1, s[%d:%d], s%d offen offset:%d%s" % (c0, c0 + 3, s.sX, s.sX + 3, s.sXo + g - 1, (i * ppg + pi) * 1024, s.xfl))
            out[last[pr] + (3 if s.NRB == 4 else 5)] = L
        k = s.side_fill[0]
        while k in out: k += 1
        out[k] = s.side_fill[1]
        if s.carry: out[0] = s.carry + s.late2
        return out
    def extra_vm(s): return s.xops
    def gen(s, a):
        NRB, sT, sWave, SK, KF = s.NRB, s.sT, s.sWave, s.SK, s.KF
        ppg = KF // 2
        vT = 20; vR2 = 16; vM = 32; vH = 36; vS = 52; vRc = 68
        NRC = (SK - 1) * 16
        sNt, sMt, sKk, sH, sM = 33, 34, 35, 48, 52
        s.sX, s.sXo = 56, 60
        KQ = 3584 // SK
        a_real = a
        if s.fused:
            PRE = []
            a = PRE.append
            t0, t1, vL16 = 4, 5, 29
            a("s_mov_b32 s70, s59")
            srd_off(a, 4, 40, WS_FL, 4096)
        else:
            t0, t1, vL16 = vT, vT + 1, 1
            s.header(a)
            a("s_load_dwordx4 s[36:39], s[0:1], 64")
            a("s_load_dwordx2 s[40:41], s[0:1], 88")
            a("v_lshrrev_b32 v1, 6, v0")
            a("v_and_b32 v0, 63, v0")
            a("v_readfirstlane_b32 s%d, v1" % sWave)
            a("v_lshlrev_b32 v1, 4, v0")
        assert SK == 2
        a("s_bfe_u32 s%d, s2, 0x10002" % sKk)
        a("s_bfe_u32 s%d, s2, 0x10001" % sT)
        a("s_lshl_b32 s%d, s%d, 3" % (sMt, sT))
        a("s_lshr_b32 s%d, s2, 5" % sT)
        a("s_add_u32 s%d, s%d, s%d" % (sMt, sMt, sT))
        a("s_and_b32 s%d, s2, 1" % sT)
        a("s_lshl_b32 s%d, s%d, 2" % (sNt, sT))
        a("s_bfe_u32 s%d, s2, 0x20003" % sT)
        a("s_add_u32 s%d, s%d, s%d" % (sNt, sNt, sT))
        a("s_mul_i32 s42, s%d, %d" % (sMt, 4 * NRB))
        a("s_mul_i32 s%d, s%d, %d" % (sT, sWave, NRB))
        a("s_add_u32 s42, s42, s%d" % sT)
        if s.fused:
            a("s_lshr_b32 s%d, s42, 2" % sT)
            a("s_lshl_b32 s%d, s%d, 7" % (sT, sT))
            a("s_lshl_b32 s71, s%d, 6" % sKk)
            a("s_add_u32 s%d, s%d, s71" % (sT, sT))
            a("v_and_b32 v10, 15, v0")
            a("v_lshlrev_b32 v10, 2, v10")
            a("v_add_u32 v10, s%d, v10" % sT)
            a("s_xor_b32 s71, s70, 64")
            a("v_mov_b32 v11, s71")
            a("v_cmp_gt_u32 vcc, 32, v0")
            a("s_mov_b32 s67, 0")
            a("s_nop 0")
            a("v_cndmask_b32 v11, v11, v10, vcc")
        a("s_mul_i32 s43, s42, %d" % (112 * 1024))
        a("s_mul_i32 s%d, s%d, %d" % (sT, sKk, KQ // 32 * 1024))
        a("s_add_u32 s43, s43, s%d" % sT)
        for i in range(NRB):
            a("s_add_u32 s%d, s43, %d" % (sT, i * 112 * 1024))
            a("v_add_u32 v%d, s%d, v%d" % (s.vA[i], sT, vL16))
        a("v_lshrrev_b32 v%d, 3, v0" % t0)
        a("v_lshlrev_b32 v%d, 13, v%d" % (t0, t0))
        a("v_and_b32 v%d, 7, v0" % t1)
        a("v_lshl_add_u32 v%d, v%d, 4, v%d" % (t0, t1, t0))
        a("s_lshl_b32 s%d, s%d, 7" % (sT, sKk))
        a("v_add_u32 v%d, s%d, v%d" % (s.vD[2], sT, t0))
        a("v_xor_b32 v%d, 128, v%d" % (s.vD[0], s.vD[2]))
        a("v_add_u32 v%d, %d, v%d" % (s.vD[1], 2048 - 1056, s.vD[0]))
        a("v_add_u32 v%d, %d, v%d" % (s.vD[3], 2048 - 1056, s.vD[2]))
        a("s_lshr_b32 s%d, s%d, 1" % (sT, sWave))
        a("s_mul_i32 s%d, s%d, 8448" % (s.sLdsW, sT))
        a("s_and_b32 s32, s%d, 1" % sWave)
        a("s_mul_i32 s%d, s32, 2112" % s.sDoff)
        a("s_add_u32 s%d, s%d, s%d" % (s.sLdsW, s.sLdsW, s.sDoff))
        a("s_mul_i32 s%d, s%d, %d" % (s.sDoff, sKk, KQ * 2048))
        a("s_lshl_b32 s32, s32, 12")
        a("s_add_u32 s%d, s%d, s32" % (s.sDoff, s.sDoff))
        a("s_lshl_b32 s32, s%d, 8" % sNt)
        a("s_add_u32 s%d, s%d, s32" % (s.sDoff, s.sDoff))
        for reg, d in ((27, 112), (30, 224)):
            a("s_mul_i32 s%d, s%d, %d" % (reg, sT, d * 2048))
            a("s_add_u32 s%d, s%d, s%d" % (reg, reg, s.sDoff))
        if not s.fused: a("s_waitcnt lgkmcnt(0)")
        srd_off(a, s.sW, 48 if s.fused else 36, 0, 3584 * 2048)
        srd_off(a, s.sA, 40, WS_ACT, 2048 * 3584 * 2)
        if s.fused:
            s.PRE = PRE
            a = a_real
            if s.pre_only: return
        if s.stamp is not None and not s.fused: stamp_mid(a, 3)
        n0 = (s.NST * 2 // 3) * s.NF * s.SUB
        big = n0 + 40
        s.xops = []
        for i in range(NRB):
            s.xops.append((n0, big, [[], "buffer_load_dwordx4 v[%d:%d], v1, s[%d:%d], s47 offen offset:%d%s" % (vS + 4 * i, vS + 4 * i + 3, s.sS, s.sS + 3, i * 1024, s.a_flags), ("ss", i), []]))
            for pi in range(ppg):
                r = vH + (i * ppg + pi) * 4
                s.xops.append((n0, big, [[], "buffer_load_dwordx4 v[%d:%d], v1, s[%d:%d], s45 offen offset:%d%s" % (r, r + 3, sH, sH + 3, pi * 1024, s.a_flags), ("h", i, pi),
                                         ["s_add_u32 s45, s45, 0x8000"] if pi == ppg - 1 else []]))
            s.xops.append((n0, big, [[], "buffer_load_dword v%d, v%d, s[%d:%d], 0 offen offset:%d%s" % (vM + i, vT + 10, sM, sM + 3, i * 64, s.a_flags), ("m", i), []]))
        if s.l2pf:
            assert SK == 2
            upc = 4 * s.NF * s.SUB
            for c in range(1, 7):
                for hh in range(s.l2pf):
                    s.xops.append((max(0, (c - s.l2d) * upc), -1, [[], "buffer_load_dword v31, v12, s[4:7], s70 offen offset:%d" % (hh * 64), ("L2", c, hh),
                                   ["s_add_u32 s70, s70, s71"] if hh == s.l2pf - 1 else []]))
        if s.fused:
            for cpt in (1, 2, 3):
                n = s.chk_steps[cpt]
                s.xops.append((n, n, [[], "buffer_load_dword v12, v%d, s[4:7], 0 offen sc1" % (11 if cpt == 3 else 10), ("fl", cpt), []]))
            n = s.chk_steps[0]
            s.xops.append((n, n, [[("wv", "allst", s.all_stores)], "buffer_store_dword v123, v124, s[4:7], s70 offen sc1", ("flst",), []]))
            if s.pub2 is not None:
                s.xops.append((s.pub2, s.pub2, [[("wv", "st3", [("st", 3, i) for i in range(4)])], "buffer_store_dword v125, v124, s[4:7], s70 offen sc1", ("flst2",), []]))
        def early(p): pass
        def late_min(p):
            p.i("v_bfe_u32 v4, v0, 2, 2")
            p.i("v_mul_u32_u24 v4, 1056, v4")
            p.i("v_lshrrev_b32 v5, 4, v0")
            p.i("v_lshl_add_u32 v4, v5, 7, v4")
            p.i("v_and_b32 v5, 3, v0")
            p.i("v_lshl_add_u32 v%d, v5, 3, v4" % s.vB[0])
            s.base_setup(p.i)
        def late(p):
            if s.fused:
                p.i("v_lshlrev_b32 v1, 4, v0")
                p.i("v_mov_b32 v123, 4")
                p.i("v_mov_b32 v124, 0")
                p.i("v_mov_b32 v125, 2")
            if s.l2pf:
                p.i("s_lshr_b32 s67, s2, 3")
                p.i("s_lshl_b32 s67, s67, 2")
                p.i("s_add_u32 s67, s67, s%d" % sWave)
                p.i("v_lshlrev_b32 v12, 7, v0")
                p.i("s_and_b32 s70, s2, 3")
                p.i("s_lshl_b32 s70, s70, 5")
                p.i("s_add_u32 s70, s70, s67")
                p.i("s_mul_i32 s70, s70, %d" % (112 * 1024))
                p.i("s_mul_i32 s%d, s%d, %d" % (sT, sKk, 56 * 1024))
                p.i("s_add_u32 s70, s70, s%d" % sT)
                p.i("s_add_u32 s70, s70, 8192")
                p.i("s_mul_i32 s68, s%d, %d" % (sKk, 1792 * 2048))
                p.i("s_lshl_b32 s%d, s67, 13" % sT)
                p.i("s_add_u32 s68, s68, s%d" % sT)
                p.i("s_add_u32 s68, s68, %d" % (524288 - 32 * 8192))
                p.i("s_mov_b32 s71, 524288")
                p.i("s_cmp_lt_u32 s67, 32")
                p.i("s_cselect_b32 s70, s70, s68")
                p.i("s_cselect_b32 s71, 8192, s71")
                p.i("s_cselect_b32 s4, s%d, s%d" % (s.sA, s.sW))
                p.i("s_cselect_b32 s5, s%d, s%d" % (s.sA + 1, s.sW + 1))
                p.i("s_cselect_b32 s6, s%d, s%d" % (s.sA + 2, s.sW + 2))
                p.i("s_mov_b32 s7, 0x00020000")
                p.i("s_cmp_lt_u32 s67, 96")
                p.i("s_cselect_b32 s6, s6, 0")
            p.i("v_bfe_u32 v%d, v0, 2, 2" % vT)
            p.i("v_mul_u32_u24 v%d, 1056, v%d" % (vT, vT))
            p.i("v_lshrrev_b32 v%d, 4, v0" % (vT + 1))
            p.i("v_lshl_add_u32 v%d, v%d, 7, v%d" % (vT, vT + 1, vT))
            p.i("v_and_b32 v%d, 3, v0" % (vT + 1))
            if not s.carry: p.i("v_lshl_add_u32 v%d, v%d, 3, v%d" % (s.vB[0], vT + 1, vT))
            p.i("v_lshrrev_b32 v%d, 5, v0" % vT)
            p.i("v_mul_u32_u24 v%d, %d, v%d" % (vT, 96 * 2048, vT))
            for k in range(4): p.i("v_add_u32 v%d, v%d, v%d" % (s.vD2[k], s.vD[k], vT))
            if not s.carry: s.base_setup(p.i)
            srd_off(p.i, s.sS, 40, WS_SS, 2048 * 64)
            srd_off(p.i, s.sO, 50 if s.fused else 38, 0, 2048 * 2048)
            srd_off(p.i, sH, 40, WS_HC, 4 * MB)
            srd_off(p.i, sM, 40, WS_MT, 8192)
            srd_off(p.i, s.sX, 40, WS_XB, (SK - 1) * 4 * MB)
            p.i("s_lshl_b32 s47, s42, 10")
            p.i("s_lshl_b32 s45, s42, 5")
            p.i("s_lshl_b32 s%d, s%d, 2" % (sT, sNt))
            p.i("s_add_u32 s45, s45, s%d" % sT)
            p.i("s_mul_i32 s%d, s%d, %d" % (sT, sKk, ppg))
            p.i("s_add_u32 s45, s45, s%d" % sT)
            p.i("s_lshl_b32 s45, s45, 10")
            p.i("s_lshl_b32 s44, s%d, 12" % sWave)
            p.i("s_lshl_b32 s63, s2, 14")
            p.i("s_add_u32 s63, s63, s44")
            p.i("s_xor_b32 s%d, s63, %d" % (s.sXo, 4 << 14))
            p.i("v_and_b32 v%d, 15, v0" % vT)
            p.i("s_lshl_b32 s%d, s42, 4" % sT)
            p.i("v_add_u32 v%d, s%d, v%d" % (vT + 10, sT, vT))
            p.i("v_lshlrev_b32 v%d, 2, v%d" % (vT + 10, vT + 10))
            p.i("s_lshl_b32 s64, s%d, 12" % sWave)
            p.i("s_add_u32 s64, s64, %d" % (s.R * s.STB))
            p.i("v_lshlrev_b32 v%d, 7, v%d" % (vT + 1, vT))
            p.i("v_add_u32 v%d, s64, v%d" % (vT + 1, vT + 1))
            p.i("v_bfe_u32 v%d, v0, 4, 1" % (vT + 2))
            p.i("v_lshl_add_u32 v%d, v%d, 3, v%d" % (vT + 1, vT + 2, vT + 1))
            p.i("v_lshrrev_b32 v%d, 5, v0" % (vT + 2))
            p.i("v_and_b32 v%d, 7, v0" % (vT + 3))
            p.i("v_xor_b32 v%d, v%d, v%d" % (vT + 2, vT + 2, vT + 3))
            for j in range(4):
                p.i("v_xor_b32 v%d, %d, v%d" % (vT + 3, 2 * j, vT + 2))
                p.i("v_lshl_add_u32 v%d, v%d, 4, v%d" % (vT + 4 + j, vT + 3, vT + 1))
            p.i("v_add_u32 v%d, s64, v1" % (vT + 8))
            p.i("v_lshrrev_b32 v%d, 3, v0" % (vT + 1))
            p.i("v_and_b32 v%d, 7, v0" % (vT + 2))
            p.i("v_xor_b32 v%d, v%d, v%d" % (vT + 2, vT + 2, vT + 1))
            p.i("v_lshlrev_b32 v%d, 14, v%d" % (vT + 1, vT + 1))
            p.i("v_lshl_add_u32 v%d, v%d, 4, v%d" % (vT, vT + 2, vT + 1))
            p.i("s_lshr_b32 s44, s42, 4")
            p.i("s_and_b32 s%d, s42, 15" % sT)
            p.i("s_lshl_b32 s%d, s%d, 7" % (sT, sT))
            p.i("s_add_u32 s44, s44, s%d" % sT)
            p.i("s_lshl_b32 s44, s44, 11")
            p.i("s_lshl_b32 s%d, s%d, 8" % (sT, sNt))
            p.i("s_add_u32 s44, s44, s%d" % sT)
            p.i("s_mul_i32 s%d, s%d, %d" % (sT, sKk, KF * 32))
            p.i("s_add_u32 s44, s44, s%d" % sT)
            p.i("s_mov_b32 s66, 0")
        vP = 84
        NU = s.NST * s.SUB * s.NF
        def rc_text(k):
            r = vRc + k * 4
            return "buffer_load_dwordx4 v[%d:%d], v1, s[%d:%d], s63 offen offset:%d%s" % (r, r + 3, s.sX, s.sX + 3, k * 1024, s.xfl)
        for k in range(4):
            n = NU - s.rc_ahead + k
            s.xops.append((n, n, [[], rc_text(k), ("rc", k), []]))
        F = [("wv", "side", [("ss", i) for i in range(NRB)] + [("h", i, pi) for i in range(NRB) for pi in range(ppg)] + [("m", i) for i in range(NRB)])]
        for i in range(NRB):
            b = vS + 4 * i
            F.append("v_add_f32 v%d, v%d, v%d" % (b, b, b + 1))
            F.append("v_add_f32 v%d, v%d, v%d" % (b + 2, b + 2, b + 3))
            F.append("v_add_f32 v%d, v%d, v%d" % (b, b, b + 2))
            reduce_g4(F.append, b, b + 1)
            F.append("v_mov_b32 v%d, 0x%x" % (b + 1, f2u(1e-5)))
            F.append("v_fmac_f32 v%d, 0x%x, v%d" % (b + 1, f2u(1.0 / 1024), b))
            F.append("v_rcp_f32 v%d, v%d" % (vR2 + i, b + 1))
        for i in range(NRB):
            for j in range(KF):
                h = vH + (i * ppg + j // 2) * 4 + 2 * (j % 2)
                t = vP + (i * KF + j) * 4
                F.append("v_lshlrev_b32 v%d, 16, v%d" % (t, h))
                F.append("v_and_b32 v%d, 0xffff0000, v%d" % (t + 1, h))
                F.append("v_lshlrev_b32 v%d, 16, v%d" % (t + 2, h + 1))
                F.append("v_and_b32 v%d, 0xffff0000, v%d" % (t + 3, h + 1))
                for r in range(4): F.append("v_add_f32 v%d, v%d, v%d" % (t + r, t + r, vM + i))
        s.side_fill = (NU - 56, F)
        def tail(e):
            def recv():
                for k in range(4): e.vm(rc_text(k), ("rc2", k))
            for i in range(NRB):
                for j in range(KF):
                    c = s.acc(j, i)
                    t = vP + (i * KF + j) * 4
                    for r in range(4): e.i("v_fmac_f32 v%d, v%d, v%d" % (t + r, c + r, vR2 + i))
            e.i("s_branch %s_chk" % s.name)
            e.label("%s_retry" % s.name)
            recv()
            e.label("%s_chk" % s.name)
            e.i("s_waitcnt vmcnt(0)")
            e.i("v_max_u32 v%d, v%d, v%d" % (vT + 2, vRc, vRc + 1))
            e.i("v_max_u32 v%d, v%d, v%d" % (vT + 3, vRc + 2, vRc + 3))
            for k in range(4, NRC, 4):
                e.i("v_max3_u32 v%d, v%d, v%d, v%d" % (vT + 2, vT + 2, vRc + k, vRc + k + 1))
                e.i("v_max3_u32 v%d, v%d, v%d, v%d" % (vT + 3, vT + 3, vRc + k + 2, vRc + k + 3))
            e.i("v_max_u32 v%d, v%d, v%d" % (vT + 2, vT + 2, vT + 3))
            e.i("v_cmp_eq_u32 vcc, -1, v%d" % (vT + 2))
            e.i("s_add_u32 s66, s66, 1")
            e.i("s_cmp_lt_u32 s66, 0x20000")
            e.i("s_cselect_b64 s[68:69], vcc, 0")
            e.i("s_cmp_lg_u64 s[68:69], 0")
            e.i("s_cbranch_scc1 %s_retry" % s.name)
            if s.stamp is not None: e.i("s_memtime s[%d:%d]" % (SB + 28, SB + 29))
            for i in range(NRB):
                for j in range(KF):
                    r = vRc + (i * ppg + j // 2) * 4 + 2 * (j % 2)
                    t = vP + (i * KF + j) * 4
                    u = vH + 4 * (j % 2)
                    e.i("v_lshlrev_b32 v%d, 16, v%d" % (u, r))
                    e.i("v_and_b32 v%d, 0xffff0000, v%d" % (u + 1, r))
                    e.i("v_lshlrev_b32 v%d, 16, v%d" % (u + 2, r + 1))
                    e.i("v_and_b32 v%d, 0xffff0000, v%d" % (u + 3, r + 1))
                    for q in range(4): e.i("v_fmac_f32 v%d, v%d, v%d" % (t + q, u + q, vR2 + i))
                    e.i("v_cvt_pk_bf16_f32 v%d, v%d, v%d" % (t, t, t + 1))
                    e.i("v_cvt_pk_bf16_f32 v%d, v%d, v%d" % (t + 1, t + 2, t + 3))
                    e.i("ds_write_b64 v%d, v[%d:%d] offset:%d" % (vT + 4 + j, t, t + 1, i * 2048))
            e.i("s_waitcnt lgkmcnt(0)")
            for k in range(4):
                e.i("ds_read_b128 v[%d:%d], v%d offset:%d" % (vRc + 4 * k, vRc + 4 * k + 3, vT + 8, k * 1024))
            for k in range(4):
                e.i("s_waitcnt lgkmcnt(%d)" % (3 - k))
                e.vm("buffer_store_dwordx4 v[%d:%d], v%d, s[%d:%d], s44 offen" % (vRc + 4 * k, vRc + 4 * k + 3, vT, s.sO, s.sO + 3))
                if k < 3: e.i("s_add_u32 s44, s44, %d" % (8 * 16384))
        s.tail = tail
        if s.carry:
            tmp = Stream(); late(tmp)
            s.late2 = [it[1] for it in tmp.items] + ["s_nop 0 ; late2 done"]
            late = late_min
        s.emit_main(a, early, late)
        if s.carry:
            done = s.fill_step["s_nop 0"]
            need = min([s.chk_steps[0], n0] + [v for k_, v in s.issue_step.items() if k_[0] == "D" and k_[1] >= 24])
            assert done < need, (done, need)
            s.late2_done = done
        s.nagpr = s.aX
        if not s.fused: s.footer(a, s.aX, s.R * s.STB + 16384)
    def prof(s, N): return [N * k // 7 for k in range(1, 7)]

class K2H(Gemm2):
    def __init__(s, PD=3, xneed=12, calc=False, **kw):
        kw.setdefault("npro", 12)
        kw.setdefault("rate", 1.0 if calc else 0.7)
        s.calc = calc
        super().__init__("k2_kernel", NRB=1, NF=4, SUB=4, NST=4, STB=16896, R=4, AR=4, PD=PD, ndma=4, VACC=64, **kw)
        s.xneed = xneed
        s.aM = s.aX
        s.vAccM = 56
        s.vMl = 31
        s.vJunk = 30
        s.dt = 'f16'
        s.LM = s.R * s.STB
        s.LX = s.LM + 8192
        if calc:
            s.afile = 'v'; s.vpm = 3
    def aA(s, q, i): return 80 + 4 * q if s.calc else Gemm2.aA(s, q, i)
    def a_ops(s, q): return [] if s.calc else Gemm2.a_ops(s, q)
    def valu_ready(s, units):
        if not s.calc: return {}
        L = []
        for kb in range(8):
            for h in range(2):
                b = 144 + kb * 8 + h * 4
                for r in range(4): L.append("v_sin_f32 v%d, v%d" % (b + r, b + r))
            for h in range(2):
                b = 144 + kb * 8 + h * 4
                d = s.aA(8 + kb, 0) + 2 * h
                L.append("v_cvt_pk_f16_f32 v%d, -v%d, -v%d" % (d, b, b + 1))
                L.append("v_cvt_pk_f16_f32 v%d, -v%d, -v%d" % (d + 1, b + 2, b + 3))
        return {0: L}
    def rd_off(s, sub, j, h):
        return (sub // 2) * 8448 + (sub % 2) * 512 + h * 256 + j * 32
    def dma_text(s, st, n):
        pre = ["s_add_u32 m0, s%d, %d" % (s.sLdsW, (st % s.R) * s.STB + 32 * n)]
        return pre, "buffer_load_dwordx4 v1, s[%d:%d], s%d offen offset:%d lds" % (s.sW, s.sW + 3, s.sDoff, n * 1024)
    def dma_step(s, st): return 16384
    def rdm(s, p, q):
        if q < 16:
            r = s.aM + 4 * (q % 4)
            p.ds("ds_read_b128 a[%d:%d], v%d offset:%d" % (r, r + 3, s.vMl, q * 64), ("M", q))
    def post_sync0(s, p):
        p.wv("vmw", [("vm", 0), ("vm", 1)])
        for q in range(3): s.rdm(p, q)
    def extra_unit(s, p, q):
        p.wl(("M", q), [("M", q)])
        r = s.aM + 4 * (q % 4)
        c = s.vAccM
        src = "0" if q == 0 else "v[%d:%d]" % (c, c + 3)
        p.i("v_mfma_f32_16x16x32_f16 v[%d:%d], a[%d:%d], %s[%d:%d], %s" % (c, c + 3, r, r + 3, s.afile, s.aA(q, 0), s.aA(q, 0) + 3, src))
        s.rdm(p, q + 3)
    def extra_vm(s): return [] if s.calc else s.xops
    def gen(s, a):
        sT, sWave = s.sT, s.sWave
        vT = 20; vXM = [18, 19]; vX = 32; vXa = 4; vXr = 8
        vHo, vSo, vRo = 16, 17, 3
        sNt, sT1, sX, sM, sXM, sVM = 33, 34, 48, 52, 56, 60
        s.header(a)
        a("s_load_dwordx2 s[36:37], s[0:1], 0")
        a("s_load_dwordx2 s[40:41], s[0:1], 88")
        a("v_lshrrev_b32 v1, 6, v0")
        a("v_and_b32 v0, 63, v0")
        a("v_readfirstlane_b32 s%d, v1" % sWave)
        a("s_and_b32 s%d, s2, 7" % sT1)
        a("s_bfe_u32 s%d, s2, 0x30003" % sNt)
        a("s_lshr_b32 s%d, s2, 6" % sT)
        a("s_lshl_b32 s42, s%d, 4" % sT1)
        a("s_lshl_b32 s%d, s%d, 2" % (sT, sT))
        a("s_add_u32 s42, s42, s%d" % sT)
        a("s_add_u32 s42, s42, s%d" % sWave)
        a("s_lshl_b32 s43, s42, 14")
        a("v_lshlrev_b32 v1, 4, v0")
        a("v_add_u32 v%d, s43, v1" % s.vA[0])
        a("s_mul_i32 s%d, s%d, 4224" % (s.sLdsW, sWave))
        a("s_lshl_b32 s%d, s%d, 3" % (sT, sT1))
        a("s_add_u32 s%d, s%d, s%d" % (sT, sT, sNt))
        a("s_lshl_b32 s%d, s%d, 16" % (s.sDoff, sT))
        a("s_lshl_b32 s47, s%d, 10" % sT)
        a("s_add_u32 s47, s47, %d" % (8192 - 1024))
        a("s_lshl_b32 s%d, s%d, 12" % (sT, sWave))
        a("s_add_u32 s%d, s%d, s%d" % (s.sDoff, s.sDoff, sT))
        a("s_lshl_b32 s45, s%d, 11" % sWave)
        a("s_add_u32 s45, s45, %d" % s.LM)
        a("s_lshl_b32 s46, s%d, 10" % sT1)
        a("s_waitcnt lgkmcnt(0)")
        srd_off(a, s.sW, 40, WS_V, 4 * MB)
        srd_off(a, s.sA, 40, WS_WSF, 2 * MB)
        srd_off(a, sVM, 40, WS_VM, 8192 + 65536)
        if s.stamp is not None and not s.fused: stamp_mid(a, 3)
        s.xops = []
        for k in range(4):
            s.xops.append((0, s.xneed, [["s_add_u32 m0, s64, %d" % (k * 1024)],
                           "buffer_load_dwordx4 v%d, s[%d:%d], 0 offen lds" % (vXa + k, sX, sX + 3), ("x", k), []]))
        s.xops.append((0, s.xneed, [[], "buffer_load_dword v%d, v%d, s[%d:%d], 0 offen" % (vXM[0], vT + 3, sXM, sXM + 3), ("xm", 0), []]))
        s.xops.append((0, s.xneed, [[], "buffer_load_dword v%d, v%d, s[%d:%d], 0 offen" % (vXM[1], vRo, sXM, sXM + 3), ("xm", 1), []]))
        def early(p):
            p.i("s_mov_b32 m0, s45")
            p.i("s_nop 0")
            p.vm("buffer_load_dwordx4 v1, s[%d:%d], s46 offen lds" % (sVM, sVM + 3), ("vm", 0))
            p.vm("buffer_load_dwordx4 v1, s[%d:%d], s47 offen offset:1024 lds" % (sVM, sVM + 3), ("vm", 1))
        def late(p):
            I = p.i
            I("v_bfe_u32 v%d, v0, 2, 3" % vT)
            I("v_mul_u32_u24 v%d, 1056, v%d" % (vT, vT))
            I("v_lshrrev_b32 v%d, 5, v0" % (vT + 1))
            I("v_lshl_add_u32 v%d, v%d, 7, v%d" % (vT, vT + 1, vT))
            I("v_and_b32 v%d, 3, v0" % (vT + 1))
            I("v_lshl_add_u32 v%d, v%d, 3, v%d" % (s.vB[0], vT + 1, vT))
            s.base_setup(I)
            I("v_lshrrev_b32 v%d, 4, v0" % vT)
            I("v_lshlrev_b32 v%d, 4, v%d" % (vT, vT))
            I("v_and_b32 v%d, 1, v0" % (vT + 1))
            I("v_lshl_add_u32 v%d, v%d, 10, v%d" % (vT, vT + 1, vT))
            I("v_add_u32 v%d, s45, v%d" % (s.vMl, vT))
            I("v_and_b32 v%d, 15, v0" % vT)
            I("v_lshlrev_b32 v%d, 4, v%d" % (vT + 2, vT))
            I("s_lshl_b32 s%d, s42, 4" % sT)
            I("v_add_u32 v%d, s%d, v%d" % (vT + 3, sT, vT))
            I("v_lshlrev_b32 v%d, 2, v%d" % (vT + 3, vT + 3))
            I("s_and_b32 s65, s42, 15")
            I("s_lshl_b32 s65, s65, 7")
            I("s_add_u32 s65, s65, s%d" % sT1)
            I("s_sub_u32 s66, 2048, s65")
            I("v_lshlrev_b32 v%d, 3, v%d" % (vT + 4, vT))
            I("v_sub_u32 v%d, s66, v%d" % (vT + 4, vT + 4))
            I("v_and_b32 v%d, 0x7ff, v%d" % (vT + 4, vT + 4))
            I("v_and_b32 v%d, 7, v%d" % (vT + 5, vT + 4))
            I("v_lshrrev_b32 v%d, 3, v%d" % (vT + 4, vT + 4))
            I("v_lshl_add_u32 v%d, v%d, 8, v%d" % (vT + 4, vT + 5, vT + 4))
            I("v_lshlrev_b32 v%d, 2, v%d" % (vRo, vT + 4))
            I("v_lshrrev_b32 v%d, 4, v%d" % (vT + 5, vT + 4))
            I("v_and_b32 v%d, 15, v%d" % (vT + 4, vT + 4))
            I("v_lshlrev_b32 v%d, 4, v%d" % (vT + 4, vT + 4))
            I("v_lshl_add_u32 v%d, v%d, 10, v%d" % (vSo, vT + 5, vT + 4))
            I("v_lshl_add_u32 v%d, v%d, 15, v%d" % (vHo, vT + 5, vT + 4))
            I("v_lshrrev_b32 v%d, 4, v0" % (vT + 5))
            I("v_xor_b32 v%d, 3, v%d" % (vT + 5, vT + 5))
            I("v_lshl_add_u32 v%d, v%d, 8, v%d" % (vHo, vT + 5, vHo))
            I("v_lshrrev_b32 v%d, 4, v0" % (vT + 4))
            I("v_and_b32 v%d, 7, v0" % (vT + 5))
            I("v_xor_b32 v%d, v%d, v%d" % (vT + 4, vT + 4, vT + 5))
            I("v_lshlrev_b32 v%d, 4, v%d" % (vT + 4, vT + 4))
            I("v_and_b32 v%d, 0x38, v0" % (vT + 5))
            I("s_lshl_b32 s67, s%d, 7" % sNt)
            I("s_sub_u32 s68, %d, s67" % (15 * 128))
            for k in range(4):
                if k < 2: I("v_add_u32 v%d, s65, v%d" % (vT + 6, vT + 5))
                else: I("v_sub_u32 v%d, s66, v%d" % (vT + 6, vT + 5))
                if k % 2:
                    I("v_add_u32 v%d, %d, v%d" % (vT + 6, 64 if k < 2 else -64, vT + 6))
                I("v_and_b32 v%d, 0x7ff, v%d" % (vT + 6, vT + 6))
                I("v_lshl_add_u32 v%d, v%d, 11, v%d" % (vT + 6, vT + 6, vT + 4))
                if k % 2: I("v_xor_b32 v%d, 64, v%d" % (vT + 6, vT + 6))
                I("v_add_u32 v%d, s%d, v%d" % (vXa + k, 67 if k < 2 else 68, vT + 6))
            I("s_lshl_b32 s64, s%d, 12" % sWave)
            I("s_add_u32 s64, s64, %d" % s.LX)
            I("v_lshlrev_b32 v%d, 7, v%d" % (vT + 1, vT))
            I("v_add_u32 v%d, s64, v%d" % (vT + 1, vT + 1))
            I("v_bfe_u32 v%d, v0, 4, 1" % (vT + 4))
            I("v_lshl_add_u32 v%d, v%d, 3, v%d" % (vT + 1, vT + 4, vT + 1))
            I("v_lshrrev_b32 v%d, 5, v0" % (vT + 4))
            I("v_lshrrev_b32 v%d, 1, v%d" % (vT + 5, vT))
            I("v_xor_b32 v%d, v%d, v%d" % (vT + 4, vT + 4, vT + 5))
            for j in range(4):
                I("v_xor_b32 v%d, %d, v%d" % (vT + 5, 2 * j, vT + 4))
                I("v_lshl_add_u32 v%d, v%d, 4, v%d" % (vXr + j, vT + 5, vT + 1))
            I("v_add_u32 v12, 16, v0")
            I("v_and_b32 v12, 63, v12")
            I("v_lshlrev_b32 v12, 2, v12")
            srd_off(I, s.sS, 40, WS_SS, 2048 * 64)
            srd_off(I, s.sO, 40, WS_HC, 4 * MB)
            srd_off(I, sX, 36, 0, 2048 * 2048)
            srd_off(I, sM, 40, WS_MT, 8192)
            srd_off(I, sXM, 40, WS_XM, 8192)
            I("s_lshl_b32 s44, s42, 15")
            I("s_lshl_b32 s%d, s%d, 11" % (sT, sNt))
            I("s_add_u32 s44, s44, s%d" % sT)
            I("s_sub_u32 s69, %d, s%d" % (15 * 2048, sT))
            for dst, src in ((45, sNt), (70, 71)):
                if dst == 70: I("s_sub_u32 s71, 15, s%d" % sNt)
                I("s_lshr_b32 s%d, s%d, 2" % (sT, src))
                I("s_lshl_b32 s%d, s%d, 8" % (dst, sT))
                I("s_and_b32 s%d, s%d, 3" % (sT, src))
                I("s_lshl_b32 s%d, s%d, 2" % (sT, sT))
                I("s_add_u32 s%d, s%d, s%d" % (dst, dst, sT))
            I("s_lshl_b32 s%d, s42, 10" % sT)
            I("s_add_u32 s45, s45, s%d" % sT)
            I("v_cmp_lt_u32 s[38:39], 47, v0")
            if s.calc:
                for x in s.xops: s.put(p, x[2])
                s.xops_done = True
                I("v_lshlrev_b32 v%d, 3, v%d" % (vT + 4, vT))
                I("v_add_u32 v%d, s65, v%d" % (vT + 4, vT + 4))
                I("v_cvt_f32_u32 v%d, v%d" % (vT + 4, vT + 4))
                I("v_mul_f32 v%d, 0x%x, v%d" % (vT + 4, f2u(1.0 / 2048), vT + 4))
                I("v_lshrrev_b32 v%d, 4, v0" % (vT + 5))
                I("v_lshlrev_b32 v%d, 2, v%d" % (vT + 5, vT + 5))
                I("v_cvt_f32_u32 v%d, v%d" % (vT + 5, vT + 5))
                I("v_mul_f32 v%d, v%d, v%d" % (vT + 5, vT + 5, vT + 4))
                for kb in range(8):
                    for h in range(2):
                        b = 144 + kb * 8 + h * 4
                        for r in range(4):
                            I("v_fmamk_f32 v%d, v%d, 0x%x, v%d" % (b + r, vT + 4, f2u(float(32 * kb + 16 * h + r)), vT + 5))
                            I("v_fract_f32 v%d, v%d" % (b + r, b + r))
                            I("v_cos_f32 v%d, v%d" % (48 + 4 * h + r, b + r))
                    for h in range(2):
                        d = s.aA(kb, 0) + 2 * h
                        I("v_cvt_pk_f16_f32 v%d, v%d, v%d" % (d, 48 + 4 * h, 49 + 4 * h))
                        I("v_cvt_pk_f16_f32 v%d, v%d, v%d" % (d + 1, 50 + 4 * h, 51 + 4 * h))
            if s.fused:
                I("s_lshr_b32 s35, s42, 2")
                I("s_lshl_b32 s35, s35, 3")
                I("s_add_u32 s35, s35, s%d" % sNt)
                I("s_lshl_b32 s35, s35, 2")
                I("s_add_u32 s35, s35, s%d" % sWave)
                I("s_lshl_b32 s35, s35, 2")
                I("s_add_u32 s35, s35, 4096")
        def tail(e):
            R_ = 48
            for j in range(4):
                e.ds("ds_bpermute_b32 v%d, v12, v%d" % (R_ + j, s.acc(j, 0)), ("bp", j))
            e.wv("side", [("x", k) for k in range(4)] + [("xm", i) for i in range(2)])
            for j in range(4):
                e.ds("ds_read_b64 v[%d:%d], v%d" % (vX + 2 * j, vX + 2 * j + 1, vXr + j), ("xr", 0, j))
            for j in range(4):
                e.i("v_xor_b32 v%d, 24, v%d" % (vXr + j, vXr + j))
                e.ds("ds_read_b64 v[%d:%d], v%d offset:2048" % (vX + 8 + 2 * j, vX + 8 + 2 * j + 1, vXr + j), ("xr", 1, j))
            for i in range(2):
                e.i("v_add_f32 v%d, v%d, v%d" % (vXM[i], vXM[i], s.vAccM))
            e.i("v_mov_b32 v%d, v%d" % (R_ + 4, s.vAccM + 1))
            e.wl("bpw", [("bp", j) for j in range(4)])
            for j in range(4):
                e.i("v_cndmask_b32 v%d, v%d, v%d, s[38:39]" % (R_ + j, R_ + j, R_ + j + 1))
            for i in range(2):
                m = vXM[i]
                ssr = 60 + 2 * i
                for j in range(4):
                    c = s.acc(j, 0) if i == 0 else s.acc(3 - j, 0)
                    src = [c, c + 1, c + 2, c + 3] if i == 0 else [R_ + 3 - j, c + 3, c + 2, c + 1]
                    x = vX + (i * 4 + j) * 2
                    t = vT + 4
                    e.wl(("xr", i, j), [("xr", i, j)])
                    e.i("v_lshlrev_b32 v%d, 16, v%d" % (t, x))
                    e.i("v_and_b32 v%d, 0xffff0000, v%d" % (t + 1, x))
                    e.i("v_lshlrev_b32 v%d, 16, v%d" % (t + 2, x + 1))
                    e.i("v_and_b32 v%d, 0xffff0000, v%d" % (t + 3, x + 1))
                    for r in range(4): e.i("v_sub_f32 v%d, v%d, v%d" % (t + r, t + r, m))
                    for r in range(4): e.i("v_add_f32 v%d, v%d, v%d" % (t + r, t + r, src[r]))
                    e.i("v_cvt_pk_bf16_f32 v%d, v%d, v%d" % (x, t, t + 1))
                    e.i("v_cvt_pk_bf16_f32 v%d, v%d, v%d" % (x + 1, t + 2, t + 3))
                    if j % 2 == 1:
                        e.vm("buffer_store_dwordx4 v[%d:%d], v%d, s[%d:%d], s%d offen offset:%d%s" % (x - 2, x + 1, 1 if i == 0 else vHo, s.sO, s.sO + 3, 44 if i == 0 else 69, (j // 2) * 1024, s.st_flags))
                    for r in range(4):
                        if j == 0 and r == 0: e.i("v_mul_f32 v%d, v%d, v%d" % (ssr, t, t))
                        else: e.i("v_fmac_f32 v%d, v%d, v%d" % (ssr, t + r, t + r))
                reduce_g4(e.i, ssr, ssr + 1)
                e.vm("buffer_store_dword v%d, v%d, s[%d:%d], s%d offen%s" % (ssr, vT + 2 if i == 0 else vSo, s.sS, s.sS + 3, 45 if i == 0 else 70, s.st_flags))
            e.i("s_cmp_lg_u32 s%d, 0" % sNt)
            e.i("s_cbranch_scc1 %s_nomt" % s.name)
            e.vm("buffer_store_dword v%d, v%d, s[%d:%d], 0 offen%s" % (vXM[0], vT + 3, sM, sM + 3, s.st_flags))
            e.label("%s_nomt" % s.name)
        s.tail = tail
        s.emit_main(a, early, late)
        if s.calc: s.NACC = 208 - s.VACC
        if not s.fused: s.footer(a, s.aM + 16, s.LX + 16384)

def gen_g34(a, stamp, c3, c4, c2=None):
    if "chk_steps" not in c4:
        lead = c4.get("chk_lead", 15)
        t4 = dict(c4); t4["chk_steps"] = {0: c4.get("pub4", 24), 1: 10, 2: 11, 3: 12}
        gen_g34(Asm(), stamp, c3, t4, c2)
        info = gen_g34.info
        t4["chk_steps"] = {0: c4.get("pub4", 24), 1: info[1] - lead, 2: info[2] - lead, 3: info[3] - lead}
        return gen_g34(a, stamp, c3, t4, c2)
    c4 = dict(c4); c3 = dict(c3)
    c4.pop("chk_lead", None); c4.pop("pub4", None)
    chk = c4.pop("chk_steps")
    order = c3.pop("order", (0, 1, 6, 2, 3, 4, 5))
    flag_after = c3.pop("flag_after", {6: 1})
    pub2 = c4.pop("pub2", 0)
    backoff = c4.pop("backoff", 0)
    wpre = c4.pop("wpre", 412)
    dblocks = c3.pop("dblocks", ())
    vpm4 = c4.pop("vpm4", 1)
    alt = c4.pop("alt", False)
    pre_at = c3.pop("pre_at", 368)
    fl0 = c3.pop("fl0", 440)
    g3 = G3(stamp=stamp, **c3); g4 = G4S(stamp=stamp, **c4)
    g3.name = g4.name = "g34_kernel"
    g3.fused = g4.fused = True
    g3.handover = True
    g3.defer_blocks = tuple(dblocks)
    if dblocks:
        g4.VACC = 144
        g4.vpm = vpm4
    g3.pair_order = list(order); g3.flag_after = flag_after
    g3.fill_flags = " sc1"
    g4.a_flags = " sc1"
    g4.selfpf = False
    g4.chk_steps = chk
    g4.alt_path = alt
    g4.pub2 = pub2
    g4.backoff = backoff
    g4.all_stores = [("st", j, i) for j in (1, 3, 5, 6) for i in range(4)]
    g3.prof = lambda N: []
    g3.m_prof = 4
    g4.m_start, g4.m_end, g4.m_prof = 5, 6, 7
    g4.prof = lambda N: [N // 4, N // 2, 3 * N // 4]
    g4.pre_only = True
    g4.gen(a)
    if c2 is not None:
        c2 = dict(c2); c2["st_flags"] = " sc1"
        k2 = K2H(stamp=stamp, **c2)
        k2.name = "g34_kernel"; k2.fused = True
        k2.stamp_keep = stamp
        k2.prof = lambda N: []
        k2.m_start, k2.m_end = 9, 9
        a.label("k2_kernel") if False else None
        k2.gen(a)
        g3.after_k2 = True
        g3.a_flags = " sc1"
        g4.prof = lambda N: [N // 3, 2 * N // 3]
    g3.extra_fill = (pre_at, g4.PRE)
    g3.late_x = [(fl0, fl0, [[], "buffer_load_dword v12, v10, s[4:7], 0 offen sc1", ("fl", 0), []])]
    if wpre:
        assert g3.TS == 3 and g3.R == 5
        g4.slot0, g4.pre_stages = 2, 3
        n = wpre
        for st in range(3):
            for op in g4.dma_ops(st):
                if n == fl0: n += 1
                g3.late_x.append((n, n, op)); n += 2
    g3.gen(a)
    assert not any(x in g3.leftover for x in g4.PRE[-3:]), "pre-setup must finish inside the g3 loop"
    assert g3.last_vm_step < pre_at, g3.last_vm_step
    assert "v_mov_b32 v28, 1" not in g3.leftover, "first progress flag must be published before the first flag check"
    i1 = [k for k, it in enumerate(g3.stream.items) if it[1] == "v_mov_b32 v28, 1"][0]
    assert any(it[0] == 'vm' and "s59 offen sc1" in it[1] for it in g3.stream.items[i1:]), "flag store not inside g3 loop"
    g4.pre_only = False
    g4.inherited = g3.leftover
    g4.carry = g3.deferred
    g4.prev_streams = [g3.stream]
    g4.gen(a)
    gen_g34.info = {c_: g4.issue_step.get(("A", 16 * c_, 0)) for c_ in (1, 2, 3)}
    if stamp is not None: stamp_end(a, 40, stamp, g4.sWave)
    a("s_branch g34_kernel_end")
    g4.slow_paths(a)
    a.label("g34_kernel_end")
    a.end_kernel("g34_kernel", 256, max(g3.nagpr, g4.nagpr), 102)
    a.launch("g34_kernel", 256, 256, max(g3.R * g3.STB, g4.R * g4.STB + 16384))
```

```python
import sys
from common import *
from gemm2 import *
import k1b, k1c
HEADER = """pre-LN FNet mixing + pre-LN SwiGLU FFN for gfx950 (hand-written generator output, 3 launches).
The DFT matrices are seed-independent constants, so the 2-D DFT is evaluated through its factorisation:
k1 : LayerNorm(x) per row; 1024-point DFT along hidden as two 32x32 MFMA stages (f16, f32 accumulate) with twiddle;
     radix-8 step of the 2048-point sequence DFT; only columns [0,512] are kept (real input => y[S-t,D-e] = y[t,e]).
     Also writes the 256-point twiddle fragments, resets the hand-off flags, warms caches with weights/code.
k2 : remaining 256-point part of the sequence DFT as batched GEMM (K=512), residual add, row centering,
     per-row partial sums of squares (LayerNorm2 scale is applied later), direct + mirrored tile per workgroup.
g34: gate/up GEMM (256x224 tiles) + SiLU*up, then down GEMM (128x128 tiles, split-K 2) + residual in the same launch.
     Hand-off between workgroups inside g34: write-through (sc1) stores, per-wave progress flags / sentinel words,
     sc1 loads; placement independent; all spins are bounded."""
def build(stamp=False, c3={}, c4={}, c2={}, c1={}, split=True, herm=True, fuse=1):
    a = Asm()
    (k1c if herm else k1b).gen_k1(a, stamp=0 if stamp else None, **c1)
    if fuse < 2: (K2H if herm else K2)(stamp=1 if stamp else None, **c2).gen(a)
    c3 = dict(c3); c3.setdefault('fill', 4 * (c4.get('SK', 2) - 1) if split else 0)
    if fuse:
        gen_g34(a, (2 if fuse < 2 else 1) if stamp else None, c3, c4, c2 if fuse == 2 else None)
    else:
        G3(stamp=2 if stamp else None, **c3).gen(a)
        (G4S if split else G4)(stamp=3 if stamp else None, **c4).gen(a)
    a.label('code_end')
    return a.text(HEADER)
if __name__ == "__main__":
    out = sys.argv[1] if len(sys.argv) > 1 else "sequential_preLN__spectral_fnet__swiglu_ffn__prompt.s"
    open(out, "w").write(build())
```

```python
from asmlib import *
from sched import *
import struct

MB = 1 << 20
import os as _os
_L = _os.environ.get("WSL", "new")
_B = int(_os.environ.get("WSB", "0")) * MB
if _L == "old":
    WS_V, WS_VM, WS_XM, WS_WSF, WS_HC, WS_MT, WS_SS, WS_ACT, WS_XB = 0, 8 * MB, 9 * MB, 10 * MB, 16 * MB, 20 * MB, 21 * MB, 32 * MB, 64 * MB
else:
    WS_V = _B
    WS_WSF = _B + 4 * MB
    WS_VM = _B + 6 * MB
    WS_XM = _B + 6 * MB + 128 * 1024
    WS_MT = _B + 6 * MB + 136 * 1024
    WS_SS = _B + 6 * MB + 256 * 1024
    WS_FL = _B + 6 * MB + 160 * 1024
    WS_HC = _B + 8 * MB
    WS_XB = _B + 12 * MB
    WS_ACT = _B + 16 * MB
WS_STAMP = 200 * MB
LOG2E = 1.4426950408889634

def f2u(x):
    return struct.unpack("<I", struct.pack("<f", x))[0]

def srd_off(a, d, base, off, nbytes):
    if off:
        a("s_add_u32 s%d, s%d, 0x%x" % (d, base, off))
        a("s_addc_u32 s%d, s%d, 0" % (d + 1, base + 1))
        a("s_and_b32 s%d, s%d, 0xffff" % (d + 1, d + 1))
    else:
        a("s_mov_b32 s%d, s%d" % (d, base))
        a("s_and_b32 s%d, s%d, 0xffff" % (d + 1, base + 1))
    a("s_mov_b32 s%d, 0x%x" % (d + 2, nbytes))
    a("s_mov_b32 s%d, 0x00020000" % (d + 3))

SB = 72
NMID = 11
def stamp_begin(a, sb=SB):
    a("s_memtime s[%d:%d]" % (sb, sb + 1))
    a("s_memrealtime s[%d:%d]" % (sb + 2, sb + 3))
    for k in range(NMID): a("s_mov_b64 s[%d:%d], 0" % (sb + 8 + 2 * k, sb + 9 + 2 * k))
def stamp_mid(a, k=0, sb=SB):
    a("s_memtime s[%d:%d]" % (sb + 8 + 2 * k, sb + 9 + 2 * k))
def stamp_end(a, sws, slot, swave, sb=SB):
    a("s_waitcnt vmcnt(0) lgkmcnt(0)")
    a("s_memtime s[%d:%d]" % (sb + 4, sb + 5))
    a("s_memrealtime s[%d:%d]" % (sb + 6, sb + 7))
    a("s_waitcnt lgkmcnt(0)")
    srd_off(a, 8, sws, WS_STAMP + slot * MB, MB)
    a("s_lshl_b32 s12, s2, 4")
    a("s_add_u32 s12, s12, s%d" % swave)
    a("s_lshl_b32 s12, s12, 7")
    a("s_mov_b64 exec, -1")
    for k in range(30):
        a("v_mov_b32 v%d, s%d" % (2 + k, sb + k))
    a("v_mov_b32 v1, 0")
    a("v_cmp_eq_u32 vcc, 0, v0")
    a("s_and_saveexec_b64 s[14:15], vcc")
    for k in range(0, 30, 2):
        a("buffer_store_dwordx2 v[%d:%d], v1, s[8:11], s12 offen offset:%d" % (2 + k, 3 + k, 4 * k))

import os
DETAIL = bool(os.environ.get('DETAIL'))
def read_stamps(c, nw, slot=0, nwg=256):
    import numpy as np
    st = c.read(c.ws, np.uint32, nwg * 16 * 32, WS_STAMP + slot * MB).reshape(nwg, 16, 32)[:, :nw, :].astype(np.uint64)
    q = lambda k: (st[..., k] + (st[..., k + 1] << np.uint64(32))).astype(np.int64)
    t0, r0, t1, r1 = q(0), q(2), q(4), q(6)
    mids = [int(np.median(q(8 + 2 * k) - t0)) if q(8 + 2 * k).max() > 0 else 0 for k in range(NMID)]
    txt = "span %.2f us (spread %.2f); cyc total %d mids %s; rt %.2f us clk %.2f" % (
        (r1.max() - r0.min()) / 100.0, (r0.max() - r0.min()) / 100.0, np.median(t1 - t0), mids, np.median(r1 - r0) / 100.0,
        np.median(t1 - t0) / (np.median(r1 - r0) * 10.0))
    if DETAIL:
        for x in range(8):
            clk = np.median((t1 - t0)[x::8]) / (np.median((r1 - r0)[x::8]) * 10.0)
            mm = [int(np.median((q(8 + 2 * k) - t0)[x::8])) if q(8 + 2 * k).max() > 0 else 0 for k in range(NMID)]
            txt += "\n          xcd%d: clk %.2f cyc %d rt %.2f end %.2f mids %s" % (x, clk, np.median((t1 - t0)[x::8]), np.median((r1 - r0)[x::8]) / 100., (r1[x::8].max() - r0.min()) / 100., mm)
    return txt, int(r0.min()), int(r1.max())

def reduce_g4(s, b, t):
    s("v_mov_b32 v%d, v%d" % (t, b))
    s("s_nop 1")
    s("v_permlane32_swap_b32 v%d, v%d" % (b, t))
    s("v_add_f32 v%d, v%d, v%d" % (b, b, t))
    s("v_mov_b32 v%d, v%d" % (t, b))
    s("s_nop 1")
    s("v_permlane16_swap_b32 v%d, v%d" % (b, t))
    s("v_add_f32 v%d, v%d, v%d" % (b, b, t))

def self_code_touch(a, name, endlabel, vaddr, vdst, s0, nwaves_log2):
    a("s_getpc_b64 s[%d:%d]" % (s0, s0 + 1))
    a.label("%s_pc" % name)
    a("v_lshrrev_b32 v%d, 6, v0" % vdst)
    a("s_lshr_b32 s%d, s2, 3" % (s0 + 2))
    a("s_lshl_b32 s%d, s%d, %d" % (s0 + 2, s0 + 2, nwaves_log2))
    a("v_add_u32 v%d, s%d, v%d" % (vdst, s0 + 2, vdst))
    a("v_and_b32 v%d, 15, v%d" % (vdst, vdst))
    a("v_lshlrev_b32 v%d, 12, v%d" % (vdst, vdst))
    a("v_and_b32 v%d, 63, v0" % vaddr)
    a("v_lshl_add_u32 v%d, v%d, 6, v%d" % (vaddr, vaddr, vdst))
    a("v_min_u32 v%d, ((%s - %s_pc) / 4) * 4 - 4, v%d" % (vaddr, endlabel, name, vaddr))
    a("global_load_dword v%d, v%d, s[%d:%d]" % (vdst, vaddr, s0, s0 + 1))
```

```python
from common import *

class Gemm2:
    def __init__(s, name, NRB, NF, SUB, NST, STB, R, AR, PD, ndma, VACC, stamp=None, skip=(), npro=0, rate=1, st_flags="", LA=None, selfpf=True):
        s.name, s.NRB, s.NF, s.SUB, s.NST, s.STB, s.R, s.AR, s.PD, s.ndma, s.VACC = name, NRB, NF, SUB, NST, STB, R, AR, PD, ndma, VACC
        s.stamp, s.skip, s.npro, s.rate, s.st_flags = stamp, skip, npro, rate, st_flags
        s.LA = LA
        s.selfpf = selfpf
        s.vJunk = 31
        s.dt = 'bf16'
        s.vCode, s.sCode, s.retouch = 28, 4, ()
        s.xbar_after = ()
        s.m_start, s.m_end, s.m_prof = 0, 1, 4
        s.fused = False
        s.handover, s.inherited, s.prev_streams = False, [], []
        s.late_x = []
        s.issue_step = {}
        s.alt_path = False
        s.a_flags = ''
        s.NB = PD + 1
        s.NACC = NF * NRB * 4
        s.vA = [2 + i for i in range(NRB)]
        s.vD = [6 + i for i in range(ndma)]
        s.spb = 65536 // STB
        s.nbase = -(-R // s.spb)
        s.vB = [13 + k for k in range(s.nbase)]
        assert s.nbase <= 3
        s.aBbase = AR * SUB * NRB * 4
        s.aX = s.aBbase + s.NB * 4
        s.sA, s.sW, s.sO, s.sS = 8, 12, 16, 20
        s.sWave, s.sDoff, s.sAoff, s.sLdsW, s.sT = 24, 25, 26, 28, 31
        s.vpm = 2
    def acc(s, j, i): return s.VACC + (j * s.NRB + i) * 4
    def aA(s, q, i): return ((q % (s.AR * s.SUB)) * s.NRB + i) * 4
    def unit_order(s): return [(st, sub, j) for st in range(s.NST) for sub in range(s.SUB) for j in range(s.NF)]
    def extra_unit(s, p, q): pass
    def post_sync0(s, p): pass
    def is_late(s, st, n): return False
    def a_pre(s, q): return []
    def late_steps(s, units): return {}
    def valu_ready(s, units): return {}
    def extra_vm(s): return []
    def dma_ops(s, st):
        ops = []
        for n in range(s.ndma):
            pre, t = s.dma_text(st, n)
            ops.append([pre, t, ("D", st, n), []])
        if st + 1 < s.NST and s.dma_step(st) is not None:
            ops[-1][3] = ["s_add_u32 s%d, s%d, %d" % (s.sDoff, s.sDoff, s.dma_step(st))]
        return ops
    def a_ops(s, q):
        ops = []
        for i in range(s.NRB):
            r = s.aA(q, i)
            t = "buffer_load_dwordx4 a[%d:%d], v%d, s[%d:%d], s%d offen offset:%d%s" % (r, r + 3, s.vA[i], s.sA, s.sA + 3, s.sAoff, (q % 4) * 1024, s.a_flags)
            ops.append([s.a_pre(q) if i == 0 else [], t, ("A", q, i), []])
        if q % 4 == 3:
            ops[-1][3] = ["s_add_u32 s%d, s%d, 4096" % (s.sAoff, s.sAoff)]
        return ops
    def put(s, p, op):
        pre, t, tag, post = op
        for x in pre:
            if isinstance(x, tuple):
                if x[0] == "wv": p.wv(x[1], x[2])
                elif x[0] == "label": p.label(x[1])
            else: p.i(x)
        if pre: p.i("s_nop 0")
        p.vm(t, tag)
        for x in post: p.i(x)
    def base_setup(s, a):
        for k in range(1, s.nbase):
            a("v_add_u32 v%d, %d, v%d" % (s.vB[k], k * s.spb * s.STB, s.vB[0]))
    def emit_main(s, a, early, late):
        units = s.unit_order()
        N = len(units)
        PD = s.PD
        first_st, last_st, first_q, last_q = {}, {}, {}, {}
        for n, (st, sub, j) in enumerate(units):
            q = st * s.SUB + sub
            first_st.setdefault(st, n); last_st[st] = n
            first_q.setdefault(q, n); last_q[q] = n
        sync_step = {st: first_st[st] - PD for st in range(s.NST)}
        sync_at = {}
        for st, n in sync_step.items(): sync_at.setdefault(n, []).append(st)
        xbar = [last_st[st] + 1 for st in s.xbar_after]
        bsteps = sorted(list(sync_step.values()) + xbar)
        qd, qa, qd2 = [], [], []
        late_steps = {st: n - PD for st, n in s.late_steps(units).items()}
        late_at = {}
        for st, n in late_steps.items(): late_at.setdefault(n, []).append(st)
        for st in range(s.NST):
            if st < s.R: e = -10**9
            else:
                L = last_st[st - s.R]
                c = [b for b in bsteps if b > L]
                e = c[0]
                assert e < sync_step[st], ("dma cannot be issued before its sync", st)
            if s.LA is not None: e = max(e, sync_step[st] - s.LA)
            for op in s.dma_ops(st):
                late_ = s.is_late(st, op[2][2])
                (qd2 if late_ else qd).append((e, late_steps[st] if late_ else sync_step[st], op))
        qd += qd2
        nq = s.NST * s.SUB
        for q in range(nq):
            e = -10**9 if q < s.AR * s.SUB else last_q[q - s.AR * s.SUB] + 1
            assert e <= first_q[q], ("A ring too small", q)
            if s.LA is not None: e = max(e, first_q[q] - s.LA)
            for op in s.a_ops(q): qa.append((e, first_q[q], op))
        qx = list(s.extra_vm())
        if s.selfpf:
            for k, n in enumerate(s.retouch):
                qx.append((n, n, [[], "global_load_dword v%d, v%d, s[%d:%d]" % (s.vJunk, s.vCode, s.sCode, s.sCode + 1), ("C", k), []]))
        qx += s.late_x
        qx = sorted(qx, key=lambda x: x[0])
        def next_vm(step):
            c = []
            for qq in (qd, qa, qx):
                if qq and qq[0][0] <= step: c.append((qq[0][1], id(qq), qq))
            if not c: return None
            c.sort(key=lambda x: x[0])
            return c[0][2].pop(0)[2]
        p = Stream(type(s).__name__)
        p.i("s_mov_b32 s%d, 0" % s.sAoff)
        early(p)
        while (qd and qd[0][1] < 0) or (qa and qa[0][1] <= 0):
            s.put(p, next_vm(-1))
        for _ in range(s.npro):
            op = next_vm(-1)
            if op: s.put(p, op)
        if s.inherited and s.stamp is not None and not s.alt_path: p.i("s_memtime s[%d:%d]" % (SB + 12, SB + 13))
        for x in s.inherited: s.fill_emit(p, x)
        if s.inherited and s.stamp is not None and not s.alt_path: p.i("s_memtime s[%d:%d]" % (SB + 16, SB + 17))
        if s.alt_path:
            i0 = [k for k, it in enumerate(p.items) if it[0] == 'label' and it[1] == "g34_cont0"][0]
            ninh = len(s.inherited)
            s.alt_loads = [it[1] for it in p.items[i0 + 1:len(p.items) - ninh]]
            p.label("g34_join0")
        late(p)
        def sync(st):
            p.wv(("D", st), [("D", st, n) for n in range(s.ndma) if not s.is_late(st, n)])
            p.i("s_barrier")
        def rd(n, h):
            if n >= N: return
            st, sub, j = units[n]
            slot = st % s.R
            r = s.aBbase + (n % s.NB) * 4 + 2 * h
            p.ds("ds_read_b64_tr_b16 a[%d:%d], v%d offset:%d" % (r, r + 1, s.vB[slot // s.spb], (slot % s.spb) * s.STB + s.rd_off(sub, j, h)), ("B", n, h))
        for n in range(-PD, 0):
            for st in sync_at.get(n, []):
                sync(st)
                if st == 0: s.post_sync0(p)
            rd(n + PD, 0); rd(n + PD, 1)
        if s.stamp is not None: p.i("s_memtime s[%d:%d]" % (SB + 8 + 2 * s.m_start, SB + 9 + 2 * s.m_start))
        vr = s.valu_ready(units)
        vq = []
        seen_q = set()
        seen_j = set()
        credit = 0.0
        for n, (st, sub, j) in enumerate(units):
            q = st * s.SUB + sub
            vq += vr.get(n, [])
            if s.stamp is not None and n in s.prof(N): p.i("s_memtime s[%d:%d]" % (SB + 8 + 2 * (s.m_prof + s.prof(N).index(n)), SB + 9 + 2 * (s.m_prof + s.prof(N).index(n))))
            if q not in seen_q:
                seen_q.add(q)
                p.wv(("A", q), [("A", q, i) for i in range(s.NRB)])
                s.extra_unit(p, q)
            p.wl(("B", n), [("B", n, 0), ("B", n, 1)])
            b = s.aBbase + (n % s.NB) * 4
            for i in range(s.NRB):
                c = s.acc(j, i)
                p.i("v_mfma_f32_16x16x32_%s v[%d:%d], a[%d:%d], a[%d:%d], %s" % (s.dt,
                    c, c + 3, b, b + 3, s.aA(q, i), s.aA(q, i) + 3, ("v[%d:%d]" % (c, c + 3)) if j in seen_j else "0"))
                if i == 0:
                    for st2 in sync_at.get(n, []): sync(st2)
                    if n in xbar: p.i("s_barrier")
                    if n in late_at:
                        p.wv(("Dlate", n), [("D", st2, k) for st2 in late_at[n] for k in range(s.ndma) if s.is_late(st2, k)])
                        p.i("s_barrier")
                    rd(n + PD, 0)
                    if s.NRB == 1: rd(n + PD, 1)
                elif i == 1:
                    rd(n + PD, 1)
                if i == s.NRB - 1:
                    seen_j.add(j)
                    credit = min(credit + s.rate, max(s.rate, 1.0) + 0.99)
                    if qx and qx[0][0] <= n and qx[0][1] <= n:
                        if qx[0] not in s.late_x: s.last_vm_step = n
                        s.put(p, qx.pop(0)[2])
                    while credit >= 1.0:
                        op = next_vm(n)
                        if not op: break
                        s.put(p, op); credit -= 1.0
                        s.last_vm_step = n
                        s.issue_step[op[2]] = n
                for _ in range(s.vpm):
                    if vq:
                        x = vq.pop(0)
                        s.fill_emit(p, x)
        assert not qd and not qa and not qx
        if s.stamp is not None: p.i("s_memtime s[%d:%d]" % (SB + 8 + 2 * s.m_end, SB + 9 + 2 * s.m_end))
        s.post_loop(p)
        p.i("s_nop 7")
        for k in sorted(vr):
            if k >= N: vq += vr[k]
        if s.handover:
            s.leftover = vq; s.stream = p
            return
        for x in vq: s.fill_emit(p, x)
        s.tail(p)
        res = resolve(s.prev_streams + [p])
        for q_ in s.prev_streams: emit(a, q_, res, ())
        emit(a, p, res, s.skip)
    def tail(s, p): pass
    def post_loop(s, p): pass
    def fill_emit(s, p, x):
        if isinstance(x, tuple):
            if x[0] == "wv": p.wv(x[1], x[2])
            else: p.vm(x[1], x[2])
        elif x.startswith("buffer_"): p.vm(x, None)
        else: p.i(x)
    def prof(s, N): return [N * k // 8 for k in range(1, 8)]
    def header(s, a):
        a.begin_kernel(s.name)
        a("s_cmp_ge_u32 s2, 256")
        a("s_cbranch_scc1 %s_end" % s.name)
        if s.stamp is not None: stamp_begin(a)
        if s.selfpf: self_code_touch(a, s.name, "%s_end" % s.name, s.vCode, s.vJunk, s.sCode, 2)
    def footer(s, a, nagpr, lds):
        if s.stamp is not None:
            stamp_mid(a, 2); stamp_end(a, 40, s.stamp, s.sWave)
        a.label("%s_end" % s.name)
        a.end_kernel(s.name, s.VACC + s.NACC, nagpr, 102)
        a.launch(s.name, 256, 256, lds)

def touch_ops(g, skarg, vtmp, vdst, ssrd=64, soff=68):
    L = []
    srd_off(L.append, ssrd, skarg, 0, 1024 * 7168)
    L.append("s_lshl_b32 s%d, s2, 2" % soff)
    L.append("s_add_u32 s%d, s%d, s%d" % (soff, soff, g.sWave))
    L.append("s_mul_i32 s%d, s%d, 7168" % (soff, soff))
    L.append("v_lshlrev_b32 v%d, 6, v0" % vtmp)
    ops = [[[], "buffer_load_dword v%d, v%d, s[%d:%d], s%d offen" % (vdst, vtmp, ssrd, ssrd + 3, soff), ("T", 0), []],
           [[], "buffer_load_dword v%d, v%d, s[%d:%d], s%d offen offset:3072" % (vdst, vtmp, ssrd, ssrd + 3, soff), ("T", 1), []]]
    return L, ops

class G3(Gemm2):
    def __init__(s, AR=4, PD=3, R=5, pf=(30, 24, 364, 1), retouch=(150, 300), tfl='', dfl='', xbar=(), pk=False, pf0=8, TS=3, vpm=2, fill=12, fill_flags="", **kw):
        s.fill = fill; s.fill_flags = fill_flags
        kw.setdefault("npro", 7); kw.setdefault("rate", 0.66); kw.setdefault("st_flags", " sc1")
        super().__init__("g3_kernel", NRB=4, NF=14, SUB=2, NST=16, STB=28672, R=R, AR=AR, PD=PD, ndma=7, VACC=32, **kw)
        s.pf, s.TS, s.vpm = pf, TS, vpm
        s.sCode, s.retouch = 56, retouch
        s.tfl, s.dfl = tfl, dfl
        s.xbar_after = xbar
        s.pk = pk
        s.pf0 = pf0
        s.flag_after = {3: 1, 5: 3}
        s.extra_fill = None
        s.pair_order = [0, 1, 2, 3, 4, 5, 6]
        s.vC1 = [16, 17, 18, 19]; s.vT = 20
    def dma_text(s, st, n):
        pre = ["s_add_u32 m0, s%d, %d" % (s.sLdsW, (st % s.R) * s.STB + (n // 4) * 4096)] if n % 4 == 0 else []
        return pre, "buffer_load_dwordx4 v%d, s[%d:%d], s%d offen offset:%d%s lds" % (s.vD[n], s.sW, s.sW + 3, s.sDoff, (n % 4) * 1024, s.dfl)
    def dma_step(s, st): return 64 * 7168
    def rd_off(s, sub, j, h):
        mat, jj = divmod(j, 7)
        return (sub * 2 + mat) * 7168 + h * 16 * 224 + jj * 32
    def unit_order(s):
        u = [(st, sub, j) for st in range(s.NST - s.TS) for sub in range(s.SUB) for j in range(s.NF)]
        for p_ in s.pair_order:
            for st in range(s.NST - s.TS, s.NST):
                for sub in range(s.SUB):
                    u += [(st, sub, p_), (st, sub, p_ + 7)]
        return u
    def epi_pair(s, j):
        L = []
        if j % 2 == 1: L.append("s_add_u32 s45, s44, %d" % ((j // 2) * 16 * 1024))
        if j == 6: L.append("s_mov_b32 s45, s46")
        for i in range(s.NRB):
            g, u = s.acc(j, i), s.acc(j + 7, i)
            t = s.vT + 4 * (i % 2)
            o = g if j % 2 == 0 else s.acc(j - 1, i) + 2
            c = s.vC1[i]
            if s.pk:
                sel = "op_sel:[0,%d] op_sel_hi:[1,%d]" % (c % 2, c % 2)
                for r in (0, 2): L.append("v_pk_mul_f32 v[%d:%d], v[%d:%d], v[%d:%d] %s" % (t + r, t + r + 1, g + r, g + r + 1, c & ~1, (c & ~1) + 1, sel))
                for r in range(4):
                    L.append("v_exp_f32 v%d, v%d" % (t + r, t + r))
                    if r % 2 == 1: L.append("v_pk_mul_f32 v[%d:%d], v[%d:%d], v[%d:%d]" % (g + r - 1, g + r, g + r - 1, g + r, u + r - 1, u + r))
                for r in (0, 2): L.append("v_pk_add_f32 v[%d:%d], v[%d:%d], 1.0 op_sel_hi:[1,0]" % (t + r, t + r + 1, t + r, t + r + 1))
                for r in range(4): L.append("v_rcp_f32 v%d, v%d" % (t + r, t + r))
                if i and (j % 2 == 1 or j == 6): L.append("s_add_u32 s45, s45, %d" % (112 * 1024))
                for r in (0, 2): L.append("v_pk_mul_f32 v[%d:%d], v[%d:%d], v[%d:%d]" % (g + r, g + r + 1, g + r, g + r + 1, t + r, t + r + 1))
            else:
                for r in range(4): L.append("v_mul_f32 v%d, v%d, v%d" % (t + r, g + r, c))
                for r in range(4):
                    L.append("v_exp_f32 v%d, v%d" % (t + r, t + r))
                    L.append("v_mul_f32 v%d, v%d, v%d" % (g + r, g + r, u + r))
                for r in range(4): L.append("v_add_f32 v%d, 1.0, v%d" % (t + r, t + r))
                for r in range(4): L.append("v_rcp_f32 v%d, v%d" % (t + r, t + r))
                if i and (j % 2 == 1 or j == 6): L.append("s_add_u32 s45, s45, %d" % (112 * 1024))
                for r in range(4): L.append("v_mul_f32 v%d, v%d, v%d" % (g + r, g + r, t + r))
            L.append("v_cvt_pk_bf16_f32 v%d, v%d, v%d" % (o, g, g + 1))
            L.append("v_cvt_pk_bf16_f32 v%d, v%d, v%d" % (o + 1, g + 2, g + 3))
            if j == 6:
                L.append(("vm", "buffer_store_dwordx2 v[%d:%d], v1, s[%d:%d], s45 offen%s" % (o, o + 1, s.sO, s.sO + 3, " sc1" if s.fused else ""), ("st", j, i)))
            elif j % 2 == 1:
                L.append(("vm", "buffer_store_dwordx4 v[%d:%d], v1, s[%d:%d], s45 offen%s" % (o - 2, o + 1, s.sO, s.sO + 3, s.st_flags), ("st", j, i)))
        if s.fused and j in s.flag_after:
            pj = s.flag_after[j]
            L.append(("wv", ("stw", pj), [("st", pj, i) for i in range(s.NRB)]))
            L.append("v_mov_b32 v28, %d" % (pj // 2 + 1))
            L.append("v_mov_b32 v30, 0")
            L.append("buffer_store_dword v28, v30, s[60:63], s59 offen sc1")
        return L
    def valu_ready(s, units):
        last = {}
        for n, (st, sub, j) in enumerate(units): last[j % 7] = n
        out = {last[j] + 3: s.epi_pair(j) for j in range(7)}
        L = [("wv", "ssw", [("ss", i) for i in range(s.NRB)])]
        for i in range(s.NRB):
            b = s.vT
            for r in range(4): L.append("v_accvgpr_read_b32 v%d, a%d" % (b + r, s.aX + 4 * i + r))
            L.append("v_add_f32 v%d, v%d, v%d" % (b, b, b + 1))
            L.append("v_add_f32 v%d, v%d, v%d" % (b + 2, b + 2, b + 3))
            L.append("v_add_f32 v%d, v%d, v%d" % (b, b, b + 2))
            reduce_g4(L.append, b, b + 1)
            L.append("v_mov_b32 v%d, 0x%x" % (b + 1, f2u(1e-5)))
            L.append("v_fmac_f32 v%d, 0x%x, v%d" % (b + 1, f2u(1.0 / 1024), b))
            L.append("v_rsq_f32 v%d, v%d" % (b + 1, b + 1))
            L.append("s_nop 0")
            L.append("v_mul_f32 v%d, 0x%x, v%d" % (s.vC1[i], f2u(-LOG2E), b + 1))
        out[28 * 9] = L
        if s.extra_fill:
            k = s.extra_fill[0]
            while k in out: k += 1
            out[k] = s.extra_fill[1]
        return out
    def extra_vm(s):
        L = []
        for i in range(s.NRB):
            L.append((28 * 6 + 5 * i, 28 * 7, [[], "buffer_load_dwordx4 a[%d:%d], v29, s[%d:%d], s47 offen offset:%d" % (s.aX + 4 * i, s.aX + 4 * i + 3, s.sS, s.sS + 3, i * 1024), ("ss", i), []]))
        if s.fill:
            for k in range(s.fill):
                post = ["s_add_u32 s69, s69, 4096"] if k % 4 == 3 else []
                L.append((28 * 4 + 9 * k, 28 * 5 + 9 * k, [[], "buffer_store_dwordx4 a[%d:%d], v29, s[52:55], s69 offen offset:%d%s" % (s.aF, s.aF + 3, (k % 4) * 1024, s.fill_flags), ("F", k), post]))
        if s.pf:
            n0, dn, m0_, dm = s.pf
            for k in range(16 - s.pf0):
                n = n0 + k * dn
                L.append((n, n, [[], "buffer_load_dword v31, v30, s[4:7], s70 offen" + s.tfl, ("T2", k), ["s_add_u32 s70, s70, %d" % (64 * 7168)]]))
            for k in range(2):
                n = m0_ + k * dm
                L.append((n, n, [["v_lshrrev_b32 v30, 3, v0", "v_lshlrev_b32 v30, 10, v30", "v_lshl_add_u32 v30, v0, 7, v30"] if k == 0 else [], "buffer_load_dword v31, v30, s[64:67], s68 offen", ("T3", k), ["s_add_u32 s68, s68, %d" % (7 * 2048)]]))
        return L
    def gen(s, a):
        NRB, sT, sWave, vT = s.NRB, s.sT, s.sWave, s.vT
        sNt, sMt = 33, 34
        s.header(a)
        a("s_load_dwordx4 s[36:39], s[0:1], 48")
        a("s_load_dwordx2 s[40:41], s[0:1], 88")
        a("s_load_dwordx4 s[48:51], s[0:1], 64")
        a("v_lshrrev_b32 v1, 6, v0")
        a("v_and_b32 v0, 63, v0")
        a("v_readfirstlane_b32 s%d, v1" % sWave)
        a("s_and_b32 s%d, s2, 7" % sT)
        a("s_lshl_b32 s%d, s%d, 2" % (sNt, sT))
        a("s_lshr_b32 s%d, s2, 3" % sT)
        a("s_and_b32 s%d, s%d, 3" % (sMt, sT))
        a("s_add_u32 s%d, s%d, s%d" % (sNt, sNt, sMt))
        a("s_lshr_b32 s%d, s%d, 2" % (sMt, sT))
        a("s_lshl_b32 s%d, s%d, 4" % (sT, sMt))
        a("s_mul_i32 s42, s%d, %d" % (sWave, NRB))
        a("s_add_u32 s42, s42, s%d" % sT)
        a("s_lshl_b32 s43, s42, 15")
        a("v_lshlrev_b32 v1, 4, v0")
        for i in range(NRB):
            a("s_add_u32 s%d, s43, %d" % (sT, i * 32768))
            a("v_add_u32 v%d, s%d, v1" % (s.vA[i], sT))
        a("s_lshl_b32 s47, s42, 10")
        for i in range(7):
            a("v_add_u32 v%d, %d, v0" % (vT, 64 * i))
            a("v_mul_u32_u24 v%d, 4682, v%d" % (vT + 1, vT))
            a("v_lshrrev_b32 v%d, 16, v%d" % (vT + 1, vT + 1))
            a("v_mul_u32_u24 v%d, %d, v%d" % (vT + 1, 7168 - 14 * 16, vT + 1))
            a("v_lshl_add_u32 v%d, v%d, 4, v%d" % (s.vD[i], vT, vT + 1))
            if i % 4:
                a("v_subrev_u32 v%d, %d, v%d" % (s.vD[i], (i % 4) * 1024, s.vD[i]))
        a("s_and_b32 s%d, s%d, 1" % (sT, sWave))
        a("s_mul_i32 s%d, s%d, %d" % (s.sDoff, sT, 32 * 7168))
        a("s_mul_i32 s32, s%d, 224" % sNt)
        a("s_add_u32 s%d, s%d, s32" % (s.sDoff, s.sDoff))
        a("s_lshl_b32 s%d, s%d, 1" % (sT, sT))
        a("s_bfe_u32 s32, s%d, 0x10001" % sWave)
        a("s_add_u32 s32, s32, s%d" % sT)
        a("s_mul_i32 s%d, s32, 7168" % s.sLdsW)
        a("s_waitcnt lgkmcnt(0)")
        a("s_bitcmp1_b32 s%d, 1" % sWave)
        a("s_cselect_b32 s%d, s38, s36" % s.sW)
        a("s_cselect_b32 s%d, s39, s37" % (s.sW + 1))
        a("s_and_b32 s%d, s%d, 0xffff" % (s.sW + 1, s.sW + 1))
        a("s_mov_b32 s%d, %d" % (s.sW + 2, 1024 * 7168))
        a("s_mov_b32 s%d, 0x00020000" % (s.sW + 3))
        srd_off(a, s.sA, 40, WS_HC, 4 * MB)
        if s.stamp is not None: stamp_mid(a, 3)
        aSS = s.aX
        tl, s.tops = touch_ops(s, 48, 30, 31)
        def early(p): pass
        def late(p):
            srd_off(p.i, s.sS, 40, WS_SS, 2048 * 64)
            srd_off(p.i, s.sO, 40, WS_ACT, 2048 * 3584 * 2)
            p.i("v_lshrrev_b32 v%d, 2, v0" % vT)
            p.i("v_mul_u32_u24 v%d, 224, v%d" % (vT, vT))
            p.i("v_and_b32 v%d, 3, v0" % (vT + 1))
            p.i("v_lshl_add_u32 v%d, v%d, 3, v%d" % (s.vB[0], vT + 1, vT))
            s.base_setup(p.i)
            p.i("v_mov_b32 v29, v1")
            p.i("s_mul_i32 s43, s42, %d" % (112 * 1024))
            p.i("v_add_u32 v1, s43, v1")
            p.i("s_lshr_b32 s%d, s%d, 4" % (sT, sNt))
            p.i("s_mul_i32 s46, s%d, %d" % (sT, 56 * 1024))
            p.i("s_and_b32 s%d, s%d, 15" % (sT, sNt))
            p.i("s_lshl_b32 s44, s%d, 10" % sT)
            p.i("s_add_u32 s44, s44, s46")
            p.i("s_lshr_b32 s%d, s%d, 1" % (sT, sT))
            p.i("s_lshl_b32 s%d, s%d, 10" % (sT, sT))
            p.i("s_add_u32 s46, s46, s%d" % sT)
            p.i("s_and_b32 s%d, s%d, 1" % (sT, sNt))
            p.i("s_lshl_b32 s%d, s%d, 3" % (sT, sT))
            p.i("s_add_u32 s46, s46, s%d" % sT)
            p.i("s_add_u32 s46, s46, %d" % (48 * 1024))
            if s.pf:
                srd_off(p.i, 64, 48, 0, 1024 * 7168)
                p.i("v_lshlrev_b32 v30, 7, v0")
                p.i("v_cmp_lt_u32 vcc, 6, v0")
                p.i("v_mov_b32 v%d, 0x40000000" % vT)
                p.i("s_lshr_b32 s70, s2, 3")
                p.i("v_cndmask_b32 v30, v30, v%d, vcc" % vT)
                p.i("s_lshl_b32 s70, s70, 2")
                p.i("s_add_u32 s70, s70, s%d" % sWave)
                p.i("s_mul_i32 s68, s70, %d" % (14 * 2048))
                p.i("s_bfe_u32 s71, s2, 0x10002")
                p.i("s_mul_i32 s71, s71, %d" % (1792 * 2048))
                p.i("s_add_u32 s68, s68, s71")
                p.i("s_and_b32 s71, s2, 1")
                p.i("s_lshl_b32 s71, s71, 10")
                p.i("s_add_u32 s68, s68, s71")
                p.i("s_bitcmp1_b32 s70, 6")
                p.i("s_cselect_b32 s4, s38, s36")
                p.i("s_cselect_b32 s5, s39, s37")
                p.i("s_and_b32 s5, s5, 0xffff")
                p.i("s_mov_b32 s6, %d" % (1024 * 7168))
                p.i("s_mov_b32 s7, 0x00020000")
                p.i("s_and_b32 s70, s70, 63")
                p.i("s_mul_i32 s70, s70, 7168")
                p.i("s_and_b32 s71, s2, 7")
                p.i("s_mul_i32 s71, s71, 896")
                p.i("s_add_u32 s70, s70, s71")
                p.i("s_add_u32 s70, s70, %d" % (s.pf0 * 64 * 7168))
            if s.fill:
                srd_off(p.i, 52, 40, WS_XB, s.fill * MB)
                p.i("s_lshl_b32 s69, s2, 2")
                p.i("s_add_u32 s69, s69, s%d" % sWave)
                p.i("s_mul_i32 s69, s69, %d" % (s.fill * 1024))
                for r in range(4): p.i("v_accvgpr_write_b32 a%d, -1" % (s.aF + r))
            if s.fused:
                srd_off(p.i, 60, 40, WS_FL, 4096)
                p.i("s_lshr_b32 s59, s42, 2")
                p.i("s_lshl_b32 s59, s59, 5")
                p.i("s_add_u32 s59, s59, s%d" % sNt)
                p.i("s_lshl_b32 s59, s59, 2")
        s.aF = aSS + 4 * NRB
        if s.fused: s.post_loop = lambda p: p.i("s_barrier")
        s.emit_main(a, early, late)
        s.nagpr = aSS + 4 * NRB + 4
        if not s.fused: s.footer(a, s.nagpr, s.R * s.STB)

class G4(Gemm2):
    def __init__(s, AR=4, PD=3, R=6, name="g4_kernel", NST=28, **kw):
        kw.setdefault("npro", 12)
        super().__init__(name, NRB=2, NF=4, SUB=4, NST=NST, STB=16896, R=R, AR=AR, PD=PD, ndma=4, VACC=64, **kw)
    def dma_text(s, st, n):
        pre = ["s_add_u32 m0, s%d, %d" % (s.sLdsW, (st % s.R) * s.STB)] if n == 0 else []
        return pre, "buffer_load_dwordx4 v%d, s[%d:%d], s%d offen offset:%d lds" % (s.vD[n], s.sW, s.sW + 3, s.sDoff, n * 1056)
    def dma_step(s, st): return 128 * 2048
    def rd_off(s, sub, j, h):
        return (sub // 2) * 8448 + (sub % 2) * 512 + h * 256 + j * 32
    def lane_addrs(s, a, vT):
        a("v_bfe_u32 v%d, v0, 2, 3" % vT)
        a("v_mul_u32_u24 v%d, 1056, v%d" % (vT, vT))
        a("v_lshrrev_b32 v%d, 5, v0" % (vT + 1))
        a("v_lshl_add_u32 v%d, v%d, 7, v%d" % (vT, vT + 1, vT))
        a("v_and_b32 v%d, 3, v0" % (vT + 1))
        a("v_lshl_add_u32 v%d, v%d, 3, v%d" % (s.vB[0], vT + 1, vT))
        s.base_setup(a)
    def extra_vm(s): return s.xops
    def gen(s, a):
        NRB, sT, sWave = s.NRB, s.sT, s.sWave
        vT = 20; vR2 = [16, 17]; vM = [18, 19]; vH = 32
        sNt, sMt, sH, sM = 33, 34, 48, 52
        s.header(a)
        a("s_load_dwordx4 s[36:39], s[0:1], 64")
        a("s_load_dwordx2 s[40:41], s[0:1], 88")
        a("v_lshrrev_b32 v1, 6, v0")
        a("v_and_b32 v0, 63, v0")
        a("v_readfirstlane_b32 s%d, v1" % sWave)
        a("s_bfe_u32 s%d, s2, 0x20001" % sT)
        a("s_lshl_b32 s%d, s%d, 2" % (sMt, sT))
        a("s_lshr_b32 s%d, s2, 6" % sT)
        a("s_add_u32 s%d, s%d, s%d" % (sMt, sMt, sT))
        a("s_and_b32 s%d, s2, 1" % sT)
        a("s_lshl_b32 s%d, s%d, 3" % (sNt, sT))
        a("s_bfe_u32 s%d, s2, 0x30003" % sT)
        a("s_add_u32 s%d, s%d, s%d" % (sNt, sNt, sT))
        a("s_lshl_b32 s42, s%d, 3" % sMt)
        a("s_lshl_b32 s%d, s%d, 1" % (sT, sWave))
        a("s_add_u32 s42, s42, s%d" % sT)
        a("s_mul_i32 s43, s42, %d" % (112 * 1024))
        a("v_lshlrev_b32 v1, 4, v0")
        for i in range(NRB):
            a("s_add_u32 s%d, s43, %d" % (sT, i * 112 * 1024))
            a("v_add_u32 v%d, s%d, v1" % (s.vA[i], sT))
        a("v_lshrrev_b32 v%d, 3, v0" % vT)
        a("v_lshlrev_b32 v%d, 14, v%d" % (vT, vT))
        a("v_and_b32 v%d, 7, v0" % (vT + 1))
        a("v_lshl_add_u32 v%d, v%d, 4, v%d" % (s.vD[0], vT + 1, vT))
        for n in range(1, 4):
            a("v_add_u32 v%d, %d, v%d" % (s.vD[n], n * (2048 - 1056), s.vD[0]))
        a("s_mul_i32 s%d, s%d, 4224" % (s.sLdsW, sWave))
        a("s_lshr_b32 s%d, s%d, 1" % (sT, sWave))
        a("s_lshl_b32 s%d, s%d, 17" % (s.sDoff, sT))
        a("s_and_b32 s%d, s%d, 1" % (sT, sWave))
        a("s_lshl_b32 s%d, s%d, 13" % (sT, sT))
        a("s_add_u32 s%d, s%d, s%d" % (s.sDoff, s.sDoff, sT))
        a("s_lshl_b32 s%d, s%d, 7" % (sT, sNt))
        a("s_add_u32 s%d, s%d, s%d" % (s.sDoff, s.sDoff, sT))
        a("s_waitcnt lgkmcnt(0)")
        srd_off(a, s.sW, 36, 0, 3584 * 2048)
        srd_off(a, s.sA, 40, WS_ACT, 2048 * 3584 * 2)
        if s.stamp is not None: stamp_mid(a, 3)
        n0 = (s.NST - 4) * s.NF * s.SUB
        s.xops = []
        for i in range(NRB):
            s.xops.append((n0, 10**9, [[], "buffer_load_dwordx4 v[%d:%d], v1, s[%d:%d], s47 offen offset:%d" % (48 + 4 * i, 51 + 4 * i, s.sS, s.sS + 3, i * 1024), ("ss", i), []]))
            for q in range(2):
                r = vH + (i * 2 + q) * 4
                s.xops.append((n0, 10**9, [[], "buffer_load_dwordx4 v[%d:%d], v1, s[%d:%d], s%d offen offset:%d" % (r, r + 3, sH, sH + 3, 45 + i, q * 1024), ("h", i, q), []]))
            s.xops.append((n0, 10**9, [[], "buffer_load_dword v%d, v%d, s[%d:%d], 0 offen offset:%d" % (vM[i], vT + 10, sM, sM + 3, i * 64), ("m", i), []]))
        def early(p): pass
        def late(p):
            s.lane_addrs(p.i, vT)
            srd_off(p.i, s.sS, 40, WS_SS, 2048 * 64)
            srd_off(p.i, s.sO, 38, 0, 2048 * 2048)
            srd_off(p.i, sH, 40, WS_HC, 4 * MB)
            srd_off(p.i, sM, 40, WS_MT, 8192)
            p.i("s_lshl_b32 s47, s42, 10")
            p.i("s_lshl_b32 s%d, s42, 15" % sT)
            p.i("s_lshl_b32 s45, s%d, 11" % sNt)
            p.i("s_add_u32 s45, s45, s%d" % sT)
            p.i("s_add_u32 s46, s45, 0x8000")
            p.i("v_and_b32 v%d, 15, v0" % vT)
            p.i("s_lshl_b32 s%d, s42, 4" % sT)
            p.i("v_add_u32 v%d, s%d, v%d" % (vT, sT, vT))
            p.i("v_lshlrev_b32 v%d, 2, v%d" % (vT + 10, vT))
            p.i("v_lshrrev_b32 v%d, 8, v%d" % (vT + 1, vT))
            p.i("v_and_b32 v%d, 255, v%d" % (vT, vT))
            p.i("v_lshl_add_u32 v%d, v%d, 3, v%d" % (vT, vT, vT + 1))
            p.i("v_lshlrev_b32 v%d, 11, v%d" % (vT, vT))
            p.i("v_lshrrev_b32 v%d, 4, v0" % (vT + 1))
            p.i("v_lshl_add_u32 v%d, v%d, 3, v%d" % (vT, vT + 1, vT))
            p.i("s_lshl_b32 s44, s%d, 7" % sNt)
        def tail(e):
            e.wv("side", [("ss", i) for i in range(NRB)] + [("h", i, q) for i in range(NRB) for q in range(2)] + [("m", i) for i in range(NRB)])
            for i in range(NRB):
                b = 48 + 4 * i
                e.i("v_add_f32 v%d, v%d, v%d" % (b, b, b + 1))
                e.i("v_add_f32 v%d, v%d, v%d" % (b + 2, b + 2, b + 3))
                e.i("v_add_f32 v%d, v%d, v%d" % (b, b, b + 2))
                reduce_g4(e.i, b, b + 1)
                e.i("v_mov_b32 v%d, 0x%x" % (b + 1, f2u(1e-5)))
                e.i("v_fmac_f32 v%d, 0x%x, v%d" % (b + 1, f2u(1.0 / 1024), b))
                e.i("v_rcp_f32 v%d, v%d" % (vR2[i], b + 1))
            for i in range(NRB):
                for j in range(4):
                    c = s.acc(j, i)
                    h = vH + (i * 2 + j // 2) * 4 + (j % 2) * 2
                    t = vT + 2 + 4 * (j % 2)
                    e.i("v_lshlrev_b32 v%d, 16, v%d" % (t, h))
                    e.i("v_and_b32 v%d, 0xffff0000, v%d" % (t + 1, h))
                    e.i("v_lshlrev_b32 v%d, 16, v%d" % (t + 2, h + 1))
                    e.i("v_and_b32 v%d, 0xffff0000, v%d" % (t + 3, h + 1))
                    for r in range(4): e.i("v_add_f32 v%d, v%d, v%d" % (t + r, t + r, vM[i]))
                    for r in range(4): e.i("v_fmac_f32 v%d, v%d, v%d" % (t + r, c + r, vR2[i]))
                    e.i("v_cvt_pk_bf16_f32 v%d, v%d, v%d" % (c, t, t + 1))
                    e.i("v_cvt_pk_bf16_f32 v%d, v%d, v%d" % (c + 1, t + 2, t + 3))
                    e.vm("buffer_store_dwordx2 v[%d:%d], v%d, s[%d:%d], s44 offen offset:%d" % (c, c + 1, vT, s.sO, s.sO + 3, j * 32))
                e.i("s_add_u32 s44, s44, %d" % (16 * 8 * 2048))
        s.tail = tail
        s.emit_main(a, early, late)
        s.footer(a, s.aX, s.R * s.STB)

class K2(G4):
    def __init__(s, PD=3, pf=False, xneed=12, **kw):
        kw.setdefault("npro", 14)
        kw.setdefault("rate", 0.7)
        super().__init__(AR=4, PD=PD, R=4, name="k2_kernel", NST=4, **kw)
        s.pf, s.xneed = pf, xneed
        s.aM = s.aX
        s.vAccM = 56
        s.vMl = 31
        s.vJunk = 30
        s.dt = 'f16'
        s.LM = s.R * s.STB
        s.LX = s.LM + 4096
    def dma_text(s, st, n):
        pre = ["s_add_u32 m0, s%d, %d" % (s.sLdsW, (st % s.R) * s.STB + 32 * n)]
        return pre, "buffer_load_dwordx4 v1, s[%d:%d], s%d offen offset:%d lds" % (s.sW, s.sW + 3, s.sDoff, n * 1024)
    def dma_step(s, st): return 16384
    def rdm(s, p, q):
        if q < 16:
            r = s.aM + 4 * (q % 4)
            p.ds("ds_read_b128 a[%d:%d], v%d offset:%d" % (r, r + 3, s.vMl, q * 64), ("M", q))
    def post_sync0(s, p):
        p.wv("vmw", [("vm",)])
        for q in range(3): s.rdm(p, q)
    def extra_unit(s, p, q):
        p.wl(("M", q), [("M", q)])
        r = s.aM + 4 * (q % 4)
        for i in range(s.NRB):
            c = s.vAccM + 4 * i
            src = "0" if q == 0 else "v[%d:%d]" % (c, c + 3)
            p.i("v_mfma_f32_16x16x32_f16 v[%d:%d], a[%d:%d], a[%d:%d], %s" % (c, c + 3, r, r + 3, s.aA(q, i), s.aA(q, i) + 3, src))
        s.rdm(p, q + 3)
    def gen(s, a):
        NRB, sT, sWave = s.NRB, s.sT, s.sWave
        vT = 20; vXM = [18, 19]; vX = 32; vXa = 16; vXr = 8
        sNt, sT1, sX, sM, sXM, sVM = 33, 34, 48, 52, 56, 60
        s.header(a)
        a("s_load_dwordx2 s[36:37], s[0:1], 0")
        a("s_load_dwordx2 s[38:39], s[0:1], 56")
        a("s_load_dwordx2 s[40:41], s[0:1], 88")
        a("v_lshrrev_b32 v1, 6, v0")
        a("v_and_b32 v0, 63, v0")
        a("v_readfirstlane_b32 s%d, v1" % sWave)
        a("s_and_b32 s%d, s2, 7" % sT1)
        a("s_bfe_u32 s%d, s2, 0x40003" % sNt)
        if s.pf:
            a("s_cmp_eq_u32 s%d, 4" % sWave)
            a("s_cbranch_scc1 k2_helper")
        a("s_lshr_b32 s%d, s2, 7" % sT)
        a("s_lshl_b32 s42, s%d, 4" % sT1)
        a("s_lshl_b32 s%d, s%d, 3" % (sT, sT))
        a("s_add_u32 s42, s42, s%d" % sT)
        a("s_lshl_b32 s%d, s%d, 1" % (sT, sWave))
        a("s_add_u32 s42, s42, s%d" % sT)
        a("s_lshl_b32 s43, s42, 14")
        a("v_lshlrev_b32 v1, 4, v0")
        for i in range(NRB):
            a("s_add_u32 s%d, s43, %d" % (sT, i * 16384))
            a("v_add_u32 v%d, s%d, v1" % (s.vA[i], sT))
        a("s_mul_i32 s%d, s%d, 4224" % (s.sLdsW, sWave))
        a("s_lshl_b32 s%d, s%d, 4" % (sT, sT1))
        a("s_add_u32 s%d, s%d, s%d" % (sT, sT, sNt))
        a("s_lshl_b32 s%d, s%d, 16" % (s.sDoff, sT))
        a("s_lshl_b32 s%d, s%d, 12" % (sT, sWave))
        a("s_add_u32 s%d, s%d, s%d" % (s.sDoff, s.sDoff, sT))
        a("s_lshl_b32 s45, s%d, 10" % sWave)
        a("s_add_u32 s45, s45, %d" % s.LM)
        a("s_lshl_b32 s46, s%d, 10" % sT1)
        a("s_waitcnt lgkmcnt(0)")
        srd_off(a, s.sW, 40, WS_V, 8 * MB)
        srd_off(a, s.sA, 40, WS_WSF, 2 * MB)
        srd_off(a, sVM, 40, WS_VM, 8192)
        if s.stamp is not None: stamp_mid(a, 3)
        s.xops = []
        for k in range(4):
            s.xops.append((0, s.xneed, [["s_add_u32 m0, s64, %d" % (k * 1024)],
                           "buffer_load_dwordx4 v%d, s[%d:%d], s47 offen lds" % (vXa + (k % 2), sX, sX + 3), ("x", k),
                           ["s_add_u32 s47, s47, %d" % (8 * 16384)]]))
        for i in range(NRB):
            s.xops.append((0, s.xneed, [[], "buffer_load_dword v%d, v%d, s[%d:%d], 0 offen offset:%d" % (vXM[i], vT + 3, sXM, sXM + 3, i * 64), ("xm", i), []]))
        def early(p):
            p.i("s_mov_b32 m0, s45")
            p.i("s_nop 0")
            p.vm("buffer_load_dwordx4 v1, s[%d:%d], s46 offen lds" % (sVM, sVM + 3), ("vm",))
        def late(p):
            s.lane_addrs(p.i, vT)
            p.i("v_lshrrev_b32 v%d, 4, v0" % vT)
            p.i("v_lshlrev_b32 v%d, 4, v%d" % (vT, vT))
            p.i("v_add_u32 v%d, s45, v%d" % (s.vMl, vT))
            p.i("v_and_b32 v%d, 15, v0" % vT)
            p.i("v_lshlrev_b32 v%d, 4, v%d" % (vT + 2, vT))
            p.i("s_lshl_b32 s%d, s42, 4" % sT)
            p.i("v_add_u32 v%d, s%d, v%d" % (vT + 3, sT, vT))
            p.i("v_lshlrev_b32 v%d, 2, v%d" % (vT + 3, vT + 3))
            p.i("v_lshrrev_b32 v%d, 3, v0" % (vT + 1))
            p.i("v_lshrrev_b32 v%d, 4, v0" % (vT + 4))
            p.i("v_and_b32 v%d, 7, v0" % (vT + 5))
            p.i("v_xor_b32 v%d, v%d, v%d" % (vT + 4, vT + 4, vT + 5))
            p.i("v_lshlrev_b32 v%d, 14, v%d" % (vT + 1, vT + 1))
            p.i("v_lshl_add_u32 v%d, v%d, 4, v%d" % (vXa, vT + 4, vT + 1))
            p.i("v_xor_b32 v%d, 64, v%d" % (vXa + 1, vXa))
            p.i("s_lshl_b32 s64, s%d, 12" % sWave)
            p.i("s_add_u32 s64, s64, %d" % s.LX)
            p.i("v_lshlrev_b32 v%d, 7, v%d" % (vT + 1, vT))
            p.i("v_add_u32 v%d, s64, v%d" % (vT + 1, vT + 1))
            p.i("v_bfe_u32 v%d, v0, 4, 1" % (vT + 4))
            p.i("v_lshl_add_u32 v%d, v%d, 3, v%d" % (vT + 1, vT + 4, vT + 1))
            p.i("v_lshrrev_b32 v%d, 5, v0" % (vT + 4))
            p.i("v_lshrrev_b32 v%d, 1, v%d" % (vT + 5, vT))
            p.i("v_xor_b32 v%d, v%d, v%d" % (vT + 4, vT + 4, vT + 5))
            for j in range(4):
                p.i("v_xor_b32 v%d, %d, v%d" % (vT + 5, 2 * j, vT + 4))
                p.i("v_lshl_add_u32 v%d, v%d, 4, v%d" % (vXr + j, vT + 5, vT + 1))
            p.i("s_lshr_b32 s47, s42, 4")
            p.i("s_and_b32 s%d, s42, 15" % sT)
            p.i("s_lshl_b32 s%d, s%d, 7" % (sT, sT))
            p.i("s_add_u32 s47, s47, s%d" % sT)
            p.i("s_lshl_b32 s47, s47, 11")
            p.i("s_lshl_b32 s%d, s%d, 7" % (sT, sNt))
            p.i("s_add_u32 s47, s47, s%d" % sT)
            srd_off(p.i, s.sS, 40, WS_SS, 2048 * 64)
            srd_off(p.i, s.sO, 40, WS_HC, 4 * MB)
            srd_off(p.i, sX, 36, 0, 2048 * 2048)
            srd_off(p.i, sM, 40, WS_MT, 8192)
            srd_off(p.i, sXM, 40, WS_XM, 8192)
            p.i("s_lshl_b32 s44, s42, 15")
            p.i("s_lshl_b32 s%d, s%d, 11" % (sT, sNt))
            p.i("s_add_u32 s44, s44, s%d" % sT)
            p.i("s_lshl_b32 s45, s42, 10")
            p.i("s_lshr_b32 s%d, s%d, 2" % (sT, sNt))
            p.i("s_lshl_b32 s%d, s%d, 8" % (sT, sT))
            p.i("s_add_u32 s45, s45, s%d" % sT)
            p.i("s_and_b32 s%d, s%d, 3" % (sT, sNt))
            p.i("s_lshl_b32 s%d, s%d, 2" % (sT, sT))
            p.i("s_add_u32 s45, s45, s%d" % sT)
        def tail(e):
            e.wv("side", [("x", k) for k in range(4)] + [("xm", i) for i in range(NRB)])
            for i in range(NRB):
                for j in range(4):
                    x = vX + (i * 4 + j) * 2
                    e.ds("ds_read_b64 v[%d:%d], v%d offset:%d" % (x, x + 1, vXr + j, i * 2048), ("xr", i, j))
            for i in range(NRB):
                m = vXM[i]
                e.i("v_add_f32 v%d, v%d, v%d" % (m, m, s.vAccM + 4 * i))
                ssr = 48 + 2 * i
                for j in range(4):
                    c = s.acc(j, i)
                    x = vX + (i * 4 + j) * 2
                    t = vT + 4
                    for r in range(4): e.i("v_sub_f32 v%d, v%d, v%d" % (c + r, c + r, m))
                    e.wl(("xr", i, j), [("xr", i, j)])
                    e.i("v_lshlrev_b32 v%d, 16, v%d" % (t, x))
                    e.i("v_and_b32 v%d, 0xffff0000, v%d" % (t + 1, x))
                    e.i("v_lshlrev_b32 v%d, 16, v%d" % (t + 2, x + 1))
                    e.i("v_and_b32 v%d, 0xffff0000, v%d" % (t + 3, x + 1))
                    for r in range(4): e.i("v_add_f32 v%d, v%d, v%d" % (t + r, t + r, c + r))
                    e.i("v_cvt_pk_bf16_f32 v%d, v%d, v%d" % (x, t, t + 1))
                    e.i("v_cvt_pk_bf16_f32 v%d, v%d, v%d" % (x + 1, t + 2, t + 3))
                    if j % 2 == 1:
                        e.vm("buffer_store_dwordx4 v[%d:%d], v1, s[%d:%d], s44 offen offset:%d%s" % (x - 2, x + 1, s.sO, s.sO + 3, (j // 2) * 1024, s.st_flags))
                    for r in range(4):
                        if j == 0 and r == 0: e.i("v_mul_f32 v%d, v%d, v%d" % (ssr, t, t))
                        else: e.i("v_fmac_f32 v%d, v%d, v%d" % (ssr, t + r, t + r))
                e.i("s_add_u32 s44, s44, 0x8000")
                reduce_g4(e.i, ssr, ssr + 1)
                e.vm("buffer_store_dword v%d, v%d, s[%d:%d], s45 offen offset:%d" % (ssr, vT + 2, s.sS, s.sS + 3, i * 1024))
            e.i("s_cmp_lg_u32 s%d, 0" % sNt)
            e.i("s_cbranch_scc1 %s_nomt" % s.name)
            for i in range(NRB):
                e.vm("buffer_store_dword v%d, v%d, s[%d:%d], 0 offen offset:%d" % (vXM[i], vT + 3, sM, sM + 3, i * 64))
            e.label("%s_nomt" % s.name)
        s.tail = tail
        s.emit_main(a, early, late)
        if s.stamp is not None:
            stamp_mid(a, 2); stamp_end(a, 40, s.stamp, s.sWave)
        if s.pf:
            a("s_branch %s_end" % s.name)
            a.label("k2_helper")
            a("s_waitcnt lgkmcnt(0)")
            srd_off(a, 64, 38, 0, 1024 * 7168)
            a("s_mul_i32 s68, s2, 28672")
            a("v_lshlrev_b32 v6, 6, v0")
            for k in range(7):
                a("buffer_load_dword v7, v6, s[64:67], s68 offen")
                a("s_add_u32 s68, s68, 4096")
            for k in range(s.NST): a("s_barrier")
        a.label("%s_end" % s.name)
        a.end_kernel(s.name, s.VACC + s.NACC, s.aM + 16, 102)
        a.launch(s.name, 256, 320 if s.pf else 256, s.LX + 16384)

class G4S(Gemm2):
    def __init__(s, SK=2, AR=None, PD=3, R=8, TS=1, LK=None, xfl=" sc1", l2pf=0, l2d=2, retouch=(200,), defer=True, lgrp=2, rc_ahead=28, **kw):
        kw.setdefault("npro", 8); kw.setdefault("rate", 0.6)
        s.l2pf, s.l2d = l2pf, l2d
        s.SK = SK
        NRB = SK
        AR = AR or (7 if SK == 4 else 10)
        s.LK = LK or (7 if SK == 4 else 8)
        s.KF = 8 // SK
        s.xfl = xfl
        super().__init__("g4_kernel", NRB=NRB, NF=8, SUB=2, NST=56 // SK, STB=16896, R=R, AR=AR, PD=PD, ndma=4, VACC=128, **kw)
        s.TS = TS
        s.retouch = retouch
        s.vCode = 10
        s.defer = defer
        s.lgrp, s.rc_ahead = lgrp, rc_ahead
        s.vD2 = [116, 117, 118, 119]
        s.vpm = 1
    def a_pre(s, q):
        if not (s.fused and q % 16 == 0): return []
        cpt = q // 16
        return [("wv", ("flw", cpt), [("fl", cpt)]),
                "v_cmp_gt_u32 vcc, %d, v12" % (cpt + 1), "s_nop 1", "s_cbranch_vccnz g34_slow%d" % cpt, ("label", "g34_cont%d" % cpt)]
    def slow_paths(s, a):
        for cpt in range(4):
            a.label("g34_slow%d" % cpt)
            if cpt == 0 and s.alt_path:
                for x in s.inherited:
                    if isinstance(x, tuple): a("s_waitcnt vmcnt(0)" if x[0] == "wv" else x[1])
                    else: a(x)
                a.label("g34_spin0")
            a("buffer_load_dword v12, v%d, s[4:7], 0 offen sc1" % (11 if cpt == 3 else 10))
            a("s_add_u32 s67, s67, 1")
            a("s_waitcnt vmcnt(0)")
            a("v_cmp_gt_u32 vcc, %d, v12" % (cpt + 1))
            a("s_cmp_lt_u32 s67, 0x40000")
            a("s_cselect_b64 s[68:69], vcc, 0")
            a("s_cmp_lg_u64 s[68:69], 0")
            if cpt == 0 and s.alt_path:
                a("s_cbranch_scc1 g34_spin0")
                for x in s.alt_loads: a(x)
                a("s_waitcnt vmcnt(0)")
                a("s_branch g34_join0")
            else:
                a("s_cbranch_scc1 g34_slow%d" % cpt)
                a("s_branch g34_cont%d" % cpt)
    def crow(s, kb):
        return (kb % 16) * 112 + (kb // 16) * 32 if kb < 48 else (kb - 48) * 224 + 96
    def is_late(s, st, n): return s.defer and st >= s.NST - s.LK and n >= 2
    def late_steps(s, units):
        if not s.defer: return {}
        first = {}
        for n, (st, sub, j) in enumerate(units):
            if st >= s.NST - s.LK and j < s.KF: first.setdefault(st, n)
        out = {}
        for st in first:
            g0 = s.NST - s.LK + (st - (s.NST - s.LK)) // s.lgrp * s.lgrp
            out[st] = first[g0]
        return out
    def dma_text(s, st, n):
        pre = []
        if n % 2 == 0:
            d = s.crow(2 * st + 1) - s.crow(2 * st)
            if n == 0 or s.is_late(st, n):
                pre.append("s_add_u32 s%d, s%d, %d" % (s.sDoff, {112: 27, 224: 30}[d], s.crow(2 * st) * 2048))
            pre.append("s_add_u32 m0, s%d, %d" % (s.sLdsW, (st % s.R) * s.STB + (0 if n else 4224)))
        v = (s.vD2 if st >= 24 else s.vD)[n]
        return pre, "buffer_load_dwordx4 v%d, s[%d:%d], s%d offen offset:%d lds" % (v, s.sW, s.sW + 3, s.sDoff, (n % 2) * 1056)
    def dma_step(s, st): return None
    def rd_off(s, sub, j, h): return sub * 8448 + (j // 4) * 4224 + h * 512 + (j % 4) * 32
    def unit_order(s):
        KF = s.KF
        u = [(st, sub, j) for st in range(s.NST - s.LK) for sub in range(s.SUB) for j in range(s.NF)]
        u += [(st, sub, j) for st in range(s.NST - s.LK, s.NST - s.TS) for sub in range(s.SUB) for j in range(KF, s.NF)]
        for pr in range(KF // 2, 4):
            for st in range(s.NST - s.TS, s.NST):
                for sub in range(s.SUB):
                    u += [(st, sub, 2 * pr), (st, sub, 2 * pr + 1)]
        u += [(st, sub, j) for st in range(s.NST - s.LK, s.NST) for sub in range(s.SUB) for j in range(KF)]
        return u
    def valu_ready(s, units):
        last = {}
        for n, (st, sub, j) in enumerate(units): last[j // 2] = n
        out = {}
        ppg = s.KF // 2
        for pr in range(ppg, 4):
            g, pi = divmod(pr, ppg)
            L = []
            for i in range(s.NRB):
                c0, c1 = s.acc(2 * pr, i), s.acc(2 * pr + 1, i)
                L.append("v_cvt_pk_bf16_f32 v%d, v%d, v%d" % (c0, c0, c0 + 1))
                L.append("v_cvt_pk_bf16_f32 v%d, v%d, v%d" % (c0 + 1, c0 + 2, c0 + 3))
                L.append("v_cvt_pk_bf16_f32 v%d, v%d, v%d" % (c0 + 2, c1, c1 + 1))
                L.append("v_cvt_pk_bf16_f32 v%d, v%d, v%d" % (c0 + 3, c1 + 2, c1 + 3))
                L.append("buffer_store_dwordx4 v[%d:%d], v1, s[%d:%d], s%d offen offset:%d%s" % (c0, c0 + 3, s.sX, s.sX + 3, s.sXo + g - 1, (i * ppg + pi) * 1024, s.xfl))
            out[last[pr] + (3 if s.NRB == 4 else 5)] = L
        k = s.side_fill[0]
        while k in out: k += 1
        out[k] = s.side_fill[1]
        return out
    def extra_vm(s): return s.xops
    def gen(s, a):
        NRB, sT, sWave, SK, KF = s.NRB, s.sT, s.sWave, s.SK, s.KF
        ppg = KF // 2
        vT = 20; vR2 = 16; vM = 32; vH = 36; vS = 52; vRc = 68
        NRC = (SK - 1) * 16
        sNt, sMt, sKk, sH, sM = 33, 34, 35, 48, 52
        s.sX, s.sXo = 56, 60
        KQ = 3584 // SK
        a_real = a
        if s.fused:
            PRE = []
            a = PRE.append
            t0, t1, vL16 = 4, 5, 29
            a("s_mov_b32 s70, s59")
            srd_off(a, 4, 40, WS_FL, 4096)
        else:
            t0, t1, vL16 = vT, vT + 1, 1
            s.header(a)
            a("s_load_dwordx4 s[36:39], s[0:1], 64")
            a("s_load_dwordx2 s[40:41], s[0:1], 88")
            a("v_lshrrev_b32 v1, 6, v0")
            a("v_and_b32 v0, 63, v0")
            a("v_readfirstlane_b32 s%d, v1" % sWave)
            a("v_lshlrev_b32 v1, 4, v0")
        assert SK == 2
        a("s_bfe_u32 s%d, s2, 0x10002" % sKk)
        a("s_bfe_u32 s%d, s2, 0x10001" % sT)
        a("s_lshl_b32 s%d, s%d, 3" % (sMt, sT))
        a("s_lshr_b32 s%d, s2, 5" % sT)
        a("s_add_u32 s%d, s%d, s%d" % (sMt, sMt, sT))
        a("s_and_b32 s%d, s2, 1" % sT)
        a("s_lshl_b32 s%d, s%d, 2" % (sNt, sT))
        a("s_bfe_u32 s%d, s2, 0x20003" % sT)
        a("s_add_u32 s%d, s%d, s%d" % (sNt, sNt, sT))
        a("s_mul_i32 s42, s%d, %d" % (sMt, 4 * NRB))
        a("s_mul_i32 s%d, s%d, %d" % (sT, sWave, NRB))
        a("s_add_u32 s42, s42, s%d" % sT)
        if s.fused:
            a("s_lshr_b32 s%d, s42, 2" % sT)
            a("s_lshl_b32 s%d, s%d, 7" % (sT, sT))
            a("s_lshl_b32 s71, s%d, 6" % sKk)
            a("s_add_u32 s%d, s%d, s71" % (sT, sT))
            a("v_and_b32 v10, 15, v0")
            a("v_lshlrev_b32 v10, 2, v10")
            a("v_add_u32 v10, s%d, v10" % sT)
            a("s_xor_b32 s71, s70, 64")
            a("v_mov_b32 v11, s71")
            a("v_cmp_gt_u32 vcc, 32, v0")
            a("s_mov_b32 s67, 0")
            a("s_nop 0")
            a("v_cndmask_b32 v11, v11, v10, vcc")
        a("s_mul_i32 s43, s42, %d" % (112 * 1024))
        a("s_mul_i32 s%d, s%d, %d" % (sT, sKk, KQ // 32 * 1024))
        a("s_add_u32 s43, s43, s%d" % sT)
        for i in range(NRB):
            a("s_add_u32 s%d, s43, %d" % (sT, i * 112 * 1024))
            a("v_add_u32 v%d, s%d, v%d" % (s.vA[i], sT, vL16))
        a("v_lshrrev_b32 v%d, 3, v0" % t0)
        a("v_lshlrev_b32 v%d, 13, v%d" % (t0, t0))
        a("v_and_b32 v%d, 7, v0" % t1)
        a("v_lshl_add_u32 v%d, v%d, 4, v%d" % (t0, t1, t0))
        a("s_lshl_b32 s%d, s%d, 7" % (sT, sKk))
        a("v_add_u32 v%d, s%d, v%d" % (s.vD[2], sT, t0))
        a("v_xor_b32 v%d, 128, v%d" % (s.vD[0], s.vD[2]))
        a("v_add_u32 v%d, %d, v%d" % (s.vD[1], 2048 - 1056, s.vD[0]))
        a("v_add_u32 v%d, %d, v%d" % (s.vD[3], 2048 - 1056, s.vD[2]))
        a("s_lshr_b32 s%d, s%d, 1" % (sT, sWave))
        a("s_mul_i32 s%d, s%d, 8448" % (s.sLdsW, sT))
        a("s_and_b32 s32, s%d, 1" % sWave)
        a("s_mul_i32 s%d, s32, 2112" % s.sDoff)
        a("s_add_u32 s%d, s%d, s%d" % (s.sLdsW, s.sLdsW, s.sDoff))
        a("s_mul_i32 s%d, s%d, %d" % (s.sDoff, sKk, KQ * 2048))
        a("s_lshl_b32 s32, s32, 12")
        a("s_add_u32 s%d, s%d, s32" % (s.sDoff, s.sDoff))
        a("s_lshl_b32 s32, s%d, 8" % sNt)
        a("s_add_u32 s%d, s%d, s32" % (s.sDoff, s.sDoff))
        for reg, d in ((27, 112), (30, 224)):
            a("s_mul_i32 s%d, s%d, %d" % (reg, sT, d * 2048))
            a("s_add_u32 s%d, s%d, s%d" % (reg, reg, s.sDoff))
        if not s.fused: a("s_waitcnt lgkmcnt(0)")
        srd_off(a, s.sW, 48 if s.fused else 36, 0, 3584 * 2048)
        srd_off(a, s.sA, 40, WS_ACT, 2048 * 3584 * 2)
        if s.fused:
            s.PRE = PRE
            a = a_real
            if s.pre_only: return
        if s.stamp is not None and not s.fused: stamp_mid(a, 3)
        n0 = (s.NST * 2 // 3) * s.NF * s.SUB
        big = n0 + 40
        s.xops = []
        for i in range(NRB):
            s.xops.append((n0, big, [[], "buffer_load_dwordx4 v[%d:%d], v1, s[%d:%d], s47 offen offset:%d" % (vS + 4 * i, vS + 4 * i + 3, s.sS, s.sS + 3, i * 1024), ("ss", i), []]))
            for pi in range(ppg):
                r = vH + (i * ppg + pi) * 4
                s.xops.append((n0, big, [[], "buffer_load_dwordx4 v[%d:%d], v1, s[%d:%d], s45 offen offset:%d" % (r, r + 3, sH, sH + 3, pi * 1024), ("h", i, pi),
                                         ["s_add_u32 s45, s45, 0x8000"] if pi == ppg - 1 else []]))
            s.xops.append((n0, big, [[], "buffer_load_dword v%d, v%d, s[%d:%d], 0 offen offset:%d" % (vM + i, vT + 10, sM, sM + 3, i * 64), ("m", i), []]))
        if s.l2pf:
            assert SK == 2
            upc = 4 * s.NF * s.SUB
            for c in range(1, 7):
                for hh in range(s.l2pf):
                    s.xops.append((max(0, (c - s.l2d) * upc), -1, [[], "buffer_load_dword v31, v12, s[4:7], s70 offen offset:%d" % (hh * 64), ("L2", c, hh),
                                   ["s_add_u32 s70, s70, s71"] if hh == s.l2pf - 1 else []]))
        if s.fused:
            for cpt in (1, 2, 3):
                n = s.chk_steps[cpt]
                s.xops.append((n, n, [[], "buffer_load_dword v12, v%d, s[4:7], 0 offen sc1" % (11 if cpt == 3 else 10), ("fl", cpt), []]))
            n = s.chk_steps[0]
            s.xops.append((n, n, [[("wv", "allst", s.all_stores)], "buffer_store_dword v123, v124, s[4:7], s70 offen sc1", ("flst",), []]))
            if s.pub2 is not None:
                s.xops.append((s.pub2, s.pub2, [[("wv", "st3", [("st", 3, i) for i in range(4)])], "buffer_store_dword v125, v124, s[4:7], s70 offen sc1", ("flst2",), []]))
        def early(p): pass
        def late(p):
            if s.fused:
                p.i("v_lshlrev_b32 v1, 4, v0")
                p.i("v_mov_b32 v123, 4")
                p.i("v_mov_b32 v124, 0")
                p.i("v_mov_b32 v125, 2")
            if s.l2pf:
                p.i("s_lshr_b32 s67, s2, 3")
                p.i("s_lshl_b32 s67, s67, 2")
                p.i("s_add_u32 s67, s67, s%d" % sWave)
                p.i("v_lshlrev_b32 v12, 7, v0")
                p.i("s_and_b32 s70, s2, 3")
                p.i("s_lshl_b32 s70, s70, 5")
                p.i("s_add_u32 s70, s70, s67")
                p.i("s_mul_i32 s70, s70, %d" % (112 * 1024))
                p.i("s_mul_i32 s%d, s%d, %d" % (sT, sKk, 56 * 1024))
                p.i("s_add_u32 s70, s70, s%d" % sT)
                p.i("s_add_u32 s70, s70, 8192")
                p.i("s_mul_i32 s68, s%d, %d" % (sKk, 1792 * 2048))
                p.i("s_lshl_b32 s%d, s67, 13" % sT)
                p.i("s_add_u32 s68, s68, s%d" % sT)
                p.i("s_add_u32 s68, s68, %d" % (524288 - 32 * 8192))
                p.i("s_mov_b32 s71, 524288")
                p.i("s_cmp_lt_u32 s67, 32")
                p.i("s_cselect_b32 s70, s70, s68")
                p.i("s_cselect_b32 s71, 8192, s71")
                p.i("s_cselect_b32 s4, s%d, s%d" % (s.sA, s.sW))
                p.i("s_cselect_b32 s5, s%d, s%d" % (s.sA + 1, s.sW + 1))
                p.i("s_cselect_b32 s6, s%d, s%d" % (s.sA + 2, s.sW + 2))
                p.i("s_mov_b32 s7, 0x00020000")
                p.i("s_cmp_lt_u32 s67, 96")
                p.i("s_cselect_b32 s6, s6, 0")
            p.i("v_bfe_u32 v%d, v0, 2, 2" % vT)
            p.i("v_mul_u32_u24 v%d, 1056, v%d" % (vT, vT))
            p.i("v_lshrrev_b32 v%d, 4, v0" % (vT + 1))
            p.i("v_lshl_add_u32 v%d, v%d, 7, v%d" % (vT, vT + 1, vT))
            p.i("v_and_b32 v%d, 3, v0" % (vT + 1))
            p.i("v_lshl_add_u32 v%d, v%d, 3, v%d" % (s.vB[0], vT + 1, vT))
            p.i("v_lshrrev_b32 v%d, 5, v0" % vT)
            p.i("v_mul_u32_u24 v%d, %d, v%d" % (vT, 96 * 2048, vT))
            for k in range(4): p.i("v_add_u32 v%d, v%d, v%d" % (s.vD2[k], s.vD[k], vT))
            s.base_setup(p.i)
            srd_off(p.i, s.sS, 40, WS_SS, 2048 * 64)
            srd_off(p.i, s.sO, 50 if s.fused else 38, 0, 2048 * 2048)
            srd_off(p.i, sH, 40, WS_HC, 4 * MB)
            srd_off(p.i, sM, 40, WS_MT, 8192)
            srd_off(p.i, s.sX, 40, WS_XB, (SK - 1) * 4 * MB)
            p.i("s_lshl_b32 s47, s42, 10")
            p.i("s_lshl_b32 s45, s42, 5")
            p.i("s_lshl_b32 s%d, s%d, 2" % (sT, sNt))
            p.i("s_add_u32 s45, s45, s%d" % sT)
            p.i("s_mul_i32 s%d, s%d, %d" % (sT, sKk, ppg))
            p.i("s_add_u32 s45, s45, s%d" % sT)
            p.i("s_lshl_b32 s45, s45, 10")
            p.i("s_lshl_b32 s44, s%d, 12" % sWave)
            p.i("s_lshl_b32 s63, s2, 14")
            p.i("s_add_u32 s63, s63, s44")
            p.i("s_xor_b32 s%d, s63, %d" % (s.sXo, 4 << 14))
            p.i("v_and_b32 v%d, 15, v0" % vT)
            p.i("s_lshl_b32 s%d, s42, 4" % sT)
            p.i("v_add_u32 v%d, s%d, v%d" % (vT + 10, sT, vT))
            p.i("v_lshlrev_b32 v%d, 2, v%d" % (vT + 10, vT + 10))
            p.i("s_lshl_b32 s64, s%d, 12" % sWave)
            p.i("s_add_u32 s64, s64, %d" % (s.R * s.STB))
            p.i("v_lshlrev_b32 v%d, 7, v%d" % (vT + 1, vT))
            p.i("v_add_u32 v%d, s64, v%d" % (vT + 1, vT + 1))
            p.i("v_bfe_u32 v%d, v0, 4, 1" % (vT + 2))
            p.i("v_lshl_add_u32 v%d, v%d, 3, v%d" % (vT + 1, vT + 2, vT + 1))
            p.i("v_lshrrev_b32 v%d, 5, v0" % (vT + 2))
            p.i("v_and_b32 v%d, 7, v0" % (vT + 3))
            p.i("v_xor_b32 v%d, v%d, v%d" % (vT + 2, vT + 2, vT + 3))
            for j in range(4):
                p.i("v_xor_b32 v%d, %d, v%d" % (vT + 3, 2 * j, vT + 2))
                p.i("v_lshl_add_u32 v%d, v%d, 4, v%d" % (vT + 4 + j, vT + 3, vT + 1))
            p.i("v_add_u32 v%d, s64, v1" % (vT + 8))
            p.i("v_lshrrev_b32 v%d, 3, v0" % (vT + 1))
            p.i("v_and_b32 v%d, 7, v0" % (vT + 2))
            p.i("v_xor_b32 v%d, v%d, v%d" % (vT + 2, vT + 2, vT + 1))
            p.i("v_lshlrev_b32 v%d, 14, v%d" % (vT + 1, vT + 1))
            p.i("v_lshl_add_u32 v%d, v%d, 4, v%d" % (vT, vT + 2, vT + 1))
            p.i("s_lshr_b32 s44, s42, 4")
            p.i("s_and_b32 s%d, s42, 15" % sT)
            p.i("s_lshl_b32 s%d, s%d, 7" % (sT, sT))
            p.i("s_add_u32 s44, s44, s%d" % sT)
            p.i("s_lshl_b32 s44, s44, 11")
            p.i("s_lshl_b32 s%d, s%d, 8" % (sT, sNt))
            p.i("s_add_u32 s44, s44, s%d" % sT)
            p.i("s_mul_i32 s%d, s%d, %d" % (sT, sKk, KF * 32))
            p.i("s_add_u32 s44, s44, s%d" % sT)
            p.i("s_mov_b32 s66, 0")
        vP = 84
        NU = s.NST * s.SUB * s.NF
        def rc_text(k):
            r = vRc + k * 4
            return "buffer_load_dwordx4 v[%d:%d], v1, s[%d:%d], s63 offen offset:%d%s" % (r, r + 3, s.sX, s.sX + 3, k * 1024, s.xfl)
        for k in range(4):
            n = NU - s.rc_ahead + k
            s.xops.append((n, n, [[], rc_text(k), ("rc", k), []]))
        F = [("wv", "side", [("ss", i) for i in range(NRB)] + [("h", i, pi) for i in range(NRB) for pi in range(ppg)] + [("m", i) for i in range(NRB)])]
        for i in range(NRB):
            b = vS + 4 * i
            F.append("v_add_f32 v%d, v%d, v%d" % (b, b, b + 1))
            F.append("v_add_f32 v%d, v%d, v%d" % (b + 2, b + 2, b + 3))
            F.append("v_add_f32 v%d, v%d, v%d" % (b, b, b + 2))
            reduce_g4(F.append, b, b + 1)
            F.append("v_mov_b32 v%d, 0x%x" % (b + 1, f2u(1e-5)))
            F.append("v_fmac_f32 v%d, 0x%x, v%d" % (b + 1, f2u(1.0 / 1024), b))
            F.append("v_rcp_f32 v%d, v%d" % (vR2 + i, b + 1))
        for i in range(NRB):
            for j in range(KF):
                h = vH + (i * ppg + j // 2) * 4 + 2 * (j % 2)
                t = vP + (i * KF + j) * 4
                F.append("v_lshlrev_b32 v%d, 16, v%d" % (t, h))
                F.append("v_and_b32 v%d, 0xffff0000, v%d" % (t + 1, h))
                F.append("v_lshlrev_b32 v%d, 16, v%d" % (t + 2, h + 1))
                F.append("v_and_b32 v%d, 0xffff0000, v%d" % (t + 3, h + 1))
                for r in range(4): F.append("v_add_f32 v%d, v%d, v%d" % (t + r, t + r, vM + i))
        s.side_fill = (NU - 56, F)
        def tail(e):
            def recv():
                for k in range(4): e.vm(rc_text(k), ("rc2", k))
            for i in range(NRB):
                for j in range(KF):
                    c = s.acc(j, i)
                    t = vP + (i * KF + j) * 4
                    for r in range(4): e.i("v_fmac_f32 v%d, v%d, v%d" % (t + r, c + r, vR2 + i))
            e.i("s_branch %s_chk" % s.name)
            e.label("%s_retry" % s.name)
            recv()
            e.label("%s_chk" % s.name)
            e.i("s_waitcnt vmcnt(0)")
            e.i("v_max_u32 v%d, v%d, v%d" % (vT + 2, vRc, vRc + 1))
            e.i("v_max_u32 v%d, v%d, v%d" % (vT + 3, vRc + 2, vRc + 3))
            for k in range(4, NRC, 4):
                e.i("v_max3_u32 v%d, v%d, v%d, v%d" % (vT + 2, vT + 2, vRc + k, vRc + k + 1))
                e.i("v_max3_u32 v%d, v%d, v%d, v%d" % (vT + 3, vT + 3, vRc + k + 2, vRc + k + 3))
            e.i("v_max_u32 v%d, v%d, v%d" % (vT + 2, vT + 2, vT + 3))
            e.i("v_cmp_eq_u32 vcc, -1, v%d" % (vT + 2))
            e.i("s_add_u32 s66, s66, 1")
            e.i("s_cmp_lt_u32 s66, 0x20000")
            e.i("s_cselect_b64 s[68:69], vcc, 0")
            e.i("s_cmp_lg_u64 s[68:69], 0")
            e.i("s_cbranch_scc1 %s_retry" % s.name)
            if s.stamp is not None: e.i("s_memtime s[%d:%d]" % (SB + 28, SB + 29))
            for i in range(NRB):
                for j in range(KF):
                    r = vRc + (i * ppg + j // 2) * 4 + 2 * (j % 2)
                    t = vP + (i * KF + j) * 4
                    u = vH + 4 * (j % 2)
                    e.i("v_lshlrev_b32 v%d, 16, v%d" % (u, r))
                    e.i("v_and_b32 v%d, 0xffff0000, v%d" % (u + 1, r))
                    e.i("v_lshlrev_b32 v%d, 16, v%d" % (u + 2, r + 1))
                    e.i("v_and_b32 v%d, 0xffff0000, v%d" % (u + 3, r + 1))
                    for q in range(4): e.i("v_fmac_f32 v%d, v%d, v%d" % (t + q, u + q, vR2 + i))
                    e.i("v_cvt_pk_bf16_f32 v%d, v%d, v%d" % (t, t, t + 1))
                    e.i("v_cvt_pk_bf16_f32 v%d, v%d, v%d" % (t + 1, t + 2, t + 3))
                    e.i("ds_write_b64 v%d, v[%d:%d] offset:%d" % (vT + 4 + j, t, t + 1, i * 2048))
            e.i("s_waitcnt lgkmcnt(0)")
            for k in range(4):
                e.i("ds_read_b128 v[%d:%d], v%d offset:%d" % (vRc + 4 * k, vRc + 4 * k + 3, vT + 8, k * 1024))
            for k in range(4):
                e.i("s_waitcnt lgkmcnt(%d)" % (3 - k))
                e.vm("buffer_store_dwordx4 v[%d:%d], v%d, s[%d:%d], s44 offen" % (vRc + 4 * k, vRc + 4 * k + 3, vT, s.sO, s.sO + 3))
                if k < 3: e.i("s_add_u32 s44, s44, %d" % (8 * 16384))
        s.tail = tail
        s.emit_main(a, early, late)
        s.nagpr = s.aX
        if not s.fused: s.footer(a, s.aX, s.R * s.STB + 16384)
    def prof(s, N): return [N * k // 7 for k in range(1, 7)]

class K2H(Gemm2):
    def __init__(s, PD=3, xneed=12, **kw):
        kw.setdefault("npro", 12)
        kw.setdefault("rate", 0.7)
        super().__init__("k2_kernel", NRB=1, NF=4, SUB=4, NST=4, STB=16896, R=4, AR=4, PD=PD, ndma=4, VACC=64, **kw)
        s.xneed = xneed
        s.aM = s.aX
        s.vAccM = 56
        s.vMl = 31
        s.vJunk = 30
        s.dt = 'f16'
        s.LM = s.R * s.STB
        s.LX = s.LM + 8192
    def rd_off(s, sub, j, h):
        return (sub // 2) * 8448 + (sub % 2) * 512 + h * 256 + j * 32
    def dma_text(s, st, n):
        pre = ["s_add_u32 m0, s%d, %d" % (s.sLdsW, (st % s.R) * s.STB + 32 * n)]
        return pre, "buffer_load_dwordx4 v1, s[%d:%d], s%d offen offset:%d lds" % (s.sW, s.sW + 3, s.sDoff, n * 1024)
    def dma_step(s, st): return 16384
    def rdm(s, p, q):
        if q < 16:
            r = s.aM + 4 * (q % 4)
            p.ds("ds_read_b128 a[%d:%d], v%d offset:%d" % (r, r + 3, s.vMl, q * 64), ("M", q))
    def post_sync0(s, p):
        p.wv("vmw", [("vm", 0), ("vm", 1)])
        for q in range(3): s.rdm(p, q)
    def extra_unit(s, p, q):
        p.wl(("M", q), [("M", q)])
        r = s.aM + 4 * (q % 4)
        c = s.vAccM
        src = "0" if q == 0 else "v[%d:%d]" % (c, c + 3)
        p.i("v_mfma_f32_16x16x32_f16 v[%d:%d], a[%d:%d], a[%d:%d], %s" % (c, c + 3, r, r + 3, s.aA(q, 0), s.aA(q, 0) + 3, src))
        s.rdm(p, q + 3)
    def extra_vm(s): return s.xops
    def gen(s, a):
        sT, sWave = s.sT, s.sWave
        vT = 20; vXM = [18, 19]; vX = 32; vXa = 4; vXr = 8
        vHo, vSo, vRo = 16, 17, 3
        sNt, sT1, sX, sM, sXM, sVM = 33, 34, 48, 52, 56, 60
        s.header(a)
        a("s_load_dwordx2 s[36:37], s[0:1], 0")
        a("s_load_dwordx2 s[40:41], s[0:1], 88")
        a("v_lshrrev_b32 v1, 6, v0")
        a("v_and_b32 v0, 63, v0")
        a("v_readfirstlane_b32 s%d, v1" % sWave)
        a("s_and_b32 s%d, s2, 7" % sT1)
        a("s_bfe_u32 s%d, s2, 0x30003" % sNt)
        a("s_lshr_b32 s%d, s2, 6" % sT)
        a("s_lshl_b32 s42, s%d, 4" % sT1)
        a("s_lshl_b32 s%d, s%d, 2" % (sT, sT))
        a("s_add_u32 s42, s42, s%d" % sT)
        a("s_add_u32 s42, s42, s%d" % sWave)
        a("s_lshl_b32 s43, s42, 14")
        a("v_lshlrev_b32 v1, 4, v0")
        a("v_add_u32 v%d, s43, v1" % s.vA[0])
        a("s_mul_i32 s%d, s%d, 4224" % (s.sLdsW, sWave))
        a("s_lshl_b32 s%d, s%d, 3" % (sT, sT1))
        a("s_add_u32 s%d, s%d, s%d" % (sT, sT, sNt))
        a("s_lshl_b32 s%d, s%d, 16" % (s.sDoff, sT))
        a("s_lshl_b32 s47, s%d, 10" % sT)
        a("s_add_u32 s47, s47, %d" % (8192 - 1024))
        a("s_lshl_b32 s%d, s%d, 12" % (sT, sWave))
        a("s_add_u32 s%d, s%d, s%d" % (s.sDoff, s.sDoff, sT))
        a("s_lshl_b32 s45, s%d, 11" % sWave)
        a("s_add_u32 s45, s45, %d" % s.LM)
        a("s_lshl_b32 s46, s%d, 10" % sT1)
        a("s_waitcnt lgkmcnt(0)")
        srd_off(a, s.sW, 40, WS_V, 4 * MB)
        srd_off(a, s.sA, 40, WS_WSF, 2 * MB)
        srd_off(a, sVM, 40, WS_VM, 8192 + 65536)
        if s.stamp is not None: stamp_mid(a, 3)
        s.xops = []
        for k in range(4):
            s.xops.append((0, s.xneed, [["s_add_u32 m0, s64, %d" % (k * 1024)],
                           "buffer_load_dwordx4 v%d, s[%d:%d], 0 offen lds" % (vXa + k, sX, sX + 3), ("x", k), []]))
        s.xops.append((0, s.xneed, [[], "buffer_load_dword v%d, v%d, s[%d:%d], 0 offen" % (vXM[0], vT + 3, sXM, sXM + 3), ("xm", 0), []]))
        s.xops.append((0, s.xneed, [[], "buffer_load_dword v%d, v%d, s[%d:%d], 0 offen" % (vXM[1], vRo, sXM, sXM + 3), ("xm", 1), []]))
        def early(p):
            p.i("s_mov_b32 m0, s45")
            p.i("s_nop 0")
            p.vm("buffer_load_dwordx4 v1, s[%d:%d], s46 offen lds" % (sVM, sVM + 3), ("vm", 0))
            p.vm("buffer_load_dwordx4 v1, s[%d:%d], s47 offen offset:1024 lds" % (sVM, sVM + 3), ("vm", 1))
        def late(p):
            I = p.i
            I("v_bfe_u32 v%d, v0, 2, 3" % vT)
            I("v_mul_u32_u24 v%d, 1056, v%d" % (vT, vT))
            I("v_lshrrev_b32 v%d, 5, v0" % (vT + 1))
            I("v_lshl_add_u32 v%d, v%d, 7, v%d" % (vT, vT + 1, vT))
            I("v_and_b32 v%d, 3, v0" % (vT + 1))
            I("v_lshl_add_u32 v%d, v%d, 3, v%d" % (s.vB[0], vT + 1, vT))
            s.base_setup(I)
            I("v_lshrrev_b32 v%d, 4, v0" % vT)
            I("v_lshlrev_b32 v%d, 4, v%d" % (vT, vT))
            I("v_and_b32 v%d, 1, v0" % (vT + 1))
            I("v_lshl_add_u32 v%d, v%d, 10, v%d" % (vT, vT + 1, vT))
            I("v_add_u32 v%d, s45, v%d" % (s.vMl, vT))
            I("v_and_b32 v%d, 15, v0" % vT)
            I("v_lshlrev_b32 v%d, 4, v%d" % (vT + 2, vT))
            I("s_lshl_b32 s%d, s42, 4" % sT)
            I("v_add_u32 v%d, s%d, v%d" % (vT + 3, sT, vT))
            I("v_lshlrev_b32 v%d, 2, v%d" % (vT + 3, vT + 3))
            I("s_and_b32 s65, s42, 15")
            I("s_lshl_b32 s65, s65, 7")
            I("s_add_u32 s65, s65, s%d" % sT1)
            I("s_sub_u32 s66, 2048, s65")
            I("v_lshlrev_b32 v%d, 3, v%d" % (vT + 4, vT))
            I("v_sub_u32 v%d, s66, v%d" % (vT + 4, vT + 4))
            I("v_and_b32 v%d, 0x7ff, v%d" % (vT + 4, vT + 4))
            I("v_and_b32 v%d, 7, v%d" % (vT + 5, vT + 4))
            I("v_lshrrev_b32 v%d, 3, v%d" % (vT + 4, vT + 4))
            I("v_lshl_add_u32 v%d, v%d, 8, v%d" % (vT + 4, vT + 5, vT + 4))
            I("v_lshlrev_b32 v%d, 2, v%d" % (vRo, vT + 4))
            I("v_lshrrev_b32 v%d, 4, v%d" % (vT + 5, vT + 4))
            I("v_and_b32 v%d, 15, v%d" % (vT + 4, vT + 4))
            I("v_lshlrev_b32 v%d, 4, v%d" % (vT + 4, vT + 4))
            I("v_lshl_add_u32 v%d, v%d, 10, v%d" % (vSo, vT + 5, vT + 4))
            I("v_lshl_add_u32 v%d, v%d, 15, v%d" % (vHo, vT + 5, vT + 4))
            I("v_lshrrev_b32 v%d, 4, v0" % (vT + 5))
            I("v_xor_b32 v%d, 3, v%d" % (vT + 5, vT + 5))
            I("v_lshl_add_u32 v%d, v%d, 8, v%d" % (vHo, vT + 5, vHo))
            I("v_lshrrev_b32 v%d, 4, v0" % (vT + 4))
            I("v_and_b32 v%d, 7, v0" % (vT + 5))
            I("v_xor_b32 v%d, v%d, v%d" % (vT + 4, vT + 4, vT + 5))
            I("v_lshlrev_b32 v%d, 4, v%d" % (vT + 4, vT + 4))
            I("v_and_b32 v%d, 0x38, v0" % (vT + 5))
            I("s_lshl_b32 s67, s%d, 7" % sNt)
            I("s_sub_u32 s68, %d, s67" % (15 * 128))
            for k in range(4):
                if k < 2: I("v_add_u32 v%d, s65, v%d" % (vT + 6, vT + 5))
                else: I("v_sub_u32 v%d, s66, v%d" % (vT + 6, vT + 5))
                if k % 2:
                    I("v_add_u32 v%d, %d, v%d" % (vT + 6, 64 if k < 2 else -64, vT + 6))
                I("v_and_b32 v%d, 0x7ff, v%d" % (vT + 6, vT + 6))
                I("v_lshl_add_u32 v%d, v%d, 11, v%d" % (vT + 6, vT + 6, vT + 4))
                if k % 2: I("v_xor_b32 v%d, 64, v%d" % (vT + 6, vT + 6))
                I("v_add_u32 v%d, s%d, v%d" % (vXa + k, 67 if k < 2 else 68, vT + 6))
            I("s_lshl_b32 s64, s%d, 12" % sWave)
            I("s_add_u32 s64, s64, %d" % s.LX)
            I("v_lshlrev_b32 v%d, 7, v%d" % (vT + 1, vT))
            I("v_add_u32 v%d, s64, v%d" % (vT + 1, vT + 1))
            I("v_bfe_u32 v%d, v0, 4, 1" % (vT + 4))
            I("v_lshl_add_u32 v%d, v%d, 3, v%d" % (vT + 1, vT + 4, vT + 1))
            I("v_lshrrev_b32 v%d, 5, v0" % (vT + 4))
            I("v_lshrrev_b32 v%d, 1, v%d" % (vT + 5, vT))
            I("v_xor_b32 v%d, v%d, v%d" % (vT + 4, vT + 4, vT + 5))
            for j in range(4):
                I("v_xor_b32 v%d, %d, v%d" % (vT + 5, 2 * j, vT + 4))
                I("v_lshl_add_u32 v%d, v%d, 4, v%d" % (vXr + j, vT + 5, vT + 1))
            I("v_add_u32 v12, 16, v0")
            I("v_and_b32 v12, 63, v12")
            I("v_lshlrev_b32 v12, 2, v12")
            srd_off(I, s.sS, 40, WS_SS, 2048 * 64)
            srd_off(I, s.sO, 40, WS_HC, 4 * MB)
            srd_off(I, sX, 36, 0, 2048 * 2048)
            srd_off(I, sM, 40, WS_MT, 8192)
            srd_off(I, sXM, 40, WS_XM, 8192)
            I("s_lshl_b32 s44, s42, 15")
            I("s_lshl_b32 s%d, s%d, 11" % (sT, sNt))
            I("s_add_u32 s44, s44, s%d" % sT)
            I("s_sub_u32 s69, %d, s%d" % (15 * 2048, sT))
            for dst, src in ((45, sNt), (70, 71)):
                if dst == 70: I("s_sub_u32 s71, 15, s%d" % sNt)
                I("s_lshr_b32 s%d, s%d, 2" % (sT, src))
                I("s_lshl_b32 s%d, s%d, 8" % (dst, sT))
                I("s_and_b32 s%d, s%d, 3" % (sT, src))
                I("s_lshl_b32 s%d, s%d, 2" % (sT, sT))
                I("s_add_u32 s%d, s%d, s%d" % (dst, dst, sT))
            I("s_lshl_b32 s%d, s42, 10" % sT)
            I("s_add_u32 s45, s45, s%d" % sT)
            I("v_cmp_lt_u32 s[38:39], 47, v0")
            srd_off(I, 4, 40, WS_FL, 4096)
            I("s_lshl_b32 s32, s2, 2")
            I("s_add_u32 s32, s32, s%d" % sWave)
            I("s_lshl_b32 s32, s32, 2")
            I("v_mov_b32 v29, 0")
            p.vm("buffer_store_dword v29, v29, s[4:7], s32 offen", ("flz",))
        def tail(e):
            R_ = 48
            for j in range(4):
                e.ds("ds_bpermute_b32 v%d, v12, v%d" % (R_ + j, s.acc(j, 0)), ("bp", j))
            e.wv("side", [("x", k) for k in range(4)] + [("xm", i) for i in range(2)])
            for j in range(4):
                e.ds("ds_read_b64 v[%d:%d], v%d" % (vX + 2 * j, vX + 2 * j + 1, vXr + j), ("xr", 0, j))
            for j in range(4):
                e.i("v_xor_b32 v%d, 24, v%d" % (vXr + j, vXr + j))
                e.ds("ds_read_b64 v[%d:%d], v%d offset:2048" % (vX + 8 + 2 * j, vX + 8 + 2 * j + 1, vXr + j), ("xr", 1, j))
            for i in range(2):
                e.i("v_add_f32 v%d, v%d, v%d" % (vXM[i], vXM[i], s.vAccM))
            e.i("v_mov_b32 v%d, v%d" % (R_ + 4, s.vAccM + 1))
            e.wl("bpw", [("bp", j) for j in range(4)])
            for j in range(4):
                e.i("v_cndmask_b32 v%d, v%d, v%d, s[38:39]" % (R_ + j, R_ + j, R_ + j + 1))
            for i in range(2):
                m = vXM[i]
                ssr = 60 + 2 * i
                for j in range(4):
                    c = s.acc(j, 0) if i == 0 else s.acc(3 - j, 0)
                    src = [c, c + 1, c + 2, c + 3] if i == 0 else [R_ + 3 - j, c + 3, c + 2, c + 1]
                    x = vX + (i * 4 + j) * 2
                    t = vT + 4
                    e.wl(("xr", i, j), [("xr", i, j)])
                    e.i("v_lshlrev_b32 v%d, 16, v%d" % (t, x))
                    e.i("v_and_b32 v%d, 0xffff0000, v%d" % (t + 1, x))
                    e.i("v_lshlrev_b32 v%d, 16, v%d" % (t + 2, x + 1))
                    e.i("v_and_b32 v%d, 0xffff0000, v%d" % (t + 3, x + 1))
                    for r in range(4): e.i("v_sub_f32 v%d, v%d, v%d" % (t + r, t + r, m))
                    for r in range(4): e.i("v_add_f32 v%d, v%d, v%d" % (t + r, t + r, src[r]))
                    e.i("v_cvt_pk_bf16_f32 v%d, v%d, v%d" % (x, t, t + 1))
                    e.i("v_cvt_pk_bf16_f32 v%d, v%d, v%d" % (x + 1, t + 2, t + 3))
                    if j % 2 == 1:
                        e.vm("buffer_store_dwordx4 v[%d:%d], v%d, s[%d:%d], s%d offen offset:%d%s" % (x - 2, x + 1, 1 if i == 0 else vHo, s.sO, s.sO + 3, 44 if i == 0 else 69, (j // 2) * 1024, s.st_flags))
                    for r in range(4):
                        if j == 0 and r == 0: e.i("v_mul_f32 v%d, v%d, v%d" % (ssr, t, t))
                        else: e.i("v_fmac_f32 v%d, v%d, v%d" % (ssr, t + r, t + r))
                reduce_g4(e.i, ssr, ssr + 1)
                e.vm("buffer_store_dword v%d, v%d, s[%d:%d], s%d offen" % (ssr, vT + 2 if i == 0 else vSo, s.sS, s.sS + 3, 45 if i == 0 else 70))
            e.i("s_cmp_lg_u32 s%d, 0" % sNt)
            e.i("s_cbranch_scc1 %s_nomt" % s.name)
            e.vm("buffer_store_dword v%d, v%d, s[%d:%d], 0 offen" % (vXM[0], vT + 3, sM, sM + 3))
            e.label("%s_nomt" % s.name)
        s.tail = tail
        s.emit_main(a, early, late)
        s.footer(a, s.aM + 16, s.LX + 16384)

def gen_g34(a, stamp, c3, c4):
    c4 = dict(c4); c3 = dict(c3)
    chk = c4.pop("chk_steps", None) or {0: 24, 1: 76, 2: 180, 3: 284}
    order = c3.pop("order", (0, 1, 6, 2, 3, 4, 5))
    flag_after = c3.pop("flag_after", {6: 1})
    pub2 = c4.pop("pub2", 0)
    alt = c4.pop("alt", False)
    pre_at = c3.pop("pre_at", 368)
    fl0 = c3.pop("fl0", 440)
    g3 = G3(stamp=stamp, **c3); g4 = G4S(stamp=stamp, **c4)
    g3.name = g4.name = "g34_kernel"
    g3.fused = g4.fused = True
    g3.handover = True
    g3.pair_order = list(order); g3.flag_after = flag_after
    g3.fill_flags = " sc1"
    g4.a_flags = " sc1"
    g4.selfpf = False
    g4.chk_steps = chk
    g4.alt_path = alt
    g4.pub2 = pub2
    g4.all_stores = [("st", j, i) for j in (1, 3, 5, 6) for i in range(4)]
    g3.prof = lambda N: []
    g3.m_prof = 4
    g4.m_start, g4.m_end, g4.m_prof = 5, 6, 7
    g4.prof = lambda N: [N // 4, N // 2, 3 * N // 4]
    g4.pre_only = True
    g4.gen(a)
    g3.extra_fill = (pre_at, g4.PRE)
    g3.late_x = [(fl0, fl0, [[], "buffer_load_dword v12, v10, s[4:7], 0 offen sc1", ("fl", 0), []])]
    g3.gen(a)
    assert not any(x in g3.leftover for x in g4.PRE[-3:]), "pre-setup must finish inside the g3 loop"
    assert g3.last_vm_step < pre_at, g3.last_vm_step
    assert "v_mov_b32 v28, 1" not in g3.leftover, "first progress flag must be published before the first flag check"
    i1 = [k for k, it in enumerate(g3.stream.items) if it[1] == "v_mov_b32 v28, 1"][0]
    assert any(it[0] == 'vm' and "s59 offen sc1" in it[1] for it in g3.stream.items[i1:]), "flag store not inside g3 loop"
    g4.pre_only = False
    g4.inherited = g3.leftover
    g4.prev_streams = [g3.stream]
    g4.gen(a)
    gen_g34.info = {c_: g4.issue_step.get(("A", 16 * c_, 0)) for c_ in (1, 2, 3)}
    if stamp is not None: stamp_end(a, 40, stamp, g4.sWave)
    a("s_branch g34_kernel_end")
    g4.slow_paths(a)
    a.label("g34_kernel_end")
    a.end_kernel("g34_kernel", 256, max(g3.nagpr, g4.nagpr), 102)
    a.launch("g34_kernel", 256, 256, max(g3.R * g3.STB, g4.R * g4.STB + 16384))
```

```python
import sys
from common import *
from gemm2 import *
import k1b, k1c
HEADER = """pre-LN FNet mixing + pre-LN SwiGLU FFN, gfx950. 4 launches:
k1: LayerNorm(x) + 1024-pt DFT along hidden (2-stage 32x32 MFMA factorisation) + radix-8 step of the sequence DFT
k2: remaining 256-pt part of the sequence DFT as GEMM with the input DFT matrices, residual, row-centering, row sum-of-squares
g3: gate/up GEMM + SiLU*up (LayerNorm scale folded in)
g4: down GEMM + residual"""
def build(stamp=False, c3={}, c4={}, c2={}, c1={}, split=True, herm=True, fuse=True):
    a = Asm()
    (k1c if herm else k1b).gen_k1(a, stamp=0 if stamp else None, **c1)
    (K2H if herm else K2)(stamp=1 if stamp else None, **c2).gen(a)
    c3 = dict(c3); c3.setdefault('fill', 4 * (c4.get('SK', 2) - 1) if split else 0)
    if fuse:
        gen_g34(a, 2 if stamp else None, c3, c4)
    else:
        G3(stamp=2 if stamp else None, **c3).gen(a)
        (G4S if split else G4)(stamp=3 if stamp else None, **c4).gen(a)
    a.label('code_end')
    return a.text(HEADER)
if __name__ == "__main__":
    out = sys.argv[1] if len(sys.argv) > 1 else "sequential_preLN__spectral_fnet__swiglu_ffn__prompt.s"
    open(out, "w").write(build())
```

```python
from common import *

class Gemm2:
    def __init__(s, name, NRB, NF, SUB, NST, STB, R, AR, PD, ndma, VACC, stamp=None, skip=(), npro=0, rate=1, st_flags="", LA=None, selfpf=True):
        s.name, s.NRB, s.NF, s.SUB, s.NST, s.STB, s.R, s.AR, s.PD, s.ndma, s.VACC = name, NRB, NF, SUB, NST, STB, R, AR, PD, ndma, VACC
        s.stamp, s.skip, s.npro, s.rate, s.st_flags = stamp, skip, npro, rate, st_flags
        s.LA = LA
        s.selfpf = selfpf
        s.vJunk = 31
        s.dt = 'bf16'
        s.vCode, s.sCode, s.retouch = 28, 4, ()
        s.xbar_after = ()
        s.m_start, s.m_end, s.m_prof = 0, 1, 4
        s.fused = False
        s.handover, s.inherited, s.prev_streams = False, [], []
        s.late_x = []
        s.fill_step = {}
        s.defer_blocks = ()
        s.carry = []
        s.afile = 'a'
        s.slot0, s.pre_stages = 0, 0
        s.gate, s.gate_na, s.after_k2 = None, 8, False
        s.issue_step = {}
        s.alt_path = False
        s.a_flags = ''
        s.NB = PD + 1
        s.NACC = NF * NRB * 4
        s.vA = [2 + i for i in range(NRB)]
        s.vD = [6 + i for i in range(ndma)]
        s.spb = 65536 // STB
        s.nbase = -(-R // s.spb)
        s.vB = [13 + k for k in range(s.nbase)]
        assert s.nbase <= 3
        s.aBbase = AR * SUB * NRB * 4
        s.aX = s.aBbase + s.NB * 4
        s.sA, s.sW, s.sO, s.sS = 8, 12, 16, 20
        s.sWave, s.sDoff, s.sAoff, s.sLdsW, s.sT = 24, 25, 26, 28, 31
        s.vpm = 2
    def acc(s, j, i): return s.VACC + (j * s.NRB + i) * 4
    def aA(s, q, i): return ((q % (s.AR * s.SUB)) * s.NRB + i) * 4
    def unit_order(s): return [(st, sub, j) for st in range(s.NST) for sub in range(s.SUB) for j in range(s.NF)]
    def extra_unit(s, p, q): pass
    def post_sync0(s, p): pass
    def is_late(s, st, n): return False
    def a_pre(s, q): return []
    def late_steps(s, units): return {}
    def valu_ready(s, units): return {}
    def extra_vm(s): return []
    def dma_ops(s, st):
        ops = []
        for n in range(s.ndma):
            pre, t = s.dma_text(st, n)
            ops.append([pre, t, ("D", st, n), []])
        if st + 1 < s.NST and s.dma_step(st) is not None:
            ops[-1][3] = ["s_add_u32 s%d, s%d, %d" % (s.sDoff, s.sDoff, s.dma_step(st))]
        return ops
    def a_ops(s, q):
        ops = []
        for i in range(s.NRB):
            r = s.aA(q, i)
            t = "buffer_load_dwordx4 a[%d:%d], v%d, s[%d:%d], s%d offen offset:%d%s" % (r, r + 3, s.vA[i], s.sA, s.sA + 3, s.sAoff, (q % 4) * 1024, s.a_flags)
            ops.append([s.a_pre(q) if i == 0 else [], t, ("A", q, i), []])
        if q % 4 == 3:
            ops[-1][3] = ["s_add_u32 s%d, s%d, 4096" % (s.sAoff, s.sAoff)]
        return ops
    def put(s, p, op):
        pre, t, tag, post = op
        for x in pre:
            if isinstance(x, tuple):
                if x[0] == "wv": p.wv(x[1], x[2])
                elif x[0] == "label": p.label(x[1])
            else: p.i(x)
        if pre: p.i("s_nop 0")
        p.vm(t, tag)
        for x in post: p.i(x)
    def base_setup(s, a):
        for k in range(1, s.nbase):
            a("v_add_u32 v%d, %d, v%d" % (s.vB[k], k * s.spb * s.STB, s.vB[0]))
    def emit_main(s, a, early, late):
        units = s.unit_order()
        N = len(units)
        PD = s.PD
        first_st, last_st, first_q, last_q = {}, {}, {}, {}
        for n, (st, sub, j) in enumerate(units):
            q = st * s.SUB + sub
            first_st.setdefault(st, n); last_st[st] = n
            first_q.setdefault(q, n); last_q[q] = n
        sync_step = {st: first_st[st] - PD for st in range(s.NST)}
        sync_at = {}
        for st, n in sync_step.items(): sync_at.setdefault(n, []).append(st)
        xbar = [last_st[st] + 1 for st in s.xbar_after]
        bsteps = sorted(list(sync_step.values()) + xbar)
        qd, qa, qd2 = [], [], []
        late_steps = {st: n - PD for st, n in s.late_steps(units).items()}
        late_at = {}
        for st, n in late_steps.items(): late_at.setdefault(n, []).append(st)
        for st in range(s.NST):
            if st < s.R: e = -10**9
            else:
                L = last_st[st - s.R]
                c = [b for b in bsteps if b > L]
                e = c[0]
                assert e < sync_step[st], ("dma cannot be issued before its sync", st)
            if s.LA is not None: e = max(e, sync_step[st] - s.LA)
            for op in s.dma_ops(st) if st >= s.pre_stages else []:
                late_ = s.is_late(st, op[2][2])
                (qd2 if late_ else qd).append((e, late_steps[st] if late_ else sync_step[st], op))
        qd += qd2
        nq = s.NST * s.SUB
        for q in range(nq):
            e = -10**9 if q < s.AR * s.SUB else last_q[q - s.AR * s.SUB] + 1
            assert e <= first_q[q], ("A ring too small", q)
            if s.LA is not None: e = max(e, first_q[q] - s.LA)
            for op in s.a_ops(q): qa.append((e, first_q[q], op))
        qx = list(s.extra_vm())
        if s.selfpf:
            for k, n in enumerate(s.retouch):
                qx.append((n, n, [[], "global_load_dword v%d, v%d, s[%d:%d]" % (s.vJunk, s.vCode, s.sCode, s.sCode + 1), ("C", k), []]))
        qx += s.late_x
        qx = sorted(qx, key=lambda x: x[0])
        def next_vm(step):
            c = []
            for qq in (qd, qa, qx):
                if qq and qq[0][0] <= step: c.append((qq[0][1], id(qq), qq))
            if not c: return None
            c.sort(key=lambda x: x[0])
            return c[0][2].pop(0)[2]
        p = Stream(type(s).__name__)
        p.i("s_mov_b32 s%d, 0" % s.sAoff)
        early(p)
        if s.gate:
            for _ in range(2 * s.ndma): s.put(p, qd.pop(0)[2])
            late(p)
            s.gate(p)
            for _ in range(s.gate_na): s.put(p, qa.pop(0)[2])
            late = lambda p: None
        else:
          while (qd and qd[0][1] < 0) or (qa and qa[0][1] <= 0):
            s.put(p, next_vm(-1))
          for _ in range(s.npro):
            op = next_vm(-1)
            if op: s.put(p, op)
        if s.inherited and s.stamp is not None and not s.alt_path: p.i("s_memtime s[%d:%d]" % (SB + 12, SB + 13))
        for x in s.inherited: s.fill_emit(p, x)
        if s.inherited and s.stamp is not None and not s.alt_path: p.i("s_memtime s[%d:%d]" % (SB + 16, SB + 17))
        if s.alt_path:
            i0 = [k for k, it in enumerate(p.items) if it[0] == 'label' and it[1] == "g34_cont0"][0]
            ninh = len(s.inherited)
            s.alt_loads = [it[1] for it in p.items[i0 + 1:len(p.items) - ninh]]
            p.label("g34_join0")
        late(p)
        def sync(st):
            p.wv(("D", st), [("D", st, n) for n in range(s.ndma) if not s.is_late(st, n)])
            p.i("s_barrier")
        def rd(n, h):
            if n >= N: return
            st, sub, j = units[n]
            slot = (st + s.slot0) % s.R
            r = s.aBbase + (n % s.NB) * 4 + 2 * h
            p.ds("ds_read_b64_tr_b16 a[%d:%d], v%d offset:%d" % (r, r + 1, s.vB[slot // s.spb], (slot % s.spb) * s.STB + s.rd_off(sub, j, h)), ("B", n, h))
        for n in range(-PD, 0):
            for st in sync_at.get(n, []):
                sync(st)
                if st == 0: s.post_sync0(p)
            rd(n + PD, 0); rd(n + PD, 1)
        if s.stamp is not None: p.i("s_memtime s[%d:%d]" % (SB + 8 + 2 * s.m_start, SB + 9 + 2 * s.m_start))
        vr = s.valu_ready(units)
        vq = []
        seen_q = set()
        seen_j = set()
        credit = 0.0
        vcred = 0.0
        for n, (st, sub, j) in enumerate(units):
            q = st * s.SUB + sub
            vq += vr.get(n, [])
            if s.stamp is not None and n in s.prof(N): p.i("s_memtime s[%d:%d]" % (SB + 8 + 2 * (s.m_prof + s.prof(N).index(n)), SB + 9 + 2 * (s.m_prof + s.prof(N).index(n))))
            if q not in seen_q:
                seen_q.add(q)
                if s.afile == 'a': p.wv(("A", q), [("A", q, i) for i in range(s.NRB)])
                s.extra_unit(p, q)
            p.wl(("B", n), [("B", n, 0), ("B", n, 1)])
            b = s.aBbase + (n % s.NB) * 4
            for i in range(s.NRB):
                c = s.acc(j, i)
                p.i("v_mfma_f32_16x16x32_%s v[%d:%d], a[%d:%d], %s[%d:%d], %s" % (s.dt,
                    c, c + 3, b, b + 3, s.afile, s.aA(q, i), s.aA(q, i) + 3, ("v[%d:%d]" % (c, c + 3)) if j in seen_j else "0"))
                if i == 0:
                    for st2 in sync_at.get(n, []): sync(st2)
                    if n in xbar: p.i("s_barrier")
                    if n in late_at:
                        p.wv(("Dlate", n), [("D", st2, k) for st2 in late_at[n] for k in range(s.ndma) if s.is_late(st2, k)])
                        p.i("s_barrier")
                    rd(n + PD, 0)
                    if s.NRB == 1: rd(n + PD, 1)
                elif i == 1:
                    rd(n + PD, 1)
                if i == s.NRB - 1:
                    seen_j.add(j)
                    credit = min(credit + s.rate, max(s.rate, 1.0) + 0.99)
                    if qx and qx[0][0] <= n and qx[0][1] <= n:
                        if qx[0] not in s.late_x: s.last_vm_step = n
                        s.put(p, qx.pop(0)[2])
                    while credit >= 1.0:
                        op = next_vm(n)
                        if not op: break
                        s.put(p, op); credit -= 1.0
                        s.last_vm_step = n
                        s.issue_step[op[2]] = n
                vcred = min(vcred + s.vpm, s.vpm + 0.99)
                while vcred >= 1.0 and vq:
                    x = vq.pop(0); vcred -= 1.0
                    s.fill_emit(p, x)
                    s.fill_step[id(x) if isinstance(x, tuple) else x] = n
        assert not qd and not qa and not qx
        if s.stamp is not None: p.i("s_memtime s[%d:%d]" % (SB + 8 + 2 * s.m_end, SB + 9 + 2 * s.m_end))
        s.post_loop(p)
        p.i("s_nop 7")
        for k in sorted(vr):
            if k >= N: vq += vr[k]
        if s.handover:
            s.leftover = vq; s.stream = p
            return
        for x in vq: s.fill_emit(p, x)
        s.tail(p)
        res = resolve(s.prev_streams + [p])
        for q_ in s.prev_streams: emit(a, q_, res, ())
        emit(a, p, res, s.skip)
    def tail(s, p): pass
    def post_loop(s, p): pass
    def fill_emit(s, p, x):
        if isinstance(x, tuple):
            if x[0] == "wv": p.wv(x[1], x[2])
            else: p.vm(x[1], x[2])
        elif x.startswith("buffer_"): p.vm(x, None)
        else: p.i(x)
    def prof(s, N): return [N * k // 8 for k in range(1, 8)]
    def header(s, a):
        a.begin_kernel(s.name)
        a("s_cmp_ge_u32 s2, 256")
        a("s_cbranch_scc1 %s_end" % s.name)
        if s.stamp is not None: stamp_begin(a)
        if s.selfpf: self_code_touch(a, s.name, "%s_end" % s.name, s.vCode, s.vJunk, s.sCode, 2)
    def footer(s, a, nagpr, lds):
        if s.stamp is not None:
            stamp_mid(a, 2); stamp_end(a, 40, s.stamp, s.sWave)
        a.label("%s_end" % s.name)
        a.end_kernel(s.name, s.VACC + s.NACC, nagpr, 102)
        a.launch(s.name, 256, 256, lds)

def touch_ops(g, skarg, vtmp, vdst, ssrd=64, soff=68):
    L = []
    srd_off(L.append, ssrd, skarg, 0, 1024 * 7168)
    L.append("s_lshl_b32 s%d, s2, 2" % soff)
    L.append("s_add_u32 s%d, s%d, s%d" % (soff, soff, g.sWave))
    L.append("s_mul_i32 s%d, s%d, 7168" % (soff, soff))
    L.append("v_lshlrev_b32 v%d, 6, v0" % vtmp)
    ops = [[[], "buffer_load_dword v%d, v%d, s[%d:%d], s%d offen" % (vdst, vtmp, ssrd, ssrd + 3, soff), ("T", 0), []],
           [[], "buffer_load_dword v%d, v%d, s[%d:%d], s%d offen offset:3072" % (vdst, vtmp, ssrd, ssrd + 3, soff), ("T", 1), []]]
    return L, ops

class G3(Gemm2):
    def __init__(s, AR=4, PD=3, R=5, pf=(30, 24, 364, 1), retouch=(150, 300), tfl='', dfl='', xbar=(), pk=False, pf0=8, TS=3, vpm=2, fill=12, fill_flags="", **kw):
        s.fill = fill; s.fill_flags = fill_flags
        kw.setdefault("npro", 7); kw.setdefault("rate", 0.66); kw.setdefault("st_flags", " sc1")
        super().__init__("g3_kernel", NRB=4, NF=14, SUB=2, NST=16, STB=28672, R=R, AR=AR, PD=PD, ndma=7, VACC=32, **kw)
        s.pf, s.TS, s.vpm = pf, TS, vpm
        s.sCode, s.retouch = 56, retouch
        s.tfl, s.dfl = tfl, dfl
        s.xbar_after = xbar
        s.pk = pk
        s.pf0 = pf0
        s.flag_after = {3: 1, 5: 3}
        s.extra_fill = None
        s.pair_order = [0, 1, 2, 3, 4, 5, 6]
        s.vC1 = [16, 17, 18, 19]; s.vT = 20
    def dma_text(s, st, n):
        pre = ["s_add_u32 m0, s%d, %d" % (s.sLdsW, (st % s.R) * s.STB + (n // 4) * 4096)] if n % 4 == 0 else []
        return pre, "buffer_load_dwordx4 v%d, s[%d:%d], s%d offen offset:%d%s lds" % (s.vD[n], s.sW, s.sW + 3, s.sDoff, (n % 4) * 1024, s.dfl)
    def dma_step(s, st): return 64 * 7168
    def rd_off(s, sub, j, h):
        mat, jj = divmod(j, 7)
        return (sub * 2 + mat) * 7168 + h * 16 * 224 + jj * 32
    def unit_order(s):
        u = [(st, sub, j) for st in range(s.NST - s.TS) for sub in range(s.SUB) for j in range(s.NF)]
        for p_ in s.pair_order:
            for st in range(s.NST - s.TS, s.NST):
                for sub in range(s.SUB):
                    u += [(st, sub, p_), (st, sub, p_ + 7)]
        return u
    def epi_pair(s, j):
        L = []
        if j % 2 == 1: L.append("s_add_u32 s45, s44, %d" % ((j // 2) * 16 * 1024))
        if j == 6: L.append("s_mov_b32 s45, s46")
        for i in range(s.NRB):
            g, u = s.acc(j, i), s.acc(j + 7, i)
            t = s.vT + 4 * (i % 2)
            o = g if j % 2 == 0 else s.acc(j - 1, i) + 2
            c = s.vC1[i]
            if s.pk:
                sel = "op_sel:[0,%d] op_sel_hi:[1,%d]" % (c % 2, c % 2)
                for r in (0, 2): L.append("v_pk_mul_f32 v[%d:%d], v[%d:%d], v[%d:%d] %s" % (t + r, t + r + 1, g + r, g + r + 1, c & ~1, (c & ~1) + 1, sel))
                for r in range(4):
                    L.append("v_exp_f32 v%d, v%d" % (t + r, t + r))
                    if r % 2 == 1: L.append("v_pk_mul_f32 v[%d:%d], v[%d:%d], v[%d:%d]" % (g + r - 1, g + r, g + r - 1, g + r, u + r - 1, u + r))
                for r in (0, 2): L.append("v_pk_add_f32 v[%d:%d], v[%d:%d], 1.0 op_sel_hi:[1,0]" % (t + r, t + r + 1, t + r, t + r + 1))
                for r in range(4): L.append("v_rcp_f32 v%d, v%d" % (t + r, t + r))
                if i and (j % 2 == 1 or j == 6): L.append("s_add_u32 s45, s45, %d" % (112 * 1024))
                for r in (0, 2): L.append("v_pk_mul_f32 v[%d:%d], v[%d:%d], v[%d:%d]" % (g + r, g + r + 1, g + r, g + r + 1, t + r, t + r + 1))
            else:
                for r in range(4): L.append("v_mul_f32 v%d, v%d, v%d" % (t + r, g + r, c))
                for r in range(4):
                    L.append("v_exp_f32 v%d, v%d" % (t + r, t + r))
                    L.append("v_mul_f32 v%d, v%d, v%d" % (g + r, g + r, u + r))
                for r in range(4): L.append("v_add_f32 v%d, 1.0, v%d" % (t + r, t + r))
                for r in range(4): L.append("v_rcp_f32 v%d, v%d" % (t + r, t + r))
                if i and (j % 2 == 1 or j == 6): L.append("s_add_u32 s45, s45, %d" % (112 * 1024))
                for r in range(4): L.append("v_mul_f32 v%d, v%d, v%d" % (g + r, g + r, t + r))
            L.append("v_cvt_pk_bf16_f32 v%d, v%d, v%d" % (o, g, g + 1))
            L.append("v_cvt_pk_bf16_f32 v%d, v%d, v%d" % (o + 1, g + 2, g + 3))
            if j == 6:
                L.append(("vm", "buffer_store_dwordx2 v[%d:%d], v1, s[%d:%d], s45 offen%s" % (o, o + 1, s.sO, s.sO + 3, " sc1" if s.fused else ""), ("st", j, i)))
            elif j % 2 == 1:
                L.append(("vm", "buffer_store_dwordx4 v[%d:%d], v1, s[%d:%d], s45 offen%s" % (o - 2, o + 1, s.sO, s.sO + 3, s.st_flags), ("st", j, i)))
        if s.fused and j in s.flag_after:
            pj = s.flag_after[j]
            L.append(("wv", ("stw", pj), [("st", pj, i) for i in range(s.NRB)]))
            L.append("v_mov_b32 v28, %d" % (pj // 2 + 1))
            L.append("v_mov_b32 v30, 0")
            L.append("buffer_store_dword v28, v30, s[60:63], s59 offen sc1")
        return L
    def valu_ready(s, units):
        last = {}
        for n, (st, sub, j) in enumerate(units): last[j % 7] = n
        out = {last[j] + 3: s.epi_pair(j) for j in range(7) if j not in s.defer_blocks}
        def pub(pj):
            return [("wv", ("stw", pj), [("st", pj, i) for i in range(s.NRB)]), "v_mov_b32 v28, %d" % (pj // 2 + 1), "v_mov_b32 v30, 0",
                    "buffer_store_dword v28, v30, s[60:63], s59 offen sc1"]
        s.deferred = []
        if s.defer_blocks == (4, 5, 6):
            e6 = s.epi_pair(6)
            s.deferred = pub(3) + s.epi_pair(4) + s.epi_pair(5) + e6[:54] + pub(5) + e6[54:]
        elif s.defer_blocks == (5, 6):
            e6 = s.epi_pair(6)
            s.deferred = pub(3) + s.epi_pair(5) + e6[:54] + pub(5) + e6[54:]
        else: assert not s.defer_blocks
        L = [("wv", "ssw", [("ss", i) for i in range(s.NRB)])]
        for i in range(s.NRB):
            b = s.vT
            for r in range(4): L.append("v_accvgpr_read_b32 v%d, a%d" % (b + r, s.aX + 4 * i + r))
            L.append("v_add_f32 v%d, v%d, v%d" % (b, b, b + 1))
            L.append("v_add_f32 v%d, v%d, v%d" % (b + 2, b + 2, b + 3))
            L.append("v_add_f32 v%d, v%d, v%d" % (b, b, b + 2))
            reduce_g4(L.append, b, b + 1)
            L.append("v_mov_b32 v%d, 0x%x" % (b + 1, f2u(1e-5)))
            L.append("v_fmac_f32 v%d, 0x%x, v%d" % (b + 1, f2u(1.0 / 1024), b))
            L.append("v_rsq_f32 v%d, v%d" % (b + 1, b + 1))
            L.append("s_nop 0")
            L.append("v_mul_f32 v%d, 0x%x, v%d" % (s.vC1[i], f2u(-LOG2E), b + 1))
        out[28 * 9] = L
        if s.extra_fill:
            k = s.extra_fill[0]
            while k in out: k += 1
            out[k] = s.extra_fill[1]
        return out
    def extra_vm(s):
        L = []
        for i in range(s.NRB):
            L.append((28 * 6 + 5 * i, 28 * 7, [[], "buffer_load_dwordx4 a[%d:%d], v29, s[%d:%d], s47 offen offset:%d%s" % (s.aX + 4 * i, s.aX + 4 * i + 3, s.sS, s.sS + 3, i * 1024, s.a_flags), ("ss", i), []]))
        if s.fill:
            for k in range(s.fill):
                post = ["s_add_u32 s69, s69, 4096"] if k % 4 == 3 else []
                L.append((28 * 4 + 9 * k, 28 * 5 + 9 * k, [[], "buffer_store_dwordx4 a[%d:%d], v29, s[52:55], s69 offen offset:%d%s" % (s.aF, s.aF + 3, (k % 4) * 1024, s.fill_flags), ("F", k), post]))
        if s.pf:
            n0, dn, m0_, dm = s.pf
            for k in range(16 - s.pf0):
                n = n0 + k * dn
                L.append((n, n, [[], "buffer_load_dword v31, v30, s[4:7], s70 offen" + s.tfl, ("T2", k), ["s_add_u32 s70, s70, %d" % (64 * 7168)]]))
            for k in range(2):
                n = m0_ + k * dm
                L.append((n, n, [["v_lshrrev_b32 v30, 3, v0", "v_lshlrev_b32 v30, 10, v30", "v_lshl_add_u32 v30, v0, 7, v30"] if k == 0 else [], "buffer_load_dword v31, v30, s[64:67], s68 offen", ("T3", k), ["s_add_u32 s68, s68, %d" % (7 * 2048)]]))
        return L
    def gen(s, a):
        NRB, sT, sWave, vT = s.NRB, s.sT, s.sWave, s.vT
        sNt, sMt = 33, 34
        if not s.after_k2: s.header(a)
        a("s_load_dwordx4 s[36:39], s[0:1], 48")
        a("s_load_dwordx4 s[48:51], s[0:1], 64")
        if not s.after_k2:
            a("s_load_dwordx2 s[40:41], s[0:1], 88")
            a("v_lshrrev_b32 v1, 6, v0")
            a("v_and_b32 v0, 63, v0")
            a("v_readfirstlane_b32 s%d, v1" % sWave)
        else:
            a("s_barrier")
            self_code_touch(a, s.name, "%s_end" % s.name, s.vCode, s.vJunk, s.sCode, 2, swave=sWave, tag="pc3")
        a("s_and_b32 s%d, s2, 7" % sT)
        a("s_lshl_b32 s%d, s%d, 2" % (sNt, sT))
        a("s_lshr_b32 s%d, s2, 3" % sT)
        a("s_and_b32 s%d, s%d, 3" % (sMt, sT))
        a("s_add_u32 s%d, s%d, s%d" % (sNt, sNt, sMt))
        a("s_lshr_b32 s%d, s%d, 2" % (sMt, sT))
        a("s_lshl_b32 s%d, s%d, 4" % (sT, sMt))
        a("s_mul_i32 s42, s%d, %d" % (sWave, NRB))
        a("s_add_u32 s42, s42, s%d" % sT)
        a("s_lshl_b32 s43, s42, 15")
        a("v_lshlrev_b32 v1, 4, v0")
        for i in range(NRB):
            a("s_add_u32 s%d, s43, %d" % (sT, i * 32768))
            a("v_add_u32 v%d, s%d, v1" % (s.vA[i], sT))
        a("s_lshl_b32 s47, s42, 10")
        for i in range(7):
            a("v_add_u32 v%d, %d, v0" % (vT, 64 * i))
            a("v_mul_u32_u24 v%d, 4682, v%d" % (vT + 1, vT))
            a("v_lshrrev_b32 v%d, 16, v%d" % (vT + 1, vT + 1))
            a("v_mul_u32_u24 v%d, %d, v%d" % (vT + 1, 7168 - 14 * 16, vT + 1))
            a("v_lshl_add_u32 v%d, v%d, 4, v%d" % (s.vD[i], vT, vT + 1))
            if i % 4:
                a("v_subrev_u32 v%d, %d, v%d" % (s.vD[i], (i % 4) * 1024, s.vD[i]))
        a("s_and_b32 s%d, s%d, 1" % (sT, sWave))
        a("s_mul_i32 s%d, s%d, %d" % (s.sDoff, sT, 32 * 7168))
        a("s_mul_i32 s32, s%d, 224" % sNt)
        a("s_add_u32 s%d, s%d, s32" % (s.sDoff, s.sDoff))
        a("s_lshl_b32 s%d, s%d, 1" % (sT, sT))
        a("s_bfe_u32 s32, s%d, 0x10001" % sWave)
        a("s_add_u32 s32, s32, s%d" % sT)
        a("s_mul_i32 s%d, s32, 7168" % s.sLdsW)
        a("s_waitcnt lgkmcnt(0)")
        a("s_bitcmp1_b32 s%d, 1" % sWave)
        a("s_cselect_b32 s%d, s38, s36" % s.sW)
        a("s_cselect_b32 s%d, s39, s37" % (s.sW + 1))
        a("s_and_b32 s%d, s%d, 0xffff" % (s.sW + 1, s.sW + 1))
        a("s_mov_b32 s%d, %d" % (s.sW + 2, 1024 * 7168))
        a("s_mov_b32 s%d, 0x00020000" % (s.sW + 3))
        srd_off(a, s.sA, 40, WS_HC, 4 * MB)
        if s.stamp is not None and not s.after_k2: stamp_mid(a, 3)
        aSS = s.aX
        tl, s.tops = touch_ops(s, 48, 30, 31)
        def early(p): pass
        def late(p):
            srd_off(p.i, s.sS, 40, WS_SS, 2048 * 64)
            srd_off(p.i, s.sO, 40, WS_ACT, 2048 * 3584 * 2)
            p.i("v_lshrrev_b32 v%d, 2, v0" % vT)
            p.i("v_mul_u32_u24 v%d, 224, v%d" % (vT, vT))
            p.i("v_and_b32 v%d, 3, v0" % (vT + 1))
            p.i("v_lshl_add_u32 v%d, v%d, 3, v%d" % (s.vB[0], vT + 1, vT))
            s.base_setup(p.i)
            p.i("v_mov_b32 v29, v1")
            p.i("s_mul_i32 s43, s42, %d" % (112 * 1024))
            p.i("v_add_u32 v1, s43, v1")
            p.i("s_lshr_b32 s%d, s%d, 4" % (sT, sNt))
            p.i("s_mul_i32 s46, s%d, %d" % (sT, 56 * 1024))
            p.i("s_and_b32 s%d, s%d, 15" % (sT, sNt))
            p.i("s_lshl_b32 s44, s%d, 10" % sT)
            p.i("s_add_u32 s44, s44, s46")
            p.i("s_lshr_b32 s%d, s%d, 1" % (sT, sT))
            p.i("s_lshl_b32 s%d, s%d, 10" % (sT, sT))
            p.i("s_add_u32 s46, s46, s%d" % sT)
            p.i("s_and_b32 s%d, s%d, 1" % (sT, sNt))
            p.i("s_lshl_b32 s%d, s%d, 3" % (sT, sT))
            p.i("s_add_u32 s46, s46, s%d" % sT)
            p.i("s_add_u32 s46, s46, %d" % (48 * 1024))
            if s.pf:
                srd_off(p.i, 64, 48, 0, 1024 * 7168)
                p.i("v_lshlrev_b32 v30, 7, v0")
                p.i("v_cmp_lt_u32 vcc, 6, v0")
                p.i("v_mov_b32 v%d, 0x40000000" % vT)
                p.i("s_lshr_b32 s70, s2, 3")
                p.i("v_cndmask_b32 v30, v30, v%d, vcc" % vT)
                p.i("s_lshl_b32 s70, s70, 2")
                p.i("s_add_u32 s70, s70, s%d" % sWave)
                p.i("s_mul_i32 s68, s70, %d" % (14 * 2048))
                p.i("s_bfe_u32 s71, s2, 0x10002")
                p.i("s_mul_i32 s71, s71, %d" % (1792 * 2048))
                p.i("s_add_u32 s68, s68, s71")
                p.i("s_and_b32 s71, s2, 1")
                p.i("s_lshl_b32 s71, s71, 10")
                p.i("s_add_u32 s68, s68, s71")
                p.i("s_bitcmp1_b32 s70, 6")
                p.i("s_cselect_b32 s4, s38, s36")
                p.i("s_cselect_b32 s5, s39, s37")
                p.i("s_and_b32 s5, s5, 0xffff")
                p.i("s_mov_b32 s6, %d" % (1024 * 7168))
                p.i("s_mov_b32 s7, 0x00020000")
                p.i("s_and_b32 s70, s70, 63")
                p.i("s_mul_i32 s70, s70, 7168")
                p.i("s_and_b32 s71, s2, 7")
                p.i("s_mul_i32 s71, s71, 896")
                p.i("s_add_u32 s70, s70, s71")
                p.i("s_add_u32 s70, s70, %d" % (s.pf0 * 64 * 7168))
            if s.fill:
                srd_off(p.i, 52, 40, WS_XB, s.fill * MB)
                p.i("s_lshl_b32 s69, s2, 2")
                p.i("s_add_u32 s69, s69, s%d" % sWave)
                p.i("s_mul_i32 s69, s69, %d" % (s.fill * 1024))
                for r in range(4): p.i("v_accvgpr_write_b32 a%d, -1" % (s.aF + r))
            if s.fused:
                srd_off(p.i, 60, 40, WS_FL, 8192)
                p.i("s_lshr_b32 s59, s42, 2")
                p.i("s_lshl_b32 s59, s59, 5")
                p.i("s_add_u32 s59, s59, s%d" % sNt)
                p.i("s_lshl_b32 s59, s59, 2")
        def gate(p):
            I = p.i
            I("s_lshr_b32 s%d, s42, 2" % sT)
            I("s_lshl_b32 s%d, s%d, 7" % (sT, sT))
            I("s_sub_u32 s32, 8, s%d" % sMt)
            I("s_and_b32 s32, s32, 7")
            I("s_lshl_b32 s32, s32, 2")
            I("s_sub_u32 s45, 3, s%d" % sWave)
            I("s_add_u32 s45, s45, s32")
            I("s_lshl_b32 s45, s45, 7")
            I("v_mov_b32 v%d, s%d" % (vT, sT))
            I("v_mov_b32 v%d, s45" % (vT + 1))
            I("v_cmp_gt_u32 vcc, 32, v0")
            I("s_sub_u32 s45, 4, s%d" % sWave)
            I("s_and_b32 s45, s45, 3")
            I("v_cndmask_b32 v%d, v%d, v%d, vcc" % (vT, vT + 1, vT))
            I("s_add_u32 s45, s45, s32")
            I("s_lshl_b32 s45, s45, 7")
            I("v_and_b32 v%d, 31, v0" % (vT + 1))
            I("v_lshlrev_b32 v%d, 2, v%d" % (vT + 1, vT + 1))
            I("v_add_u32 v%d, v%d, v%d" % (vT, vT, vT + 1))
            I("v_add_u32 v%d, s45, v%d" % (vT + 1, vT + 1))
            I("v_mov_b32 v%d, 1" % (vT + 2))
            I("v_mov_b32 v%d, 0" % (vT + 3))
            I("s_mov_b32 s32, 0")
            I("s_waitcnt vmcnt(%d)" % (2 * s.ndma + 1))
            p.vm("buffer_store_dword v%d, v%d, s[60:63], s35 offen sc1" % (vT + 2, vT + 3), ("k2f",))
            p.label("g234_spin")
            I("s_movk_i32 s45, 0x1000")
            p.vm("buffer_load_dword v%d, v%d, s[60:63], s45 offen sc1" % (vT + 4, vT), ("k2l", 0))
            p.vm("buffer_load_dword v%d, v%d, s[60:63], s45 offen sc1" % (vT + 5, vT + 1), ("k2l", 1))
            I("s_add_u32 s32, s32, 1")
            I("s_waitcnt vmcnt(0)")
            I("v_min_u32 v%d, v%d, v%d" % (vT + 4, vT + 4, vT + 5))
            I("v_cmp_ne_u32 vcc, 1, v%d" % (vT + 4))
            I("s_cmp_lt_u32 s32, 0x40000")
            I("s_cselect_b64 vcc, vcc, 0")
            I("s_cmp_lg_u64 vcc, 0")
            I("s_cbranch_scc1 g234_spin")
            if s.stamp is not None: I("s_memtime s[%d:%d]" % (SB + 8 + 2 * 3, SB + 9 + 2 * 3))
        if s.after_k2: s.gate = gate
        s.aF = aSS + 4 * NRB
        if s.fused: s.post_loop = lambda p: p.i("s_barrier")
        s.emit_main(a, early, late)
        s.nagpr = aSS + 4 * NRB + 4
        if not s.fused: s.footer(a, s.nagpr, s.R * s.STB)

class G4(Gemm2):
    def __init__(s, AR=4, PD=3, R=6, name="g4_kernel", NST=28, **kw):
        kw.setdefault("npro", 12)
        super().__init__(name, NRB=2, NF=4, SUB=4, NST=NST, STB=16896, R=R, AR=AR, PD=PD, ndma=4, VACC=64, **kw)
    def dma_text(s, st, n):
        pre = ["s_add_u32 m0, s%d, %d" % (s.sLdsW, (st % s.R) * s.STB)] if n == 0 else []
        return pre, "buffer_load_dwordx4 v%d, s[%d:%d], s%d offen offset:%d lds" % (s.vD[n], s.sW, s.sW + 3, s.sDoff, n * 1056)
    def dma_step(s, st): return 128 * 2048
    def rd_off(s, sub, j, h):
        return (sub // 2) * 8448 + (sub % 2) * 512 + h * 256 + j * 32
    def lane_addrs(s, a, vT):
        a("v_bfe_u32 v%d, v0, 2, 3" % vT)
        a("v_mul_u32_u24 v%d, 1056, v%d" % (vT, vT))
        a("v_lshrrev_b32 v%d, 5, v0" % (vT + 1))
        a("v_lshl_add_u32 v%d, v%d, 7, v%d" % (vT, vT + 1, vT))
        a("v_and_b32 v%d, 3, v0" % (vT + 1))
        a("v_lshl_add_u32 v%d, v%d, 3, v%d" % (s.vB[0], vT + 1, vT))
        s.base_setup(a)
    def extra_vm(s): return s.xops
    def gen(s, a):
        NRB, sT, sWave = s.NRB, s.sT, s.sWave
        vT = 20; vR2 = [16, 17]; vM = [18, 19]; vH = 32
        sNt, sMt, sH, sM = 33, 34, 48, 52
        s.header(a)
        a("s_load_dwordx4 s[36:39], s[0:1], 64")
        a("s_load_dwordx2 s[40:41], s[0:1], 88")
        a("v_lshrrev_b32 v1, 6, v0")
        a("v_and_b32 v0, 63, v0")
        a("v_readfirstlane_b32 s%d, v1" % sWave)
        a("s_bfe_u32 s%d, s2, 0x20001" % sT)
        a("s_lshl_b32 s%d, s%d, 2" % (sMt, sT))
        a("s_lshr_b32 s%d, s2, 6" % sT)
        a("s_add_u32 s%d, s%d, s%d" % (sMt, sMt, sT))
        a("s_and_b32 s%d, s2, 1" % sT)
        a("s_lshl_b32 s%d, s%d, 3" % (sNt, sT))
        a("s_bfe_u32 s%d, s2, 0x30003" % sT)
        a("s_add_u32 s%d, s%d, s%d" % (sNt, sNt, sT))
        a("s_lshl_b32 s42, s%d, 3" % sMt)
        a("s_lshl_b32 s%d, s%d, 1" % (sT, sWave))
        a("s_add_u32 s42, s42, s%d" % sT)
        a("s_mul_i32 s43, s42, %d" % (112 * 1024))
        a("v_lshlrev_b32 v1, 4, v0")
        for i in range(NRB):
            a("s_add_u32 s%d, s43, %d" % (sT, i * 112 * 1024))
            a("v_add_u32 v%d, s%d, v1" % (s.vA[i], sT))
        a("v_lshrrev_b32 v%d, 3, v0" % vT)
        a("v_lshlrev_b32 v%d, 14, v%d" % (vT, vT))
        a("v_and_b32 v%d, 7, v0" % (vT + 1))
        a("v_lshl_add_u32 v%d, v%d, 4, v%d" % (s.vD[0], vT + 1, vT))
        for n in range(1, 4):
            a("v_add_u32 v%d, %d, v%d" % (s.vD[n], n * (2048 - 1056), s.vD[0]))
        a("s_mul_i32 s%d, s%d, 4224" % (s.sLdsW, sWave))
        a("s_lshr_b32 s%d, s%d, 1" % (sT, sWave))
        a("s_lshl_b32 s%d, s%d, 17" % (s.sDoff, sT))
        a("s_and_b32 s%d, s%d, 1" % (sT, sWave))
        a("s_lshl_b32 s%d, s%d, 13" % (sT, sT))
        a("s_add_u32 s%d, s%d, s%d" % (s.sDoff, s.sDoff, sT))
        a("s_lshl_b32 s%d, s%d, 7" % (sT, sNt))
        a("s_add_u32 s%d, s%d, s%d" % (s.sDoff, s.sDoff, sT))
        a("s_waitcnt lgkmcnt(0)")
        srd_off(a, s.sW, 36, 0, 3584 * 2048)
        srd_off(a, s.sA, 40, WS_ACT, 2048 * 3584 * 2)
        if s.stamp is not None: stamp_mid(a, 3)
        n0 = (s.NST - 4) * s.NF * s.SUB
        s.xops = []
        for i in range(NRB):
            s.xops.append((n0, 10**9, [[], "buffer_load_dwordx4 v[%d:%d], v1, s[%d:%d], s47 offen offset:%d" % (48 + 4 * i, 51 + 4 * i, s.sS, s.sS + 3, i * 1024), ("ss", i), []]))
            for q in range(2):
                r = vH + (i * 2 + q) * 4
                s.xops.append((n0, 10**9, [[], "buffer_load_dwordx4 v[%d:%d], v1, s[%d:%d], s%d offen offset:%d" % (r, r + 3, sH, sH + 3, 45 + i, q * 1024), ("h", i, q), []]))
            s.xops.append((n0, 10**9, [[], "buffer_load_dword v%d, v%d, s[%d:%d], 0 offen offset:%d" % (vM[i], vT + 10, sM, sM + 3, i * 64), ("m", i), []]))
        def early(p): pass
        def late(p):
            s.lane_addrs(p.i, vT)
            srd_off(p.i, s.sS, 40, WS_SS, 2048 * 64)
            srd_off(p.i, s.sO, 38, 0, 2048 * 2048)
            srd_off(p.i, sH, 40, WS_HC, 4 * MB)
            srd_off(p.i, sM, 40, WS_MT, 8192)
            p.i("s_lshl_b32 s47, s42, 10")
            p.i("s_lshl_b32 s%d, s42, 15" % sT)
            p.i("s_lshl_b32 s45, s%d, 11" % sNt)
            p.i("s_add_u32 s45, s45, s%d" % sT)
            p.i("s_add_u32 s46, s45, 0x8000")
            p.i("v_and_b32 v%d, 15, v0" % vT)
            p.i("s_lshl_b32 s%d, s42, 4" % sT)
            p.i("v_add_u32 v%d, s%d, v%d" % (vT, sT, vT))
            p.i("v_lshlrev_b32 v%d, 2, v%d" % (vT + 10, vT))
            p.i("v_lshrrev_b32 v%d, 8, v%d" % (vT + 1, vT))
            p.i("v_and_b32 v%d, 255, v%d" % (vT, vT))
            p.i("v_lshl_add_u32 v%d, v%d, 3, v%d" % (vT, vT, vT + 1))
            p.i("v_lshlrev_b32 v%d, 11, v%d" % (vT, vT))
            p.i("v_lshrrev_b32 v%d, 4, v0" % (vT + 1))
            p.i("v_lshl_add_u32 v%d, v%d, 3, v%d" % (vT, vT + 1, vT))
            p.i("s_lshl_b32 s44, s%d, 7" % sNt)
        def tail(e):
            e.wv("side", [("ss", i) for i in range(NRB)] + [("h", i, q) for i in range(NRB) for q in range(2)] + [("m", i) for i in range(NRB)])
            for i in range(NRB):
                b = 48 + 4 * i
                e.i("v_add_f32 v%d, v%d, v%d" % (b, b, b + 1))
                e.i("v_add_f32 v%d, v%d, v%d" % (b + 2, b + 2, b + 3))
                e.i("v_add_f32 v%d, v%d, v%d" % (b, b, b + 2))
                reduce_g4(e.i, b, b + 1)
                e.i("v_mov_b32 v%d, 0x%x" % (b + 1, f2u(1e-5)))
                e.i("v_fmac_f32 v%d, 0x%x, v%d" % (b + 1, f2u(1.0 / 1024), b))
                e.i("v_rcp_f32 v%d, v%d" % (vR2[i], b + 1))
            for i in range(NRB):
                for j in range(4):
                    c = s.acc(j, i)
                    h = vH + (i * 2 + j // 2) * 4 + (j % 2) * 2
                    t = vT + 2 + 4 * (j % 2)
                    e.i("v_lshlrev_b32 v%d, 16, v%d" % (t, h))
                    e.i("v_and_b32 v%d, 0xffff0000, v%d" % (t + 1, h))
                    e.i("v_lshlrev_b32 v%d, 16, v%d" % (t + 2, h + 1))
                    e.i("v_and_b32 v%d, 0xffff0000, v%d" % (t + 3, h + 1))
                    for r in range(4): e.i("v_add_f32 v%d, v%d, v%d" % (t + r, t + r, vM[i]))
                    for r in range(4): e.i("v_fmac_f32 v%d, v%d, v%d" % (t + r, c + r, vR2[i]))
                    e.i("v_cvt_pk_bf16_f32 v%d, v%d, v%d" % (c, t, t + 1))
                    e.i("v_cvt_pk_bf16_f32 v%d, v%d, v%d" % (c + 1, t + 2, t + 3))
                    e.vm("buffer_store_dwordx2 v[%d:%d], v%d, s[%d:%d], s44 offen offset:%d" % (c, c + 1, vT, s.sO, s.sO + 3, j * 32))
                e.i("s_add_u32 s44, s44, %d" % (16 * 8 * 2048))
        s.tail = tail
        s.emit_main(a, early, late)
        s.footer(a, s.aX, s.R * s.STB)

class K2(G4):
    def __init__(s, PD=3, pf=False, xneed=12, **kw):
        kw.setdefault("npro", 14)
        kw.setdefault("rate", 0.7)
        super().__init__(AR=4, PD=PD, R=4, name="k2_kernel", NST=4, **kw)
        s.pf, s.xneed = pf, xneed
        s.aM = s.aX
        s.vAccM = 56
        s.vMl = 31
        s.vJunk = 30
        s.dt = 'f16'
        s.LM = s.R * s.STB
        s.LX = s.LM + 4096
    def dma_text(s, st, n):
        pre = ["s_add_u32 m0, s%d, %d" % (s.sLdsW, (st % s.R) * s.STB + 32 * n)]
        return pre, "buffer_load_dwordx4 v1, s[%d:%d], s%d offen offset:%d lds" % (s.sW, s.sW + 3, s.sDoff, n * 1024)
    def dma_step(s, st): return 16384
    def rdm(s, p, q):
        if q < 16:
            r = s.aM + 4 * (q % 4)
            p.ds("ds_read_b128 a[%d:%d], v%d offset:%d" % (r, r + 3, s.vMl, q * 64), ("M", q))
    def post_sync0(s, p):
        p.wv("vmw", [("vm",)])
        for q in range(3): s.rdm(p, q)
    def extra_unit(s, p, q):
        p.wl(("M", q), [("M", q)])
        r = s.aM + 4 * (q % 4)
        for i in range(s.NRB):
            c = s.vAccM + 4 * i
            src = "0" if q == 0 else "v[%d:%d]" % (c, c + 3)
            p.i("v_mfma_f32_16x16x32_f16 v[%d:%d], a[%d:%d], a[%d:%d], %s" % (c, c + 3, r, r + 3, s.aA(q, i), s.aA(q, i) + 3, src))
        s.rdm(p, q + 3)
    def gen(s, a):
        NRB, sT, sWave = s.NRB, s.sT, s.sWave
        vT = 20; vXM = [18, 19]; vX = 32; vXa = 16; vXr = 8
        sNt, sT1, sX, sM, sXM, sVM = 33, 34, 48, 52, 56, 60
        s.header(a)
        a("s_load_dwordx2 s[36:37], s[0:1], 0")
        a("s_load_dwordx2 s[38:39], s[0:1], 56")
        a("s_load_dwordx2 s[40:41], s[0:1], 88")
        a("v_lshrrev_b32 v1, 6, v0")
        a("v_and_b32 v0, 63, v0")
        a("v_readfirstlane_b32 s%d, v1" % sWave)
        a("s_and_b32 s%d, s2, 7" % sT1)
        a("s_bfe_u32 s%d, s2, 0x40003" % sNt)
        if s.pf:
            a("s_cmp_eq_u32 s%d, 4" % sWave)
            a("s_cbranch_scc1 k2_helper")
        a("s_lshr_b32 s%d, s2, 7" % sT)
        a("s_lshl_b32 s42, s%d, 4" % sT1)
        a("s_lshl_b32 s%d, s%d, 3" % (sT, sT))
        a("s_add_u32 s42, s42, s%d" % sT)
        a("s_lshl_b32 s%d, s%d, 1" % (sT, sWave))
        a("s_add_u32 s42, s42, s%d" % sT)
        a("s_lshl_b32 s43, s42, 14")
        a("v_lshlrev_b32 v1, 4, v0")
        for i in range(NRB):
            a("s_add_u32 s%d, s43, %d" % (sT, i * 16384))
            a("v_add_u32 v%d, s%d, v1" % (s.vA[i], sT))
        a("s_mul_i32 s%d, s%d, 4224" % (s.sLdsW, sWave))
        a("s_lshl_b32 s%d, s%d, 4" % (sT, sT1))
        a("s_add_u32 s%d, s%d, s%d" % (sT, sT, sNt))
        a("s_lshl_b32 s%d, s%d, 16" % (s.sDoff, sT))
        a("s_lshl_b32 s%d, s%d, 12" % (sT, sWave))
        a("s_add_u32 s%d, s%d, s%d" % (s.sDoff, s.sDoff, sT))
        a("s_lshl_b32 s45, s%d, 10" % sWave)
        a("s_add_u32 s45, s45, %d" % s.LM)
        a("s_lshl_b32 s46, s%d, 10" % sT1)
        a("s_waitcnt lgkmcnt(0)")
        srd_off(a, s.sW, 40, WS_V, 8 * MB)
        srd_off(a, s.sA, 40, WS_WSF, 2 * MB)
        srd_off(a, sVM, 40, WS_VM, 8192)
        if s.stamp is not None: stamp_mid(a, 3)
        s.xops = []
        for k in range(4):
            s.xops.append((0, s.xneed, [["s_add_u32 m0, s64, %d" % (k * 1024)],
                           "buffer_load_dwordx4 v%d, s[%d:%d], s47 offen lds" % (vXa + (k % 2), sX, sX + 3), ("x", k),
                           ["s_add_u32 s47, s47, %d" % (8 * 16384)]]))
        for i in range(NRB):
            s.xops.append((0, s.xneed, [[], "buffer_load_dword v%d, v%d, s[%d:%d], 0 offen offset:%d" % (vXM[i], vT + 3, sXM, sXM + 3, i * 64), ("xm", i), []]))
        def early(p):
            p.i("s_mov_b32 m0, s45")
            p.i("s_nop 0")
            p.vm("buffer_load_dwordx4 v1, s[%d:%d], s46 offen lds" % (sVM, sVM + 3), ("vm",))
        def late(p):
            s.lane_addrs(p.i, vT)
            p.i("v_lshrrev_b32 v%d, 4, v0" % vT)
            p.i("v_lshlrev_b32 v%d, 4, v%d" % (vT, vT))
            p.i("v_add_u32 v%d, s45, v%d" % (s.vMl, vT))
            p.i("v_and_b32 v%d, 15, v0" % vT)
            p.i("v_lshlrev_b32 v%d, 4, v%d" % (vT + 2, vT))
            p.i("s_lshl_b32 s%d, s42, 4" % sT)
            p.i("v_add_u32 v%d, s%d, v%d" % (vT + 3, sT, vT))
            p.i("v_lshlrev_b32 v%d, 2, v%d" % (vT + 3, vT + 3))
            p.i("v_lshrrev_b32 v%d, 3, v0" % (vT + 1))
            p.i("v_lshrrev_b32 v%d, 4, v0" % (vT + 4))
            p.i("v_and_b32 v%d, 7, v0" % (vT + 5))
            p.i("v_xor_b32 v%d, v%d, v%d" % (vT + 4, vT + 4, vT + 5))
            p.i("v_lshlrev_b32 v%d, 14, v%d" % (vT + 1, vT + 1))
            p.i("v_lshl_add_u32 v%d, v%d, 4, v%d" % (vXa, vT + 4, vT + 1))
            p.i("v_xor_b32 v%d, 64, v%d" % (vXa + 1, vXa))
            p.i("s_lshl_b32 s64, s%d, 12" % sWave)
            p.i("s_add_u32 s64, s64, %d" % s.LX)
            p.i("v_lshlrev_b32 v%d, 7, v%d" % (vT + 1, vT))
            p.i("v_add_u32 v%d, s64, v%d" % (vT + 1, vT + 1))
            p.i("v_bfe_u32 v%d, v0, 4, 1" % (vT + 4))
            p.i("v_lshl_add_u32 v%d, v%d, 3, v%d" % (vT + 1, vT + 4, vT + 1))
            p.i("v_lshrrev_b32 v%d, 5, v0" % (vT + 4))
            p.i("v_lshrrev_b32 v%d, 1, v%d" % (vT + 5, vT))
            p.i("v_xor_b32 v%d, v%d, v%d" % (vT + 4, vT + 4, vT + 5))
            for j in range(4):
                p.i("v_xor_b32 v%d, %d, v%d" % (vT + 5, 2 * j, vT + 4))
                p.i("v_lshl_add_u32 v%d, v%d, 4, v%d" % (vXr + j, vT + 5, vT + 1))
            p.i("s_lshr_b32 s47, s42, 4")
            p.i("s_and_b32 s%d, s42, 15" % sT)
            p.i("s_lshl_b32 s%d, s%d, 7" % (sT, sT))
            p.i("s_add_u32 s47, s47, s%d" % sT)
            p.i("s_lshl_b32 s47, s47, 11")
            p.i("s_lshl_b32 s%d, s%d, 7" % (sT, sNt))
            p.i("s_add_u32 s47, s47, s%d" % sT)
            srd_off(p.i, s.sS, 40, WS_SS, 2048 * 64)
            srd_off(p.i, s.sO, 40, WS_HC, 4 * MB)
            srd_off(p.i, sX, 36, 0, 2048 * 2048)
            srd_off(p.i, sM, 40, WS_MT, 8192)
            srd_off(p.i, sXM, 40, WS_XM, 8192)
            p.i("s_lshl_b32 s44, s42, 15")
            p.i("s_lshl_b32 s%d, s%d, 11" % (sT, sNt))
            p.i("s_add_u32 s44, s44, s%d" % sT)
            p.i("s_lshl_b32 s45, s42, 10")
            p.i("s_lshr_b32 s%d, s%d, 2" % (sT, sNt))
            p.i("s_lshl_b32 s%d, s%d, 8" % (sT, sT))
            p.i("s_add_u32 s45, s45, s%d" % sT)
            p.i("s_and_b32 s%d, s%d, 3" % (sT, sNt))
            p.i("s_lshl_b32 s%d, s%d, 2" % (sT, sT))
            p.i("s_add_u32 s45, s45, s%d" % sT)
        def tail(e):
            e.wv("side", [("x", k) for k in range(4)] + [("xm", i) for i in range(NRB)])
            for i in range(NRB):
                for j in range(4):
                    x = vX + (i * 4 + j) * 2
                    e.ds("ds_read_b64 v[%d:%d], v%d offset:%d" % (x, x + 1, vXr + j, i * 2048), ("xr", i, j))
            for i in range(NRB):
                m = vXM[i]
                e.i("v_add_f32 v%d, v%d, v%d" % (m, m, s.vAccM + 4 * i))
                ssr = 48 + 2 * i
                for j in range(4):
                    c = s.acc(j, i)
                    x = vX + (i * 4 + j) * 2
                    t = vT + 4
                    for r in range(4): e.i("v_sub_f32 v%d, v%d, v%d" % (c + r, c + r, m))
                    e.wl(("xr", i, j), [("xr", i, j)])
                    e.i("v_lshlrev_b32 v%d, 16, v%d" % (t, x))
                    e.i("v_and_b32 v%d, 0xffff0000, v%d" % (t + 1, x))
                    e.i("v_lshlrev_b32 v%d, 16, v%d" % (t + 2, x + 1))
                    e.i("v_and_b32 v%d, 0xffff0000, v%d" % (t + 3, x + 1))
                    for r in range(4): e.i("v_add_f32 v%d, v%d, v%d" % (t + r, t + r, c + r))
                    e.i("v_cvt_pk_bf16_f32 v%d, v%d, v%d" % (x, t, t + 1))
                    e.i("v_cvt_pk_bf16_f32 v%d, v%d, v%d" % (x + 1, t + 2, t + 3))
                    if j % 2 == 1:
                        e.vm("buffer_store_dwordx4 v[%d:%d], v1, s[%d:%d], s44 offen offset:%d%s" % (x - 2, x + 1, s.sO, s.sO + 3, (j // 2) * 1024, s.st_flags))
                    for r in range(4):
                        if j == 0 and r == 0: e.i("v_mul_f32 v%d, v%d, v%d" % (ssr, t, t))
                        else: e.i("v_fmac_f32 v%d, v%d, v%d" % (ssr, t + r, t + r))
                e.i("s_add_u32 s44, s44, 0x8000")
                reduce_g4(e.i, ssr, ssr + 1)
                e.vm("buffer_store_dword v%d, v%d, s[%d:%d], s45 offen offset:%d" % (ssr, vT + 2, s.sS, s.sS + 3, i * 1024))
            e.i("s_cmp_lg_u32 s%d, 0" % sNt)
            e.i("s_cbranch_scc1 %s_nomt" % s.name)
            for i in range(NRB):
                e.vm("buffer_store_dword v%d, v%d, s[%d:%d], 0 offen offset:%d" % (vXM[i], vT + 3, sM, sM + 3, i * 64))
            e.label("%s_nomt" % s.name)
        s.tail = tail
        s.emit_main(a, early, late)
        if s.stamp is not None:
            stamp_mid(a, 2); stamp_end(a, 40, s.stamp, s.sWave)
        if s.pf:
            a("s_branch %s_end" % s.name)
            a.label("k2_helper")
            a("s_waitcnt lgkmcnt(0)")
            srd_off(a, 64, 38, 0, 1024 * 7168)
            a("s_mul_i32 s68, s2, 28672")
            a("v_lshlrev_b32 v6, 6, v0")
            for k in range(7):
                a("buffer_load_dword v7, v6, s[64:67], s68 offen")
                a("s_add_u32 s68, s68, 4096")
            for k in range(s.NST): a("s_barrier")
        a.label("%s_end" % s.name)
        a.end_kernel(s.name, s.VACC + s.NACC, s.aM + 16, 102)
        a.launch(s.name, 256, 320 if s.pf else 256, s.LX + 16384)

class G4S(Gemm2):
    def __init__(s, SK=2, AR=None, PD=3, R=8, TS=1, LK=None, xfl=" sc1", l2pf=0, l2d=2, retouch=(200,), defer=True, lgrp=2, rc_ahead=28, **kw):
        kw.setdefault("npro", 8); kw.setdefault("rate", 0.57)
        s.l2pf, s.l2d = l2pf, l2d
        s.SK = SK
        NRB = SK
        AR = AR or (7 if SK == 4 else 10)
        s.LK = LK or (7 if SK == 4 else 8)
        s.KF = 8 // SK
        s.xfl = xfl
        super().__init__("g4_kernel", NRB=NRB, NF=8, SUB=2, NST=56 // SK, STB=16896, R=R, AR=AR, PD=PD, ndma=4, VACC=128, **kw)
        s.TS = TS
        s.retouch = retouch
        s.vCode = 10
        s.defer = defer
        s.lgrp, s.rc_ahead = lgrp, rc_ahead
        s.vD2 = [116, 117, 118, 119]
        s.vpm = 1
    def a_pre(s, q):
        if not (s.fused and q % 16 == 0): return []
        cpt = q // 16
        return [("wv", ("flw", cpt), [("fl", cpt)]),
                "v_cmp_gt_u32 vcc, %d, v12" % (cpt + 1), "s_nop 1", "s_cbranch_vccnz g34_slow%d" % cpt, ("label", "g34_cont%d" % cpt)]
    def slow_paths(s, a):
        for cpt in range(4):
            a.label("g34_slow%d" % cpt)
            if cpt == 0 and s.alt_path:
                for x in s.inherited:
                    if isinstance(x, tuple): a("s_waitcnt vmcnt(0)" if x[0] == "wv" else x[1])
                    else: a(x)
                a.label("g34_spin0")
            if s.backoff: a("s_sleep %d" % s.backoff)
            a("buffer_load_dword v12, v%d, s[4:7], 0 offen sc1" % (11 if cpt == 3 else 10))
            a("s_add_u32 s67, s67, 1")
            a("s_waitcnt vmcnt(0)")
            a("v_cmp_gt_u32 vcc, %d, v12" % (cpt + 1))
            a("s_cmp_lt_u32 s67, 0x40000")
            a("s_cselect_b64 s[68:69], vcc, 0")
            a("s_cmp_lg_u64 s[68:69], 0")
            if cpt == 0 and s.alt_path:
                a("s_cbranch_scc1 g34_spin0")
                for x in s.alt_loads: a(x)
                a("s_waitcnt vmcnt(0)")
                a("s_branch g34_join0")
            else:
                a("s_cbranch_scc1 g34_slow%d" % cpt)
                a("s_branch g34_cont%d" % cpt)
    def crow(s, kb):
        return (kb % 16) * 112 + (kb // 16) * 32 if kb < 48 else (kb - 48) * 224 + 96
    def is_late(s, st, n): return s.defer and st >= s.NST - s.LK and n >= 2
    def late_steps(s, units):
        if not s.defer: return {}
        first = {}
        for n, (st, sub, j) in enumerate(units):
            if st >= s.NST - s.LK and j < s.KF: first.setdefault(st, n)
        out = {}
        for st in first:
            g0 = s.NST - s.LK + (st - (s.NST - s.LK)) // s.lgrp * s.lgrp
            out[st] = first[g0]
        return out
    def dma_text(s, st, n):
        pre = []
        if n % 2 == 0:
            d = s.crow(2 * st + 1) - s.crow(2 * st)
            if n == 0 or s.is_late(st, n):
                pre.append("s_add_u32 s%d, s%d, %d" % (s.sDoff, {112: 27, 224: 30}[d], s.crow(2 * st) * 2048))
            pre.append("s_add_u32 m0, s%d, %d" % (s.sLdsW, ((st + s.slot0) % s.R) * s.STB + (0 if n else 4224)))
        v = (s.vD2 if st >= 24 else s.vD)[n]
        return pre, "buffer_load_dwordx4 v%d, s[%d:%d], s%d offen offset:%d lds" % (v, s.sW, s.sW + 3, s.sDoff, (n % 2) * 1056)
    def dma_step(s, st): return None
    def rd_off(s, sub, j, h): return sub * 8448 + (j // 4) * 4224 + h * 512 + (j % 4) * 32
    def unit_order(s):
        KF = s.KF
        u = [(st, sub, j) for st in range(s.NST - s.LK) for sub in range(s.SUB) for j in range(s.NF)]
        u += [(st, sub, j) for st in range(s.NST - s.LK, s.NST - s.TS) for sub in range(s.SUB) for j in range(KF, s.NF)]
        for pr in range(KF // 2, 4):
            for st in range(s.NST - s.TS, s.NST):
                for sub in range(s.SUB):
                    u += [(st, sub, 2 * pr), (st, sub, 2 * pr + 1)]
        u += [(st, sub, j) for st in range(s.NST - s.LK, s.NST) for sub in range(s.SUB) for j in range(KF)]
        return u
    def valu_ready(s, units):
        last = {}
        for n, (st, sub, j) in enumerate(units): last[j // 2] = n
        out = {}
        ppg = s.KF // 2
        for pr in range(ppg, 4):
            g, pi = divmod(pr, ppg)
            L = []
            for i in range(s.NRB):
                c0, c1 = s.acc(2 * pr, i), s.acc(2 * pr + 1, i)
                L.append("v_cvt_pk_bf16_f32 v%d, v%d, v%d" % (c0, c0, c0 + 1))
                L.append("v_cvt_pk_bf16_f32 v%d, v%d, v%d" % (c0 + 1, c0 + 2, c0 + 3))
                L.append("v_cvt_pk_bf16_f32 v%d, v%d, v%d" % (c0 + 2, c1, c1 + 1))
                L.append("v_cvt_pk_bf16_f32 v%d, v%d, v%d" % (c0 + 3, c1 + 2, c1 + 3))
                L.append("buffer_store_dwordx4 v[%d:%d], v1, s[%d:%d], s%d offen offset:%d%s" % (c0, c0 + 3, s.sX, s.sX + 3, s.sXo + g - 1, (i * ppg + pi) * 1024, s.xfl))
            out[last[pr] + (3 if s.NRB == 4 else 5)] = L
        k = s.side_fill[0]
        while k in out: k += 1
        out[k] = s.side_fill[1]
        if s.carry: out[0] = s.carry + s.late2
        return out
    def extra_vm(s): return s.xops
    def gen(s, a):
        NRB, sT, sWave, SK, KF = s.NRB, s.sT, s.sWave, s.SK, s.KF
        ppg = KF // 2
        vT = 20; vR2 = 16; vM = 32; vH = 36; vS = 52; vRc = 68
        NRC = (SK - 1) * 16
        sNt, sMt, sKk, sH, sM = 33, 34, 35, 48, 52
        s.sX, s.sXo = 56, 60
        KQ = 3584 // SK
        a_real = a
        if s.fused:
            PRE = []
            a = PRE.append
            t0, t1, vL16 = 4, 5, 29
            a("s_mov_b32 s70, s59")
            srd_off(a, 4, 40, WS_FL, 4096)
        else:
            t0, t1, vL16 = vT, vT + 1, 1
            s.header(a)
            a("s_load_dwordx4 s[36:39], s[0:1], 64")
            a("s_load_dwordx2 s[40:41], s[0:1], 88")
            a("v_lshrrev_b32 v1, 6, v0")
            a("v_and_b32 v0, 63, v0")
            a("v_readfirstlane_b32 s%d, v1" % sWave)
            a("v_lshlrev_b32 v1, 4, v0")
        assert SK == 2
        a("s_bfe_u32 s%d, s2, 0x10002" % sKk)
        a("s_bfe_u32 s%d, s2, 0x10001" % sT)
        a("s_lshl_b32 s%d, s%d, 3" % (sMt, sT))
        a("s_lshr_b32 s%d, s2, 5" % sT)
        a("s_add_u32 s%d, s%d, s%d" % (sMt, sMt, sT))
        a("s_and_b32 s%d, s2, 1" % sT)
        a("s_lshl_b32 s%d, s%d, 2" % (sNt, sT))
        a("s_bfe_u32 s%d, s2, 0x20003" % sT)
        a("s_add_u32 s%d, s%d, s%d" % (sNt, sNt, sT))
        a("s_mul_i32 s42, s%d, %d" % (sMt, 4 * NRB))
        a("s_mul_i32 s%d, s%d, %d" % (sT, sWave, NRB))
        a("s_add_u32 s42, s42, s%d" % sT)
        if s.fused:
            a("s_lshr_b32 s%d, s42, 2" % sT)
            a("s_lshl_b32 s%d, s%d, 7" % (sT, sT))
            a("s_lshl_b32 s71, s%d, 6" % sKk)
            a("s_add_u32 s%d, s%d, s71" % (sT, sT))
            a("v_and_b32 v10, 15, v0")
            a("v_lshlrev_b32 v10, 2, v10")
            a("v_add_u32 v10, s%d, v10" % sT)
            a("s_xor_b32 s71, s70, 64")
            a("v_mov_b32 v11, s71")
            a("v_cmp_gt_u32 vcc, 32, v0")
            a("s_mov_b32 s67, 0")
            a("s_nop 0")
            a("v_cndmask_b32 v11, v11, v10, vcc")
        a("s_mul_i32 s43, s42, %d" % (112 * 1024))
        a("s_mul_i32 s%d, s%d, %d" % (sT, sKk, KQ // 32 * 1024))
        a("s_add_u32 s43, s43, s%d" % sT)
        for i in range(NRB):
            a("s_add_u32 s%d, s43, %d" % (sT, i * 112 * 1024))
            a("v_add_u32 v%d, s%d, v%d" % (s.vA[i], sT, vL16))
        a("v_lshrrev_b32 v%d, 3, v0" % t0)
        a("v_lshlrev_b32 v%d, 13, v%d" % (t0, t0))
        a("v_and_b32 v%d, 7, v0" % t1)
        a("v_lshl_add_u32 v%d, v%d, 4, v%d" % (t0, t1, t0))
        a("s_lshl_b32 s%d, s%d, 7" % (sT, sKk))
        a("v_add_u32 v%d, s%d, v%d" % (s.vD[2], sT, t0))
        a("v_xor_b32 v%d, 128, v%d" % (s.vD[0], s.vD[2]))
        a("v_add_u32 v%d, %d, v%d" % (s.vD[1], 2048 - 1056, s.vD[0]))
        a("v_add_u32 v%d, %d, v%d" % (s.vD[3], 2048 - 1056, s.vD[2]))
        a("s_lshr_b32 s%d, s%d, 1" % (sT, sWave))
        a("s_mul_i32 s%d, s%d, 8448" % (s.sLdsW, sT))
        a("s_and_b32 s32, s%d, 1" % sWave)
        a("s_mul_i32 s%d, s32, 2112" % s.sDoff)
        a("s_add_u32 s%d, s%d, s%d" % (s.sLdsW, s.sLdsW, s.sDoff))
        a("s_mul_i32 s%d, s%d, %d" % (s.sDoff, sKk, KQ * 2048))
        a("s_lshl_b32 s32, s32, 12")
        a("s_add_u32 s%d, s%d, s32" % (s.sDoff, s.sDoff))
        a("s_lshl_b32 s32, s%d, 8" % sNt)
        a("s_add_u32 s%d, s%d, s32" % (s.sDoff, s.sDoff))
        for reg, d in ((27, 112), (30, 224)):
            a("s_mul_i32 s%d, s%d, %d" % (reg, sT, d * 2048))
            a("s_add_u32 s%d, s%d, s%d" % (reg, reg, s.sDoff))
        if not s.fused: a("s_waitcnt lgkmcnt(0)")
        srd_off(a, s.sW, 48 if s.fused else 36, 0, 3584 * 2048)
        srd_off(a, s.sA, 40, WS_ACT, 2048 * 3584 * 2)
        if s.fused:
            s.PRE = PRE
            a = a_real
            if s.pre_only: return
        if s.stamp is not None and not s.fused: stamp_mid(a, 3)
        n0 = (s.NST * 2 // 3) * s.NF * s.SUB
        big = n0 + 40
        s.xops = []
        for i in range(NRB):
            s.xops.append((n0, big, [[], "buffer_load_dwordx4 v[%d:%d], v1, s[%d:%d], s47 offen offset:%d%s" % (vS + 4 * i, vS + 4 * i + 3, s.sS, s.sS + 3, i * 1024, s.a_flags), ("ss", i), []]))
            for pi in range(ppg):
                r = vH + (i * ppg + pi) * 4
                s.xops.append((n0, big, [[], "buffer_load_dwordx4 v[%d:%d], v1, s[%d:%d], s45 offen offset:%d%s" % (r, r + 3, sH, sH + 3, pi * 1024, s.a_flags), ("h", i, pi),
                                         ["s_add_u32 s45, s45, 0x8000"] if pi == ppg - 1 else []]))
            s.xops.append((n0, big, [[], "buffer_load_dword v%d, v%d, s[%d:%d], 0 offen offset:%d%s" % (vM + i, vT + 10, sM, sM + 3, i * 64, s.a_flags), ("m", i), []]))
        if s.l2pf:
            assert SK == 2
            upc = 4 * s.NF * s.SUB
            for c in range(1, 7):
                for hh in range(s.l2pf):
                    s.xops.append((max(0, (c - s.l2d) * upc), -1, [[], "buffer_load_dword v31, v12, s[4:7], s70 offen offset:%d" % (hh * 64), ("L2", c, hh),
                                   ["s_add_u32 s70, s70, s71"] if hh == s.l2pf - 1 else []]))
        if s.fused:
            for cpt in (1, 2, 3):
                n = s.chk_steps[cpt]
                s.xops.append((n, n, [[], "buffer_load_dword v12, v%d, s[4:7], 0 offen sc1" % (11 if cpt == 3 else 10), ("fl", cpt), []]))
            n = s.chk_steps[0]
            s.xops.append((n, n, [[("wv", "allst", s.all_stores)], "buffer_store_dword v123, v124, s[4:7], s70 offen sc1", ("flst",), []]))
            if s.pub2 is not None:
                s.xops.append((s.pub2, s.pub2, [[("wv", "st3", [("st", 3, i) for i in range(4)])], "buffer_store_dword v125, v124, s[4:7], s70 offen sc1", ("flst2",), []]))
        def early(p): pass
        def late_min(p):
            p.i("v_bfe_u32 v4, v0, 2, 2")
            p.i("v_mul_u32_u24 v4, 1056, v4")
            p.i("v_lshrrev_b32 v5, 4, v0")
            p.i("v_lshl_add_u32 v4, v5, 7, v4")
            p.i("v_and_b32 v5, 3, v0")
            p.i("v_lshl_add_u32 v%d, v5, 3, v4" % s.vB[0])
            s.base_setup(p.i)
        def late(p):
            if s.fused:
                p.i("v_lshlrev_b32 v1, 4, v0")
                p.i("v_mov_b32 v123, 4")
                p.i("v_mov_b32 v124, 0")
                p.i("v_mov_b32 v125, 2")
            if s.l2pf:
                p.i("s_lshr_b32 s67, s2, 3")
                p.i("s_lshl_b32 s67, s67, 2")
                p.i("s_add_u32 s67, s67, s%d" % sWave)
                p.i("v_lshlrev_b32 v12, 7, v0")
                p.i("s_and_b32 s70, s2, 3")
                p.i("s_lshl_b32 s70, s70, 5")
                p.i("s_add_u32 s70, s70, s67")
                p.i("s_mul_i32 s70, s70, %d" % (112 * 1024))
                p.i("s_mul_i32 s%d, s%d, %d" % (sT, sKk, 56 * 1024))
                p.i("s_add_u32 s70, s70, s%d" % sT)
                p.i("s_add_u32 s70, s70, 8192")
                p.i("s_mul_i32 s68, s%d, %d" % (sKk, 1792 * 2048))
                p.i("s_lshl_b32 s%d, s67, 13" % sT)
                p.i("s_add_u32 s68, s68, s%d" % sT)
                p.i("s_add_u32 s68, s68, %d" % (524288 - 32 * 8192))
                p.i("s_mov_b32 s71, 524288")
                p.i("s_cmp_lt_u32 s67, 32")
                p.i("s_cselect_b32 s70, s70, s68")
                p.i("s_cselect_b32 s71, 8192, s71")
                p.i("s_cselect_b32 s4, s%d, s%d" % (s.sA, s.sW))
                p.i("s_cselect_b32 s5, s%d, s%d" % (s.sA + 1, s.sW + 1))
                p.i("s_cselect_b32 s6, s%d, s%d" % (s.sA + 2, s.sW + 2))
                p.i("s_mov_b32 s7, 0x00020000")
                p.i("s_cmp_lt_u32 s67, 96")
                p.i("s_cselect_b32 s6, s6, 0")
            p.i("v_bfe_u32 v%d, v0, 2, 2" % vT)
            p.i("v_mul_u32_u24 v%d, 1056, v%d" % (vT, vT))
            p.i("v_lshrrev_b32 v%d, 4, v0" % (vT + 1))
            p.i("v_lshl_add_u32 v%d, v%d, 7, v%d" % (vT, vT + 1, vT))
            p.i("v_and_b32 v%d, 3, v0" % (vT + 1))
            if not s.carry: p.i("v_lshl_add_u32 v%d, v%d, 3, v%d" % (s.vB[0], vT + 1, vT))
            p.i("v_lshrrev_b32 v%d, 5, v0" % vT)
            p.i("v_mul_u32_u24 v%d, %d, v%d" % (vT, 96 * 2048, vT))
            for k in range(4): p.i("v_add_u32 v%d, v%d, v%d" % (s.vD2[k], s.vD[k], vT))
            if not s.carry: s.base_setup(p.i)
            srd_off(p.i, s.sS, 40, WS_SS, 2048 * 64)
            srd_off(p.i, s.sO, 50 if s.fused else 38, 0, 2048 * 2048)
            srd_off(p.i, sH, 40, WS_HC, 4 * MB)
            srd_off(p.i, sM, 40, WS_MT, 8192)
            srd_off(p.i, s.sX, 40, WS_XB, (SK - 1) * 4 * MB)
            p.i("s_lshl_b32 s47, s42, 10")
            p.i("s_lshl_b32 s45, s42, 5")
            p.i("s_lshl_b32 s%d, s%d, 2" % (sT, sNt))
            p.i("s_add_u32 s45, s45, s%d" % sT)
            p.i("s_mul_i32 s%d, s%d, %d" % (sT, sKk, ppg))
            p.i("s_add_u32 s45, s45, s%d" % sT)
            p.i("s_lshl_b32 s45, s45, 10")
            p.i("s_lshl_b32 s44, s%d, 12" % sWave)
            p.i("s_lshl_b32 s63, s2, 14")
            p.i("s_add_u32 s63, s63, s44")
            p.i("s_xor_b32 s%d, s63, %d" % (s.sXo, 4 << 14))
            p.i("v_and_b32 v%d, 15, v0" % vT)
            p.i("s_lshl_b32 s%d, s42, 4" % sT)
            p.i("v_add_u32 v%d, s%d, v%d" % (vT + 10, sT, vT))
            p.i("v_lshlrev_b32 v%d, 2, v%d" % (vT + 10, vT + 10))
            p.i("s_lshl_b32 s64, s%d, 12" % sWave)
            p.i("s_add_u32 s64, s64, %d" % (s.R * s.STB))
            p.i("v_lshlrev_b32 v%d, 7, v%d" % (vT + 1, vT))
            p.i("v_add_u32 v%d, s64, v%d" % (vT + 1, vT + 1))
            p.i("v_bfe_u32 v%d, v0, 4, 1" % (vT + 2))
            p.i("v_lshl_add_u32 v%d, v%d, 3, v%d" % (vT + 1, vT + 2, vT + 1))
            p.i("v_lshrrev_b32 v%d, 5, v0" % (vT + 2))
            p.i("v_and_b32 v%d, 7, v0" % (vT + 3))
            p.i("v_xor_b32 v%d, v%d, v%d" % (vT + 2, vT + 2, vT + 3))
            for j in range(4):
                p.i("v_xor_b32 v%d, %d, v%d" % (vT + 3, 2 * j, vT + 2))
                p.i("v_lshl_add_u32 v%d, v%d, 4, v%d" % (vT + 4 + j, vT + 3, vT + 1))
            p.i("v_add_u32 v%d, s64, v1" % (vT + 8))
            p.i("v_lshrrev_b32 v%d, 3, v0" % (vT + 1))
            p.i("v_and_b32 v%d, 7, v0" % (vT + 2))
            p.i("v_xor_b32 v%d, v%d, v%d" % (vT + 2, vT + 2, vT + 1))
            p.i("v_lshlrev_b32 v%d, 14, v%d" % (vT + 1, vT + 1))
            p.i("v_lshl_add_u32 v%d, v%d, 4, v%d" % (vT, vT + 2, vT + 1))
            p.i("s_lshr_b32 s44, s42, 4")
            p.i("s_and_b32 s%d, s42, 15" % sT)
            p.i("s_lshl_b32 s%d, s%d, 7" % (sT, sT))
            p.i("s_add_u32 s44, s44, s%d" % sT)
            p.i("s_lshl_b32 s44, s44, 11")
            p.i("s_lshl_b32 s%d, s%d, 8" % (sT, sNt))
            p.i("s_add_u32 s44, s44, s%d" % sT)
            p.i("s_mul_i32 s%d, s%d, %d" % (sT, sKk, KF * 32))
            p.i("s_add_u32 s44, s44, s%d" % sT)
            p.i("s_mov_b32 s66, 0")
        vP = 84
        NU = s.NST * s.SUB * s.NF
        def rc_text(k):
            r = vRc + k * 4
            return "buffer_load_dwordx4 v[%d:%d], v1, s[%d:%d], s63 offen offset:%d%s" % (r, r + 3, s.sX, s.sX + 3, k * 1024, s.xfl)
        for k in range(4):
            n = NU - s.rc_ahead + k
            s.xops.append((n, n, [[], rc_text(k), ("rc", k), []]))
        F = [("wv", "side", [("ss", i) for i in range(NRB)] + [("h", i, pi) for i in range(NRB) for pi in range(ppg)] + [("m", i) for i in range(NRB)])]
        for i in range(NRB):
            b = vS + 4 * i
            F.append("v_add_f32 v%d, v%d, v%d" % (b, b, b + 1))
            F.append("v_add_f32 v%d, v%d, v%d" % (b + 2, b + 2, b + 3))
            F.append("v_add_f32 v%d, v%d, v%d" % (b, b, b + 2))
            reduce_g4(F.append, b, b + 1)
            F.append("v_mov_b32 v%d, 0x%x" % (b + 1, f2u(1e-5)))
            F.append("v_fmac_f32 v%d, 0x%x, v%d" % (b + 1, f2u(1.0 / 1024), b))
            F.append("v_rcp_f32 v%d, v%d" % (vR2 + i, b + 1))
        for i in range(NRB):
            for j in range(KF):
                h = vH + (i * ppg + j // 2) * 4 + 2 * (j % 2)
                t = vP + (i * KF + j) * 4
                F.append("v_lshlrev_b32 v%d, 16, v%d" % (t, h))
                F.append("v_and_b32 v%d, 0xffff0000, v%d" % (t + 1, h))
                F.append("v_lshlrev_b32 v%d, 16, v%d" % (t + 2, h + 1))
                F.append("v_and_b32 v%d, 0xffff0000, v%d" % (t + 3, h + 1))
                for r in range(4): F.append("v_add_f32 v%d, v%d, v%d" % (t + r, t + r, vM + i))
        s.side_fill = (NU - 56, F)
        def tail(e):
            def recv():
                for k in range(4): e.vm(rc_text(k), ("rc2", k))
            for i in range(NRB):
                for j in range(KF):
                    c = s.acc(j, i)
                    t = vP + (i * KF + j) * 4
                    for r in range(4): e.i("v_fmac_f32 v%d, v%d, v%d" % (t + r, c + r, vR2 + i))
            e.i("s_branch %s_chk" % s.name)
            e.label("%s_retry" % s.name)
            recv()
            e.label("%s_chk" % s.name)
            e.i("s_waitcnt vmcnt(0)")
            e.i("v_max_u32 v%d, v%d, v%d" % (vT + 2, vRc, vRc + 1))
            e.i("v_max_u32 v%d, v%d, v%d" % (vT + 3, vRc + 2, vRc + 3))
            for k in range(4, NRC, 4):
                e.i("v_max3_u32 v%d, v%d, v%d, v%d" % (vT + 2, vT + 2, vRc + k, vRc + k + 1))
                e.i("v_max3_u32 v%d, v%d, v%d, v%d" % (vT + 3, vT + 3, vRc + k + 2, vRc + k + 3))
            e.i("v_max_u32 v%d, v%d, v%d" % (vT + 2, vT + 2, vT + 3))
            e.i("v_cmp_eq_u32 vcc, -1, v%d" % (vT + 2))
            e.i("s_add_u32 s66, s66, 1")
            e.i("s_cmp_lt_u32 s66, 0x20000")
            e.i("s_cselect_b64 s[68:69], vcc, 0")
            e.i("s_cmp_lg_u64 s[68:69], 0")
            e.i("s_cbranch_scc1 %s_retry" % s.name)
            if s.stamp is not None: e.i("s_memtime s[%d:%d]" % (SB + 28, SB + 29))
            for i in range(NRB):
                for j in range(KF):
                    r = vRc + (i * ppg + j // 2) * 4 + 2 * (j % 2)
                    t = vP + (i * KF + j) * 4
                    u = vH + 4 * (j % 2)
                    e.i("v_lshlrev_b32 v%d, 16, v%d" % (u, r))
                    e.i("v_and_b32 v%d, 0xffff0000, v%d" % (u + 1, r))
                    e.i("v_lshlrev_b32 v%d, 16, v%d" % (u + 2, r + 1))
                    e.i("v_and_b32 v%d, 0xffff0000, v%d" % (u + 3, r + 1))
                    for q in range(4): e.i("v_fmac_f32 v%d, v%d, v%d" % (t + q, u + q, vR2 + i))
                    e.i("v_cvt_pk_bf16_f32 v%d, v%d, v%d" % (t, t, t + 1))
                    e.i("v_cvt_pk_bf16_f32 v%d, v%d, v%d" % (t + 1, t + 2, t + 3))
                    e.i("ds_write_b64 v%d, v[%d:%d] offset:%d" % (vT + 4 + j, t, t + 1, i * 2048))
            e.i("s_waitcnt lgkmcnt(0)")
            for k in range(4):
                e.i("ds_read_b128 v[%d:%d], v%d offset:%d" % (vRc + 4 * k, vRc + 4 * k + 3, vT + 8, k * 1024))
            for k in range(4):
                e.i("s_waitcnt lgkmcnt(%d)" % (3 - k))
                e.vm("buffer_store_dwordx4 v[%d:%d], v%d, s[%d:%d], s44 offen" % (vRc + 4 * k, vRc + 4 * k + 3, vT, s.sO, s.sO + 3))
                if k < 3: e.i("s_add_u32 s44, s44, %d" % (8 * 16384))
        s.tail = tail
        if s.carry:
            tmp = Stream(); late(tmp)
            s.late2 = [it[1] for it in tmp.items] + ["s_nop 0 ; late2 done"]
            late = late_min
        s.emit_main(a, early, late)
        if s.carry:
            done = s.fill_step["s_nop 0"]
            need = min([s.chk_steps[0], n0] + [v for k_, v in s.issue_step.items() if k_[0] == "D" and k_[1] >= 24])
            assert done < need, (done, need)
            s.late2_done = done
        s.nagpr = s.aX
        if not s.fused: s.footer(a, s.aX, s.R * s.STB + 16384)
    def prof(s, N): return [N * k // 7 for k in range(1, 7)]

class K2H(Gemm2):
    def __init__(s, PD=3, xneed=12, calc=False, **kw):
        kw.setdefault("npro", 12)
        kw.setdefault("rate", 1.0 if calc else 0.7)
        s.calc = calc
        super().__init__("k2_kernel", NRB=1, NF=4, SUB=4, NST=4, STB=16896, R=4, AR=4, PD=PD, ndma=4, VACC=64, **kw)
        s.xneed = xneed
        s.aM = s.aX
        s.vAccM = 56
        s.vMl = 31
        s.vJunk = 30
        s.dt = 'f16'
        s.LM = s.R * s.STB
        s.LX = s.LM + 8192
        if calc:
            s.afile = 'v'; s.vpm = 3
    def aA(s, q, i): return 80 + 4 * q if s.calc else Gemm2.aA(s, q, i)
    def a_ops(s, q): return [] if s.calc else Gemm2.a_ops(s, q)
    def valu_ready(s, units):
        if not s.calc: return {}
        L = []
        for kb in range(8):
            for h in range(2):
                b = 144 + kb * 8 + h * 4
                for r in range(4): L.append("v_sin_f32 v%d, v%d" % (b + r, b + r))
            for h in range(2):
                b = 144 + kb * 8 + h * 4
                d = s.aA(8 + kb, 0) + 2 * h
                L.append("v_cvt_pk_f16_f32 v%d, -v%d, -v%d" % (d, b, b + 1))
                L.append("v_cvt_pk_f16_f32 v%d, -v%d, -v%d" % (d + 1, b + 2, b + 3))
        return {0: L}
    def rd_off(s, sub, j, h):
        return (sub // 2) * 8448 + (sub % 2) * 512 + h * 256 + j * 32
    def dma_text(s, st, n):
        pre = ["s_add_u32 m0, s%d, %d" % (s.sLdsW, (st % s.R) * s.STB + 32 * n)]
        return pre, "buffer_load_dwordx4 v1, s[%d:%d], s%d offen offset:%d lds" % (s.sW, s.sW + 3, s.sDoff, n * 1024)
    def dma_step(s, st): return 16384
    def rdm(s, p, q):
        if q < 16:
            r = s.aM + 4 * (q % 4)
            p.ds("ds_read_b128 a[%d:%d], v%d offset:%d" % (r, r + 3, s.vMl, q * 64), ("M", q))
    def post_sync0(s, p):
        p.wv("vmw", [("vm", 0), ("vm", 1)])
        for q in range(3): s.rdm(p, q)
    def extra_unit(s, p, q):
        p.wl(("M", q), [("M", q)])
        r = s.aM + 4 * (q % 4)
        c = s.vAccM
        src = "0" if q == 0 else "v[%d:%d]" % (c, c + 3)
        p.i("v_mfma_f32_16x16x32_f16 v[%d:%d], a[%d:%d], %s[%d:%d], %s" % (c, c + 3, r, r + 3, s.afile, s.aA(q, 0), s.aA(q, 0) + 3, src))
        s.rdm(p, q + 3)
    def extra_vm(s): return [] if s.calc else s.xops
    def gen(s, a):
        sT, sWave = s.sT, s.sWave
        vT = 20; vXM = [18, 19]; vX = 32; vXa = 4; vXr = 8
        vHo, vSo, vRo = 16, 17, 3
        sNt, sT1, sX, sM, sXM, sVM = 33, 34, 48, 52, 56, 60
        s.header(a)
        a("s_load_dwordx2 s[36:37], s[0:1], 0")
        a("s_load_dwordx2 s[40:41], s[0:1], 88")
        a("v_lshrrev_b32 v1, 6, v0")
        a("v_and_b32 v0, 63, v0")
        a("v_readfirstlane_b32 s%d, v1" % sWave)
        a("s_and_b32 s%d, s2, 7" % sT1)
        a("s_bfe_u32 s%d, s2, 0x30003" % sNt)
        a("s_lshr_b32 s%d, s2, 6" % sT)
        a("s_lshl_b32 s42, s%d, 4" % sT1)
        a("s_lshl_b32 s%d, s%d, 2" % (sT, sT))
        a("s_add_u32 s42, s42, s%d" % sT)
        a("s_add_u32 s42, s42, s%d" % sWave)
        a("s_lshl_b32 s43, s42, 14")
        a("v_lshlrev_b32 v1, 4, v0")
        a("v_add_u32 v%d, s43, v1" % s.vA[0])
        a("s_mul_i32 s%d, s%d, 4224" % (s.sLdsW, sWave))
        a("s_lshl_b32 s%d, s%d, 3" % (sT, sT1))
        a("s_add_u32 s%d, s%d, s%d" % (sT, sT, sNt))
        a("s_lshl_b32 s%d, s%d, 16" % (s.sDoff, sT))
        a("s_lshl_b32 s47, s%d, 10" % sT)
        a("s_add_u32 s47, s47, %d" % (8192 - 1024))
        a("s_lshl_b32 s%d, s%d, 12" % (sT, sWave))
        a("s_add_u32 s%d, s%d, s%d" % (s.sDoff, s.sDoff, sT))
        a("s_lshl_b32 s45, s%d, 11" % sWave)
        a("s_add_u32 s45, s45, %d" % s.LM)
        a("s_lshl_b32 s46, s%d, 10" % sT1)
        a("s_waitcnt lgkmcnt(0)")
        srd_off(a, s.sW, 40, WS_V, 4 * MB)
        srd_off(a, s.sA, 40, WS_WSF, 2 * MB)
        srd_off(a, sVM, 40, WS_VM, 8192 + 65536)
        if s.stamp is not None and not s.fused: stamp_mid(a, 3)
        s.xops = []
        for k in range(4):
            s.xops.append((0, s.xneed, [["s_add_u32 m0, s64, %d" % (k * 1024)],
                           "buffer_load_dwordx4 v%d, s[%d:%d], 0 offen lds" % (vXa + k, sX, sX + 3), ("x", k), []]))
        s.xops.append((0, s.xneed, [[], "buffer_load_dword v%d, v%d, s[%d:%d], 0 offen" % (vXM[0], vT + 3, sXM, sXM + 3), ("xm", 0), []]))
        s.xops.append((0, s.xneed, [[], "buffer_load_dword v%d, v%d, s[%d:%d], 0 offen" % (vXM[1], vRo, sXM, sXM + 3), ("xm", 1), []]))
        def early(p):
            p.i("s_mov_b32 m0, s45")
            p.i("s_nop 0")
            p.vm("buffer_load_dwordx4 v1, s[%d:%d], s46 offen lds" % (sVM, sVM + 3), ("vm", 0))
            p.vm("buffer_load_dwordx4 v1, s[%d:%d], s47 offen offset:1024 lds" % (sVM, sVM + 3), ("vm", 1))
        def late(p):
            I = p.i
            I("v_bfe_u32 v%d, v0, 2, 3" % vT)
            I("v_mul_u32_u24 v%d, 1056, v%d" % (vT, vT))
            I("v_lshrrev_b32 v%d, 5, v0" % (vT + 1))
            I("v_lshl_add_u32 v%d, v%d, 7, v%d" % (vT, vT + 1, vT))
            I("v_and_b32 v%d, 3, v0" % (vT + 1))
            I("v_lshl_add_u32 v%d, v%d, 3, v%d" % (s.vB[0], vT + 1, vT))
            s.base_setup(I)
            I("v_lshrrev_b32 v%d, 4, v0" % vT)
            I("v_lshlrev_b32 v%d, 4, v%d" % (vT, vT))
            I("v_and_b32 v%d, 1, v0" % (vT + 1))
            I("v_lshl_add_u32 v%d, v%d, 10, v%d" % (vT, vT + 1, vT))
            I("v_add_u32 v%d, s45, v%d" % (s.vMl, vT))
            I("v_and_b32 v%d, 15, v0" % vT)
            I("v_lshlrev_b32 v%d, 4, v%d" % (vT + 2, vT))
            I("s_lshl_b32 s%d, s42, 4" % sT)
            I("v_add_u32 v%d, s%d, v%d" % (vT + 3, sT, vT))
            I("v_lshlrev_b32 v%d, 2, v%d" % (vT + 3, vT + 3))
            I("s_and_b32 s65, s42, 15")
            I("s_lshl_b32 s65, s65, 7")
            I("s_add_u32 s65, s65, s%d" % sT1)
            I("s_sub_u32 s66, 2048, s65")
            I("v_lshlrev_b32 v%d, 3, v%d" % (vT + 4, vT))
            I("v_sub_u32 v%d, s66, v%d" % (vT + 4, vT + 4))
            I("v_and_b32 v%d, 0x7ff, v%d" % (vT + 4, vT + 4))
            I("v_and_b32 v%d, 7, v%d" % (vT + 5, vT + 4))
            I("v_lshrrev_b32 v%d, 3, v%d" % (vT + 4, vT + 4))
            I("v_lshl_add_u32 v%d, v%d, 8, v%d" % (vT + 4, vT + 5, vT + 4))
            I("v_lshlrev_b32 v%d, 2, v%d" % (vRo, vT + 4))
            I("v_lshrrev_b32 v%d, 4, v%d" % (vT + 5, vT + 4))
            I("v_and_b32 v%d, 15, v%d" % (vT + 4, vT + 4))
            I("v_lshlrev_b32 v%d, 4, v%d" % (vT + 4, vT + 4))
            I("v_lshl_add_u32 v%d, v%d, 10, v%d" % (vSo, vT + 5, vT + 4))
            I("v_lshl_add_u32 v%d, v%d, 15, v%d" % (vHo, vT + 5, vT + 4))
            I("v_lshrrev_b32 v%d, 4, v0" % (vT + 5))
            I("v_xor_b32 v%d, 3, v%d" % (vT + 5, vT + 5))
            I("v_lshl_add_u32 v%d, v%d, 8, v%d" % (vHo, vT + 5, vHo))
            I("v_lshrrev_b32 v%d, 4, v0" % (vT + 4))
            I("v_and_b32 v%d, 7, v0" % (vT + 5))
            I("v_xor_b32 v%d, v%d, v%d" % (vT + 4, vT + 4, vT + 5))
            I("v_lshlrev_b32 v%d, 4, v%d" % (vT + 4, vT + 4))
            I("v_and_b32 v%d, 0x38, v0" % (vT + 5))
            I("s_lshl_b32 s67, s%d, 7" % sNt)
            I("s_sub_u32 s68, %d, s67" % (15 * 128))
            for k in range(4):
                if k < 2: I("v_add_u32 v%d, s65, v%d" % (vT + 6, vT + 5))
                else: I("v_sub_u32 v%d, s66, v%d" % (vT + 6, vT + 5))
                if k % 2:
                    I("v_add_u32 v%d, %d, v%d" % (vT + 6, 64 if k < 2 else -64, vT + 6))
                I("v_and_b32 v%d, 0x7ff, v%d" % (vT + 6, vT + 6))
                I("v_lshl_add_u32 v%d, v%d, 11, v%d" % (vT + 6, vT + 6, vT + 4))
                if k % 2: I("v_xor_b32 v%d, 64, v%d" % (vT + 6, vT + 6))
                I("v_add_u32 v%d, s%d, v%d" % (vXa + k, 67 if k < 2 else 68, vT + 6))
            I("s_lshl_b32 s64, s%d, 12" % sWave)
            I("s_add_u32 s64, s64, %d" % s.LX)
            I("v_lshlrev_b32 v%d, 7, v%d" % (vT + 1, vT))
            I("v_add_u32 v%d, s64, v%d" % (vT + 1, vT + 1))
            I("v_bfe_u32 v%d, v0, 4, 1" % (vT + 4))
            I("v_lshl_add_u32 v%d, v%d, 3, v%d" % (vT + 1, vT + 4, vT + 1))
            I("v_lshrrev_b32 v%d, 5, v0" % (vT + 4))
            I("v_lshrrev_b32 v%d, 1, v%d" % (vT + 5, vT))
            I("v_xor_b32 v%d, v%d, v%d" % (vT + 4, vT + 4, vT + 5))
            for j in range(4):
                I("v_xor_b32 v%d, %d, v%d" % (vT + 5, 2 * j, vT + 4))
                I("v_lshl_add_u32 v%d, v%d, 4, v%d" % (vXr + j, vT + 5, vT + 1))
            I("v_add_u32 v12, 16, v0")
            I("v_and_b32 v12, 63, v12")
            I("v_lshlrev_b32 v12, 2, v12")
            srd_off(I, s.sS, 40, WS_SS, 2048 * 64)
            srd_off(I, s.sO, 40, WS_HC, 4 * MB)
            srd_off(I, sX, 36, 0, 2048 * 2048)
            srd_off(I, sM, 40, WS_MT, 8192)
            srd_off(I, sXM, 40, WS_XM, 8192)
            I("s_lshl_b32 s44, s42, 15")
            I("s_lshl_b32 s%d, s%d, 11" % (sT, sNt))
            I("s_add_u32 s44, s44, s%d" % sT)
            I("s_sub_u32 s69, %d, s%d" % (15 * 2048, sT))
            for dst, src in ((45, sNt), (70, 71)):
                if dst == 70: I("s_sub_u32 s71, 15, s%d" % sNt)
                I("s_lshr_b32 s%d, s%d, 2" % (sT, src))
                I("s_lshl_b32 s%d, s%d, 8" % (dst, sT))
                I("s_and_b32 s%d, s%d, 3" % (sT, src))
                I("s_lshl_b32 s%d, s%d, 2" % (sT, sT))
                I("s_add_u32 s%d, s%d, s%d" % (dst, dst, sT))
            I("s_lshl_b32 s%d, s42, 10" % sT)
            I("s_add_u32 s45, s45, s%d" % sT)
            I("v_cmp_lt_u32 s[38:39], 47, v0")
            if s.calc:
                for x in s.xops: s.put(p, x[2])
                s.xops_done = True
                I("v_lshlrev_b32 v%d, 3, v%d" % (vT + 4, vT))
                I("v_add_u32 v%d, s65, v%d" % (vT + 4, vT + 4))
                I("v_cvt_f32_u32 v%d, v%d" % (vT + 4, vT + 4))
                I("v_mul_f32 v%d, 0x%x, v%d" % (vT + 4, f2u(1.0 / 2048), vT + 4))
                I("v_lshrrev_b32 v%d, 4, v0" % (vT + 5))
                I("v_lshlrev_b32 v%d, 2, v%d" % (vT + 5, vT + 5))
                I("v_cvt_f32_u32 v%d, v%d" % (vT + 5, vT + 5))
                I("v_mul_f32 v%d, v%d, v%d" % (vT + 5, vT + 5, vT + 4))
                for kb in range(8):
                    for h in range(2):
                        b = 144 + kb * 8 + h * 4
                        for r in range(4):
                            I("v_fmamk_f32 v%d, v%d, 0x%x, v%d" % (b + r, vT + 4, f2u(float(32 * kb + 16 * h + r)), vT + 5))
                            I("v_fract_f32 v%d, v%d" % (b + r, b + r))
                            I("v_cos_f32 v%d, v%d" % (48 + 4 * h + r, b + r))
                    for h in range(2):
                        d = s.aA(kb, 0) + 2 * h
                        I("v_cvt_pk_f16_f32 v%d, v%d, v%d" % (d, 48 + 4 * h, 49 + 4 * h))
                        I("v_cvt_pk_f16_f32 v%d, v%d, v%d" % (d + 1, 50 + 4 * h, 51 + 4 * h))
            if s.fused:
                I("s_lshr_b32 s35, s42, 2")
                I("s_lshl_b32 s35, s35, 3")
                I("s_add_u32 s35, s35, s%d" % sNt)
                I("s_lshl_b32 s35, s35, 2")
                I("s_add_u32 s35, s35, s%d" % sWave)
                I("s_lshl_b32 s35, s35, 2")
                I("s_add_u32 s35, s35, 4096")
        def tail(e):
            R_ = 48
            for j in range(4):
                e.ds("ds_bpermute_b32 v%d, v12, v%d" % (R_ + j, s.acc(j, 0)), ("bp", j))
            e.wv("side", [("x", k) for k in range(4)] + [("xm", i) for i in range(2)])
            for j in range(4):
                e.ds("ds_read_b64 v[%d:%d], v%d" % (vX + 2 * j, vX + 2 * j + 1, vXr + j), ("xr", 0, j))
            for j in range(4):
                e.i("v_xor_b32 v%d, 24, v%d" % (vXr + j, vXr + j))
                e.ds("ds_read_b64 v[%d:%d], v%d offset:2048" % (vX + 8 + 2 * j, vX + 8 + 2 * j + 1, vXr + j), ("xr", 1, j))
            for i in range(2):
                e.i("v_add_f32 v%d, v%d, v%d" % (vXM[i], vXM[i], s.vAccM))
            e.i("v_mov_b32 v%d, v%d" % (R_ + 4, s.vAccM + 1))
            e.wl("bpw", [("bp", j) for j in range(4)])
            for j in range(4):
                e.i("v_cndmask_b32 v%d, v%d, v%d, s[38:39]" % (R_ + j, R_ + j, R_ + j + 1))
            for i in range(2):
                m = vXM[i]
                ssr = 60 + 2 * i
                for j in range(4):
                    c = s.acc(j, 0) if i == 0 else s.acc(3 - j, 0)
                    src = [c, c + 1, c + 2, c + 3] if i == 0 else [R_ + 3 - j, c + 3, c + 2, c + 1]
                    x = vX + (i * 4 + j) * 2
                    t = vT + 4
                    e.wl(("xr", i, j), [("xr", i, j)])
                    e.i("v_lshlrev_b32 v%d, 16, v%d" % (t, x))
                    e.i("v_and_b32 v%d, 0xffff0000, v%d" % (t + 1, x))
                    e.i("v_lshlrev_b32 v%d, 16, v%d" % (t + 2, x + 1))
                    e.i("v_and_b32 v%d, 0xffff0000, v%d" % (t + 3, x + 1))
                    for r in range(4): e.i("v_sub_f32 v%d, v%d, v%d" % (t + r, t + r, m))
                    for r in range(4): e.i("v_add_f32 v%d, v%d, v%d" % (t + r, t + r, src[r]))
                    e.i("v_cvt_pk_bf16_f32 v%d, v%d, v%d" % (x, t, t + 1))
                    e.i("v_cvt_pk_bf16_f32 v%d, v%d, v%d" % (x + 1, t + 2, t + 3))
                    if j % 2 == 1:
                        e.vm("buffer_store_dwordx4 v[%d:%d], v%d, s[%d:%d], s%d offen offset:%d%s" % (x - 2, x + 1, 1 if i == 0 else vHo, s.sO, s.sO + 3, 44 if i == 0 else 69, (j // 2) * 1024, s.st_flags))
                    for r in range(4):
                        if j == 0 and r == 0: e.i("v_mul_f32 v%d, v%d, v%d" % (ssr, t, t))
                        else: e.i("v_fmac_f32 v%d, v%d, v%d" % (ssr, t + r, t + r))
                reduce_g4(e.i, ssr, ssr + 1)
                e.vm("buffer_store_dword v%d, v%d, s[%d:%d], s%d offen%s" % (ssr, vT + 2 if i == 0 else vSo, s.sS, s.sS + 3, 45 if i == 0 else 70, s.st_flags))
            e.i("s_cmp_lg_u32 s%d, 0" % sNt)
            e.i("s_cbranch_scc1 %s_nomt" % s.name)
            e.vm("buffer_store_dword v%d, v%d, s[%d:%d], 0 offen%s" % (vXM[0], vT + 3, sM, sM + 3, s.st_flags))
            e.label("%s_nomt" % s.name)
        s.tail = tail
        s.emit_main(a, early, late)
        if s.calc: s.NACC = 208 - s.VACC
        if not s.fused: s.footer(a, s.aM + 16, s.LX + 16384)

def gen_g34(a, stamp, c3, c4, c2=None):
    if "chk_steps" not in c4:
        lead = c4.get("chk_lead", 15)
        t4 = dict(c4); t4["chk_steps"] = {0: c4.get("pub4", 24), 1: 10, 2: 11, 3: 12}
        gen_g34(Asm(), stamp, c3, t4, c2)
        info = gen_g34.info
        t4["chk_steps"] = {0: c4.get("pub4", 24), 1: info[1] - lead, 2: info[2] - lead, 3: info[3] - lead}
        return gen_g34(a, stamp, c3, t4, c2)
    c4 = dict(c4); c3 = dict(c3)
    c4.pop("chk_lead", None); c4.pop("pub4", None)
    chk = c4.pop("chk_steps")
    order = c3.pop("order", (0, 1, 6, 2, 3, 4, 5))
    flag_after = c3.pop("flag_after", {6: 1})
    pub2 = c4.pop("pub2", 0)
    backoff = c4.pop("backoff", 0)
    wpre = c4.pop("wpre", 412)
    dblocks = c3.pop("dblocks", ())
    vpm4 = c4.pop("vpm4", 1)
    aflags = c4.pop("aflags", " sc1")
    alt = c4.pop("alt", False)
    pre_at = c3.pop("pre_at", 368)
    fl0 = c3.pop("fl0", 440)
    g3 = G3(stamp=stamp, **c3); g4 = G4S(stamp=stamp, **c4)
    g3.name = g4.name = "g34_kernel"
    g3.fused = g4.fused = True
    g3.handover = True
    g3.defer_blocks = tuple(dblocks)
    if dblocks:
        g4.VACC = 144
        g4.vpm = vpm4
    g3.pair_order = list(order); g3.flag_after = flag_after
    g3.fill_flags = " sc1"
    g4.a_flags = aflags
    g4.selfpf = False
    g4.chk_steps = chk
    g4.alt_path = alt
    g4.pub2 = pub2
    g4.backoff = backoff
    g4.all_stores = [("st", j, i) for j in (1, 3, 5, 6) for i in range(4)]
    g3.prof = lambda N: []
    g3.m_prof = 4
    g4.m_start, g4.m_end, g4.m_prof = 5, 6, 7
    g4.prof = lambda N: [N // 4, N // 2, 3 * N // 4]
    g4.pre_only = True
    g4.gen(a)
    if c2 is not None:
        c2 = dict(c2); c2["st_flags"] = " sc1"
        k2 = K2H(stamp=stamp, **c2)
        k2.name = "g34_kernel"; k2.fused = True
        k2.stamp_keep = stamp
        k2.prof = lambda N: []
        k2.m_start, k2.m_end = 9, 9
        a.label("k2_kernel") if False else None
        k2.gen(a)
        g3.after_k2 = True
        g3.a_flags = " sc1"
        g4.prof = lambda N: [N // 3, 2 * N // 3]
    g3.extra_fill = (pre_at, g4.PRE)
    g3.late_x = [(fl0, fl0, [[], "buffer_load_dword v12, v10, s[4:7], 0 offen sc1", ("fl", 0), []])]
    if wpre:
        assert g3.TS == 3 and g3.R == 5
        g4.slot0, g4.pre_stages = 2, 3
        n = wpre
        for st in range(3):
            for op in g4.dma_ops(st):
                if n == fl0: n += 1
                g3.late_x.append((n, n, op)); n += 2
    g3.gen(a)
    assert not any(x in g3.leftover for x in g4.PRE[-3:]), "pre-setup must finish inside the g3 loop"
    assert g3.last_vm_step < pre_at, g3.last_vm_step
    assert "v_mov_b32 v28, 1" not in g3.leftover, "first progress flag must be published before the first flag check"
    i1 = [k for k, it in enumerate(g3.stream.items) if it[1] == "v_mov_b32 v28, 1"][0]
    assert any(it[0] == 'vm' and "s59 offen sc1" in it[1] for it in g3.stream.items[i1:]), "flag store not inside g3 loop"
    g4.pre_only = False
    g4.inherited = g3.leftover
    g4.carry = g3.deferred
    g4.prev_streams = [g3.stream]
    g4.gen(a)
    gen_g34.info = {c_: g4.issue_step.get(("A", 16 * c_, 0)) for c_ in (1, 2, 3)}
    if stamp is not None: stamp_end(a, 40, stamp, g4.sWave)
    a("s_branch g34_kernel_end")
    g4.slow_paths(a)
    a.label("g34_kernel_end")
    a.end_kernel("g34_kernel", 256, max(g3.nagpr, g4.nagpr), 102)
    a.launch("g34_kernel", 256, 256, max(g3.R * g3.STB, g4.R * g4.STB + 16384))
```
